```python
import torch

def _softmax(x, axis=-1):
    return torch.softmax(x, dim=axis)

def _gelu(x):
    return torch.nn.functional.gelu(x, approximate='tanh')

def _silu(x):
    return torch.nn.functional.silu(x)

def _sigmoid(x):
    return torch.sigmoid(x)

def _layernorm(x, axis=-1, eps=1e-05):
    m = x.mean(dim=axis, keepdim=True)
    v = x.var(dim=axis, keepdim=True, unbiased=False)
    return (x - m) / torch.sqrt(v + eps)

def _scatter_add(tgt, idx, src, axis=0):
    return tgt.clone().index_add_(axis, idx, src)

def _segment_sum(src, seg, n):
    out = torch.zeros((n,) + src.shape[1:], dtype=src.dtype)
    return out.index_add_(0, seg, src)

def _pad(x, pw):
    flat = tuple((v for pair in reversed(pw) for v in pair))
    return torch.nn.functional.pad(x, flat)
kernel_name = 'interleave_layers__ssm_conv_h3__mixer_gmlp__prompt'

def setup_inputs():

    _w = lambda a: (lambda t: t.to(torch.bfloat16) if t.is_floating_point() else t)(torch.as_tensor(a))

    def _A_setup():
        B, S, D = (1, 2048, 640)
        ks = 4
        return {'q': _w((lambda *s: torch.randn(*s, dtype=torch.bfloat16) * 0.05)(B, S, D)), 'k': _w((lambda *s: torch.randn(*s, dtype=torch.bfloat16) * 1.6)(B, S, D)), 'v': _w((lambda *s: torch.randn(*s, dtype=torch.bfloat16) * 1.6)(B, S, D)), 'shift_k': _w((lambda *s: torch.randn(*s, dtype=torch.bfloat16) * 1.6)(D, ks) * 0.5), 'ssm_k': _w((lambda *s: torch.randn(*s, dtype=torch.bfloat16) * 1.6)(D, S) * (1.0 / S ** 0.5)), 'ssm_D': _w((lambda *s: torch.randn(*s, dtype=torch.bfloat16) * 1.6)(D))}
    _A_in = _A_setup()

    def _B_setup():
        B, S, D, F = (1, 2048, 640, 1728)
        Fh = F // 2
        return {'x': _w((lambda *s: torch.randn(*s, dtype=torch.bfloat16) * 0.05)(B, S, D)), 'w_in': _w((lambda *s: torch.randn(*s, dtype=torch.bfloat16) * 1.6)(D, 2 * Fh)), 'w_sp': _w(0.01 * (lambda *s: torch.randn(*s, dtype=torch.bfloat16) * 1.6)(S, S)), 'b_sp': _w(1.0 + 0.01 * (lambda *s: torch.randn(*s, dtype=torch.bfloat16) * 0.2)(S)), 'w_out': _w((lambda *s: torch.randn(*s, dtype=torch.bfloat16) * 0.2)(Fh, D))}
    _B_in = _B_setup()
    return {'A_q': _A_in['q'], 'A_k': _A_in['k'], 'A_v': _A_in['v'], 'A_shift_k': _A_in['shift_k'], 'A_ssm_k': _A_in['ssm_k'], 'A_ssm_D': _A_in['ssm_D'], 'B_x': _B_in['x'], 'B_w_in': _B_in['w_in'], 'B_w_sp': _B_in['w_sp'], 'B_b_sp': _B_in['b_sp'], 'B_w_out': _B_in['w_out']}

def reference(A_q, A_k, A_v, A_shift_k, A_ssm_k, A_ssm_D, B_x, B_w_in, B_w_sp, B_b_sp, B_w_out):

    def _A_ref(q, k, v, shift_k, ssm_k, ssm_D):
        B, S, D = q.shape
        ks = shift_k.shape[-1]
        k_pad = _pad(k, ((0, 0), (ks - 1, 0), (0, 0)))
        k_shift = torch.zeros_like(k)
        for t in range(ks):
            k_shift = k_shift + k_pad[:, t:t + S, :] * shift_k[:, ks - 1 - t][None, None, :]
        kv = k_shift * v
        L = 2 * S
        kv_pad = _pad(kv, ((0, 0), (0, S), (0, 0)))
        kf_pad = _pad(ssm_k, ((0, 0), (0, S)))
        kv_f = (lambda x, axes=(-2, -1): torch.fft.rfft2(x.float(), dim=axes))(kv_pad[:, None, :, :], axes=(1, 2))
        kf_f = (lambda x, axes=(-2, -1): torch.fft.rfft2(x.float(), dim=axes))(kf_pad[:, None, :], axes=(1, 2))
        kf_f = (lambda x, *d: x.permute(*d))(kf_f, 1, 2, 0)
        y_f = kv_f * kf_f[None, :, :, :]
        y = (lambda x, s, axes=(-2, -1): torch.fft.irfft2(x, s=s, dim=axes).to(torch.bfloat16))(y_f, (1, L), axes=(1, 2))[:, 0, :S, :]
        y = y + kv * ssm_D[None, None, :]
        return q * y

    def _B_ref(x, w_in, w_sp, b_sp, w_out):
        B, S, D = x.shape
        F = w_in.shape[-1]
        Fh = F // 2
        z = _gelu(torch.einsum('bsd,df->bsf', x, w_in))
        z1 = z[..., :Fh].clone()
        z2 = _layernorm(z[..., Fh:], axis=-1)
        g = torch.einsum('ts,bsf->btf', w_sp, z2) + b_sp[None, :, None]
        return torch.einsum('bsf,fd->bsd', z1 * g, w_out)
    x = A_q
    x = x + _A_ref(_layernorm(x, axis=-1), A_k, A_v, A_shift_k, A_ssm_k, A_ssm_D)
    x = x + _B_ref(_layernorm(x, axis=-1), B_w_in, B_w_sp, B_b_sp, B_w_out)
    x = x + _A_ref(_layernorm(x, axis=-1), A_k, A_v, A_shift_k, A_ssm_k, A_ssm_D)
    x = x + _B_ref(_layernorm(x, axis=-1), B_w_in, B_w_sp, B_b_sp, B_w_out)
    return x
```

```python
NAME = "interleave_layers__ssm_conv_h3__mixer_gmlp__prompt"

KVR = 0x0
YYT = 0x300000
WINT = 0x600000
WOUTT = 0x900000
X1 = 0xB00000
X2 = 0xE00000
X3 = 0x1100000
HH = 0x1400000
ZZ = 0x1700000
Z2T = 0x1E00000
UU = 0x2200000

A_Q, A_K, A_V, A_SK, A_SSMK, A_D, B_X, B_WIN, B_WSP, B_BSP, B_WOUT, OUT, DBG, WS = [8*i for i in range(14)]

class Asm:
    def __init__(self):
        self.L = []
        self.kernels = []
        self.launches = []
        self.uid = 0
    def __call__(self, s):
        for line in s.strip().split('\n'):
            self.L.append('    ' + line.strip())
    def label(self, l):
        self.L.append(l + ':')
    def newlabel(self, p='L'):
        self.uid += 1
        return f'{p}_{self.uid}'
    def begin(self, label):
        self.L.append('.globl ' + label)
        self.L.append('.p2align 8')
        self.L.append(f'.type {label},@function')
        self.label(label)
    def srd(self, d, p, nbytes, off=0):
        if off:
            self(f's_add_u32 s{d}, s{p}, {off}')
            self(f's_addc_u32 s{d+1}, s{p+1}, 0')
        else:
            self(f's_mov_b32 s{d}, s{p}')
            self(f's_mov_b32 s{d+1}, s{p+1}')
        self(f's_mov_b32 s{d+2}, {nbytes}')
        self(f's_mov_b32 s{d+3}, 0x00020000')
    def rnd2(self, a, b, t):
        self(f'v_cvt_pk_bf16_f32 v{t}, v{a}, v{b}')
        self(f'v_lshlrev_b32 v{a}, 16, v{t}')
        self(f'v_and_b32 v{b}, 0xffff0000, v{t}')
    def unpack(self, lo, hi, src):
        self(f'v_lshlrev_b32 v{lo}, 16, v{src}')
        self(f'v_and_b32 v{hi}, 0xffff0000, v{src}')
    def wave_sum(self, v, t, sdst):
        for off in (0x041F, 0x081F, 0x101F, 0x201F, 0x401F):
            self(f'ds_swizzle_b32 v{t}, v{v} offset:{off:#x}')
            self('s_waitcnt lgkmcnt(0)')
            self(f'v_add_f32 v{v}, v{v}, v{t}')
        self('s_nop 0')
        self(f'v_readlane_b32 s{sdst}, v{v}, 32')
        self('s_nop 1')
        self(f'v_add_f32 v{v}, s{sdst}, v{v}')
        self('s_nop 0')
        self(f'v_readlane_b32 s{sdst}, v{v}, 0')
        self('s_nop 1')

a = Asm()

def gen_prep():
    k = 'prep_kernel'
    a.begin(k)
    a(f'''
    s_cmp_ge_u32 s2, 1450
    s_cbranch_scc1 prep_done
    s_load_dwordx2 s[4:5], s[0:1], {A_K}
    s_load_dwordx2 s[6:7], s[0:1], {A_V}
    s_load_dwordx2 s[8:9], s[0:1], {A_SK}
    s_load_dwordx2 s[10:11], s[0:1], {B_WIN}
    s_load_dwordx2 s[12:13], s[0:1], {B_WOUT}
    s_load_dwordx2 s[14:15], s[0:1], {WS}
    v_lshrrev_b32 v1, 3, v0
    v_and_b32 v2, 7, v0
    s_waitcnt lgkmcnt(0)
    s_cmp_ge_u32 s2, 640
    s_cbranch_scc1 prep_tr
    ''')
    a(f'''
    s_mov_b32 s16, 429496730
    s_mul_hi_u32 s17, s2, s16
    s_mul_i32 s18, s17, 10
    s_sub_u32 s18, s2, s18
    s_lshl_b32 s19, s17, 5
    s_lshl_b32 s20, s18, 6
    ''')
    a.srd(24, 4, 2621440)
    a.srd(28, 6, 2621440)
    a.srd(32, 8, 5120)
    a.srd(36, 14, 2621440, KVR)
    a(f'''
    v_add_u32 v3, s19, v1
    v_mul_u32_u24 v3, 1280, v3
    v_lshlrev_b32 v4, 4, v2
    v_add_u32 v3, v3, v4
    s_lshl_b32 s21, s20, 1
    v_add_u32 v3, s21, v3
    v_subrev_u32 v5, 1280, v3
    v_subrev_u32 v6, 2560, v3
    v_subrev_u32 v7, 3840, v3
    buffer_load_dwordx4 v[8:11], v3, s[24:27], 0 offen
    buffer_load_dwordx4 v[12:15], v5, s[24:27], 0 offen
    buffer_load_dwordx4 v[16:19], v6, s[24:27], 0 offen
    buffer_load_dwordx4 v[20:23], v7, s[24:27], 0 offen
    buffer_load_dwordx4 v[24:27], v3, s[28:31], 0 offen
    v_lshlrev_b32 v4, 6, v2
    s_lshl_b32 s21, s20, 3
    v_add_u32 v4, s21, v4
    buffer_load_dwordx4 v[28:31], v4, s[32:35], 0 offen
    buffer_load_dwordx4 v[32:35], v4, s[32:35], 0 offen offset:16
    buffer_load_dwordx4 v[36:39], v4, s[32:35], 0 offen offset:32
    buffer_load_dwordx4 v[40:43], v4, s[32:35], 0 offen offset:48
    ''')
    a('''
    v_mul_u32_u24 v44, 640, v2
    v_sub_u32 v45, 31, v1
    v_lshlrev_b32 v45, 1, v45
    v_add_u32 v44, v44, v45
    s_waitcnt vmcnt(0)
    ''')
    for e in range(8):
        w = e // 2
        def g(dst, base):
            if e % 2 == 0:
                a(f'v_lshlrev_b32 v{dst}, 16, v{base+w}')
            else:
                a(f'v_and_b32 v{dst}, 0xffff0000, v{base+w}')
        g(50, 8); g(51, 12); g(52, 16); g(53, 20); g(54, 24)
        a.unpack(55, 56, 28 + 2*e)
        a.unpack(57, 58, 29 + 2*e)
        a(f'''
        v_mul_f32 v60, v53, v58
        v_mul_f32 v61, v52, v57
        ''')
        a.rnd2(60, 61, 62)
        a(f'''
        v_add_f32 v60, v60, v61
        v_mul_f32 v61, v51, v56
        ''')
        a.rnd2(60, 61, 62)
        a(f'''
        v_add_f32 v60, v60, v61
        v_mul_f32 v61, v50, v55
        ''')
        a.rnd2(60, 61, 62)
        a(f'''
        v_add_f32 v60, v60, v61
        v_cvt_pk_bf16_f32 v62, v60, v60
        v_lshlrev_b32 v60, 16, v62
        v_mul_f32 v60, v60, v54
        v_cvt_pk_bf16_f32 v62, v60, v60
        ds_write_b16 v44, v62 offset:{80*e}
        ''')
    a(f'''
    s_waitcnt lgkmcnt(0)
    s_barrier
    v_lshrrev_b32 v45, 2, v0
    v_and_b32 v46, 3, v0
    v_mul_u32_u24 v47, 80, v45
    v_lshlrev_b32 v48, 4, v46
    v_add_u32 v47, v47, v48
    ds_read_b128 v[8:11], v47
    v_add_u32 v45, s20, v45
    v_lshlrev_b32 v45, 12, v45
    s_sub_u32 s21, 2016, s19
    s_lshl_b32 s21, s21, 1
    v_add_u32 v45, s21, v45
    v_add_u32 v45, v45, v48
    s_waitcnt lgkmcnt(0)
    buffer_store_dwordx4 v[8:11], v45, s[36:39], 0 offen
    s_branch prep_done
    ''')
    a.label('prep_tr')
    a('''
    s_sub_u32 s16, s2, 640
    s_cmp_ge_u32 s16, 540
    s_cbranch_scc1 prep_tr2
    ''')
    a(f'''
    s_mov_b32 s17, 159072863
    s_mul_hi_u32 s18, s16, s17
    s_mul_i32 s19, s18, 27
    s_sub_u32 s19, s16, s19
    s_mov_b32 s20, 640
    s_mov_b32 s21, 1728
    ''')
    a.srd(24, 10, 2211840)
    a.srd(28, 14, 2211840, WINT)
    a('s_branch prep_tr3')
    a.label('prep_tr2')
    a(f'''
    s_sub_u32 s16, s16, 540
    s_mov_b32 s17, 429496730
    s_mul_hi_u32 s18, s16, s17
    s_mul_i32 s19, s18, 10
    s_sub_u32 s19, s16, s19
    s_mov_b32 s20, 864
    s_mov_b32 s21, 640
    ''')
    a.srd(24, 12, 1105920)
    a.srd(28, 14, 1105920, WOUTT)
    a.label('prep_tr3')
    a('''
    s_lshl_b32 s22, s18, 5
    s_lshl_b32 s23, s19, 6
    v_add_u32 v3, s22, v1
    v_mul_lo_u32 v3, v3, s21
    v_lshlrev_b32 v4, 3, v2
    v_add_u32 v3, v3, v4
    v_add_u32 v3, s23, v3
    v_lshlrev_b32 v3, 1, v3
    buffer_load_dwordx4 v[8:11], v3, s[24:27], 0 offen
    v_mul_u32_u24 v44, 640, v2
    v_lshlrev_b32 v45, 1, v1
    v_add_u32 v44, v44, v45
    s_waitcnt vmcnt(0)
    ''')
    for e in range(8):
        if e % 2 == 0:
            a(f'ds_write_b16 v44, v{8+e//2} offset:{80*e}')
        else:
            a(f'ds_write_b16_d16_hi v44, v{8+e//2} offset:{80*e}')
    a('''
    s_waitcnt lgkmcnt(0)
    s_barrier
    v_lshrrev_b32 v45, 2, v0
    v_and_b32 v46, 3, v0
    v_mul_u32_u24 v47, 80, v45
    v_lshlrev_b32 v48, 4, v46
    v_add_u32 v47, v47, v48
    ds_read_b128 v[8:11], v47
    v_add_u32 v45, s23, v45
    v_mul_lo_u32 v45, v45, s20
    v_add_u32 v45, s22, v45
    v_lshlrev_b32 v45, 1, v45
    v_add_u32 v45, v45, v48
    s_waitcnt lgkmcnt(0)
    buffer_store_dwordx4 v[8:11], v45, s[28:31], 0 offen
    ''')
    a.label('prep_done')
    a('s_endpgm')
    a.kernels.append((k, 64, 48, 64))

HP = 4256
KVL = 8 * HP
def gen_conv():
    k = 'conv_kernel'
    a.begin(k)
    a(f'''
    s_cmp_ge_u32 s2, 640
    s_cbranch_scc1 conv_done
    s_load_dwordx2 s[4:5], s[0:1], {A_SSMK}
    s_load_dwordx2 s[6:7], s[0:1], {A_D}
    s_load_dwordx2 s[14:15], s[0:1], {WS}
    s_lshl_b32 s16, s2, 12
    s_waitcnt lgkmcnt(0)
    s_add_u32 s4, s4, s16
    s_addc_u32 s5, s5, 0
    s_add_u32 s8, s14, s16
    s_addc_u32 s9, s15, 0
    ''')
    a.srd(24, 4, 4096)
    a.srd(28, 8, 4096, KVR)
    a.srd(32, 8, 4096, YYT)
    a.srd(36, 6, 1280)
    def fill(ci_reg):
        a(f'''
        v_lshlrev_b32 v3, 4, v{ci_reg}
        v_subrev_u32 v4, 128, v3
        v_subrev_u32 v5, 112, v3
        buffer_load_dwordx4 v[8:11], v4, s[24:27], 0 offen
        buffer_load_dwordx4 v[12:15], v5, s[24:27], 0 offen
        s_waitcnt vmcnt(0)
        ''')
        for c in range(8):
            if c % 2 == 0:
                j = c // 2
                if j == 0:
                    a(f'ds_write_b128 v3, v[8:11] offset:{c*HP}')
                else:
                    for i in range(4):
                        a(f'v_mov_b32 v{16+i}, v{8+j+i}')
                    a(f'ds_write_b128 v3, v[16:19] offset:{c*HP}')
            else:
                j = (c - 1) // 2
                base = 20 if (c % 4 == 1) else 24
                for i in range(4):
                    a(f'v_alignbit_b32 v{base+i}, v{8+j+i+1}, v{8+j+i}, 16')
                a(f'ds_write_b128 v3, v[{base}:{base+3}] offset:{c*HP}')
    fill(0)
    a('''
    v_add_u32 v2, 256, v0
    v_cmp_gt_u32 vcc, 265, v2
    s_and_saveexec_b64 s[40:41], vcc
    s_cbranch_execz conv_f2
    ''')
    fill(2)
    a.label('conv_f2')
    a('s_mov_b64 exec, s[40:41]')
    a(f'''
    v_lshlrev_b32 v3, 4, v0
    buffer_load_dwordx4 v[8:11], v3, s[28:31], 0 offen
    s_lshl_b32 s17, s2, 1
    v_mov_b32 v4, s17
    buffer_load_ushort v30, v4, s[36:39], 0 offen
    v_mov_b32 v12, 0
    v_mov_b32 v13, 0
    v_mov_b32 v14, 0
    v_mov_b32 v15, 0
    ds_write_b128 v3, v[12:15] offset:{KVL+4096}
    s_waitcnt vmcnt(0)
    ds_write_b128 v3, v[8:11] offset:{KVL}
    v_lshlrev_b32 v30, 16, v30
    ''')
    a('''
    v_lshrrev_b32 v1, 6, v0
    v_and_b32 v2, 63, v0
    v_and_b32 v3, 31, v2
    v_lshrrev_b32 v4, 5, v2
    ''')
    for r in range(2):
        a(f'''
        v_lshlrev_b32 v5, 1, v3
        v_add_u32 v5, {r+1}, v5
        v_and_b32 v6, 7, v5
        v_mul_u32_u24 v6, {HP}, v6
        v_and_b32 v5, 0x78, v5
        v_lshlrev_b32 v7, 9, v1
        v_add_u32 v5, v5, v7
        v_lshlrev_b32 v7, 3, v4
        v_add_u32 v5, v5, v7
        v_lshlrev_b32 v5, 1, v5
        v_add_u32 v{32+r}, v5, v6
        ''')
    a(f'''
    v_lshlrev_b32 v5, 6, v3
    v_sub_u32 v5, 1984, v5
    v_lshlrev_b32 v7, 9, v1
    v_add_u32 v5, v5, v7
    v_lshlrev_b32 v7, 3, v4
    v_add_u32 v5, v5, v7
    v_lshlrev_b32 v5, 1, v5
    v_add_u32 v34, {KVL}, v5
    ''')
    for i in range(32):
        a(f'v_mov_b32 v{64+i}, 0')
    a('''
    s_waitcnt lgkmcnt(0)
    s_barrier
    ''')
    def rd(step, s):
        b = 40 + 12*s
        a(f'''
        ds_read_b128 v[{b}:{b+3}], v32 offset:{32*step}
        ds_read_b128 v[{b+4}:{b+7}], v33 offset:{32*step}
        ds_read_b128 v[{b+8}:{b+11}], v34 offset:{32*step}
        ''')
    rd(0, 0)
    for step in range(32):
        s = step & 1
        if step + 1 < 32:
            rd(step + 1, s ^ 1)
            a('s_waitcnt lgkmcnt(3)')
        else:
            a('s_waitcnt lgkmcnt(0)')
        b = 40 + 12*s
        a(f'''
        v_mfma_f32_32x32x16_bf16 v[64:79], v[{b}:{b+3}], v[{b+8}:{b+11}], v[64:79]
        v_mfma_f32_32x32x16_bf16 v[80:95], v[{b+4}:{b+7}], v[{b+8}:{b+11}], v[80:95]
        ''')
    a('''
    s_barrier
    s_nop 7
    s_nop 7
    v_lshlrev_b32 v5, 13, v1
    v_lshlrev_b32 v6, 2, v2
    v_add_u32 v5, v5, v6
    ''')
    for r in range(2):
        for j in range(16):
            a(f'ds_write_b32 v5, v{64+16*r+j} offset:{r*4096+j*256}')
    a(f'''
    v_and_b32 v5, 7, v0
    v_lshrrev_b32 v5, 1, v5
    v_lshlrev_b32 v5, 10, v5
    v_lshrrev_b32 v6, 3, v0
    v_and_b32 v7, 1, v0
    v_lshlrev_b32 v7, 5, v7
    v_add_u32 v6, v6, v7
    v_lshlrev_b32 v6, 2, v6
    v_add_u32 v5, v5, v6
    v_lshlrev_b32 v6, 4, v0
    v_sub_u32 v6, {KVL + 4080}, v6
    s_waitcnt lgkmcnt(0)
    s_barrier
    ds_read_b128 v[8:11], v6
    ''')
    for e in range(8):
        for w in range(4):
            a(f'ds_read_b32 v{40+4*e+w}, v5 offset:{w*8192 + (e&1)*4096 + (e>>1)*256}')
    a('s_waitcnt lgkmcnt(0)')
    for e in range(8):
        b = 40 + 4*e
        a(f'''
        v_add_f32 v{b}, v{b}, v{b+1}
        v_add_f32 v{b+2}, v{b+2}, v{b+3}
        v_add_f32 v{b}, v{b}, v{b+2}
        ''')
    for e in range(0, 8, 2):
        b0, b1 = 40 + 4*e, 40 + 4*(e+1)
        a.rnd2(b0, b1, 12)
        p0, p1 = 7 - e, 7 - (e+1)
        a(f'''
        v_and_b32 v13, 0xffff0000, v{8 + p0//2}
        v_lshlrev_b32 v14, 16, v{8 + p1//2}
        v_mul_f32 v13, v13, v30
        v_mul_f32 v14, v14, v30
        ''')
        a.rnd2(13, 14, 12)
        a(f'''
        v_add_f32 v13, v13, v{b0}
        v_add_f32 v14, v14, v{b1}
        v_cvt_pk_bf16_f32 v{16+e//2}, v13, v14
        ''')
    a('''
    v_lshlrev_b32 v3, 4, v0
    buffer_store_dwordx4 v[16:19], v3, s[32:35], 0 offen
    ''')
    a.label('conv_done')
    a('s_endpgm')
    a.kernels.append((k, 96, 48, 96))

def ln_rows(vals, n_elems, outs, tmp, neps_s):
    t0, t1, t2, t3 = tmp, tmp+1, tmp+2, tmp+3
    a(f'v_mov_b32 v{t0}, v{vals[0]}')
    for v in vals[1:]:
        a(f'v_add_f32 v{t0}, v{t0}, v{v}')
    a.wave_sum(t0, t1, 50)
    a(f'''
    v_mov_b32 v{t0}, {1.0/n_elems!r}
    v_mul_f32 v{t2}, s50, v{t0}
    ''')
    a(f'v_sub_f32 v{t1}, v{vals[0]}, v{t2}')
    a(f'v_mul_f32 v{t0}, v{t1}, v{t1}')
    for v in vals[1:]:
        a(f'v_sub_f32 v{t1}, v{v}, v{t2}')
        a(f'v_fmac_f32 v{t0}, v{t1}, v{t1}')
    a.wave_sum(t0, t1, 51)
    a(f'''
    v_mov_b32 v{t0}, {1.0/n_elems!r}
    v_mul_f32 v{t3}, s51, v{t0}
    ''')
    a.rnd2(t2, t3, t0)
    a(f'''
    v_add_f32 v{t3}, 0x3727c5ac, v{t3}
    v_cvt_pk_bf16_f32 v{t0}, v{t3}, v{t3}
    v_lshlrev_b32 v{t3}, 16, v{t0}
    v_sqrt_f32 v{t3}, v{t3}
    s_nop 0
    v_cvt_pk_bf16_f32 v{t0}, v{t3}, v{t3}
    v_lshlrev_b32 v{t3}, 16, v{t0}
    v_rcp_f32 v{t1}, v{t3}
    s_nop 0
    ''')
    a(f'''
    v_fma_f32 v{t0}, -v{t3}, v{t1}, 2.0
    v_mul_f32 v{t1}, v{t1}, v{t0}
    ''')
    for i in range(0, len(vals), 2):
        o0, o1 = outs[i], outs[i+1]
        a(f'''
        v_sub_f32 v{o0}, v{vals[i]}, v{t2}
        v_sub_f32 v{o1}, v{vals[i+1]}, v{t2}
        ''')
        a.rnd2(o0, o1, t0)
        a(f'''
        v_mul_f32 v{tmp+4}, v{o0}, v{t1}
        v_mul_f32 v{tmp+5}, v{o1}, v{t1}
        v_fma_f32 v{t0}, -v{tmp+4}, v{t3}, v{o0}
        v_fma_f32 v{o0}, v{t0}, v{t1}, v{tmp+4}
        v_fma_f32 v{t0}, -v{tmp+5}, v{t3}, v{o1}
        v_fma_f32 v{o1}, v{t0}, v{t1}, v{tmp+5}
        ''')
        a.rnd2(o0, o1, t0)

def gen_row(k, xin_arg, xin_off, xout_off):
    a.begin(k)
    done = k + '_done'
    a(f'''
    s_cmp_ge_u32 s2, 256
    s_cbranch_scc1 {done}
    s_load_dwordx2 s[4:5], s[0:1], {xin_arg}
    s_load_dwordx2 s[14:15], s[0:1], {WS}
    s_waitcnt lgkmcnt(0)
    ''')
    a.srd(24, 4, 2621440, xin_off)
    a.srd(28, 14, 2621440, YYT)
    a.srd(32, 14, 2621440, xout_off)
    a.srd(36, 14, 2621440, HH)
    a('''
    s_lshl_b32 s16, s2, 4
    v_lshlrev_b32 v3, 12, v0
    v_add_u32 v3, s16, v3
    v_add_u32 v4, 0x100000, v3
    v_add_u32 v5, 0x200000, v3
    buffer_load_dwordx4 v[8:11], v3, s[28:31], 0 offen
    buffer_load_dwordx4 v[12:15], v4, s[28:31], 0 offen
    buffer_load_dwordx4 v[16:19], v5, s[28:31], 0 offen
    v_lshlrev_b32 v6, 4, v0
    s_waitcnt vmcnt(0)
    ds_write_b128 v6, v[8:11]
    ds_write_b128 v6, v[12:15] offset:4096
    ds_write_b128 v6, v[16:19] offset:8192
    s_waitcnt lgkmcnt(0)
    s_barrier
    v_lshrrev_b32 v1, 6, v0
    v_and_b32 v2, 63, v0
    ''')
    for rr in range(2):
        a(f'''
        s_lshl_b32 s17, s2, 3
        s_add_u32 s17, s17, {rr}
        v_lshlrev_b32 v3, 1, v1
        v_add_u32 v3, s17, v3
        v_mul_u32_u24 v3, 1280, v3
        v_lshlrev_b32 v4, 2, v2
        v_add_u32 v3, v3, v4
        ''')
        for j in range(5):
            a(f'buffer_load_dword v{8+j}, v3, s[24:27], 0 offen offset:{256*j}')
        a(f'''
        v_lshlrev_b32 v4, 5, v2
        v_lshlrev_b32 v5, 2, v1
        v_add_u32 v4, v4, v5
        ''')
        for j in range(5):
            a(f'ds_read_u16 v{40+2*j}, v4 offset:{2048*j + 2*rr}')
            a(f'ds_read_u16 v{41+2*j}, v4 offset:{2048*j + 16 + 2*rr}')
        a('s_waitcnt vmcnt(0) lgkmcnt(0)')
        xs = list(range(16, 26))
        for j in range(5):
            a.unpack(16+2*j, 17+2*j, 8+j)
        for j in range(10):
            a(f'v_lshlrev_b32 v{40+j}, 16, v{40+j}')
        qs = list(range(28, 38))
        ln_rows(xs, 640, qs, 56, None)
        for i in range(0, 10, 2):
            a(f'''
            v_mul_f32 v{qs[i]}, v{qs[i]}, v{40+i}
            v_mul_f32 v{qs[i+1]}, v{qs[i+1]}, v{41+i}
            ''')
            a.rnd2(qs[i], qs[i+1], 56)
            a(f'''
            v_add_f32 v{xs[i]}, v{xs[i]}, v{qs[i]}
            v_add_f32 v{xs[i+1]}, v{xs[i+1]}, v{qs[i+1]}
            ''')
            a.rnd2(xs[i], xs[i+1], 56)
            a(f'buffer_store_dword v56, v3, s[32:35], 0 offen offset:{256*(i//2)}')
            a('s_nop 1')
        ln_rows(xs, 640, qs, 56, None)
        for i in range(0, 10, 2):
            a(f'v_cvt_pk_bf16_f32 v{8+i//2}, v{qs[i]}, v{qs[i+1]}')
            a(f'buffer_store_dword v{8+i//2}, v3, s[36:39], 0 offen offset:{256*(i//2)}')
        a('s_waitcnt vmcnt(0)')
    a.label(done)
    a('s_endpgm')
    a.kernels.append((k, 64, 56, 64))

def gen_lnz():
    k = 'lnz_kernel'
    a.begin(k)
    a(f'''
    s_cmp_ge_u32 s2, 256
    s_cbranch_scc1 lnz_done
    s_load_dwordx2 s[14:15], s[0:1], {WS}
    s_waitcnt lgkmcnt(0)
    ''')
    a.srd(24, 14, 7077888, ZZ)
    a.srd(28, 14, 3538944, Z2T)
    a('''
    v_lshrrev_b32 v1, 6, v0
    v_and_b32 v2, 63, v0
    ''')
    for rr in range(2):
        a(f'''
        s_lshl_b32 s17, s2, 3
        s_add_u32 s17, s17, {rr}
        v_lshlrev_b32 v3, 1, v1
        v_add_u32 v3, s17, v3
        v_mul_u32_u24 v3, 3456, v3
        v_lshlrev_b32 v4, 2, v2
        v_add_u32 v3, v3, v4
        v_mov_b32 v14, 0
        ''')
        for j in range(6):
            a(f'buffer_load_dword v{8+j}, v3, s[24:27], 0 offen offset:{1728 + 256*j}')
        a(f'''
        v_cmp_gt_u32 vcc, 48, v2
        s_and_saveexec_b64 s[40:41], vcc
        buffer_load_dword v14, v3, s[24:27], 0 offen offset:{1728 + 256*6}
        s_mov_b64 exec, s[40:41]
        s_waitcnt vmcnt(0)
        ''')
        xs = list(range(16, 30))
        for j in range(7):
            a.unpack(16+2*j, 17+2*j, 8+j)
        t0, t1, t2, t3 = 56, 57, 58, 59
        a(f'v_mov_b32 v{t0}, v16')
        for v in xs[1:]:
            a(f'v_add_f32 v{t0}, v{t0}, v{v}')
        a.wave_sum(t0, t1, 50)
        a(f'''
        v_mov_b32 v{t0}, {1.0/864!r}
        v_mul_f32 v{t2}, s50, v{t0}
        v_mov_b32 v{t0}, 0
        ''')
        for v in xs[:12]:
            a(f'v_sub_f32 v{t1}, v{v}, v{t2}')
            a(f'v_fmac_f32 v{t0}, v{t1}, v{t1}')
        a(f'''
        v_cmp_gt_u32 vcc, 48, v2
        v_sub_f32 v{t1}, v28, v{t2}
        v_mul_f32 v{t1}, v{t1}, v{t1}
        v_sub_f32 v{t3}, v29, v{t2}
        v_fmac_f32 v{t1}, v{t3}, v{t3}
        v_cndmask_b32 v{t1}, 0, v{t1}, vcc
        v_add_f32 v{t0}, v{t0}, v{t1}
        ''')
        a.wave_sum(t0, t1, 51)
        a(f'''
        v_mov_b32 v{t0}, {1.0/864!r}
        v_mul_f32 v{t3}, s51, v{t0}
        ''')
        a.rnd2(t2, t3, t0)
        a(f'''
        v_add_f32 v{t3}, 0x3727c5ac, v{t3}
        v_cvt_pk_bf16_f32 v{t0}, v{t3}, v{t3}
        v_lshlrev_b32 v{t3}, 16, v{t0}
        v_sqrt_f32 v{t3}, v{t3}
        s_nop 0
        v_cvt_pk_bf16_f32 v{t0}, v{t3}, v{t3}
        v_lshlrev_b32 v{t3}, 16, v{t0}
        v_rcp_f32 v{t1}, v{t3}
        s_nop 0
        v_fma_f32 v{t0}, -v{t3}, v{t1}, 2.0
        v_mul_f32 v{t1}, v{t1}, v{t0}
        ''')
        a(f'''
        v_lshlrev_b32 v4, 5, v2
        v_lshlrev_b32 v5, 2, v1
        v_add_u32 v4, v4, v5
        ''')
        for j in range(7):
            o0, o1 = 40, 41
            a(f'''
            v_sub_f32 v{o0}, v{xs[2*j]}, v{t2}
            v_sub_f32 v{o1}, v{xs[2*j+1]}, v{t2}
            ''')
            a.rnd2(o0, o1, t0)
            a(f'''
            v_mul_f32 v60, v{o0}, v{t1}
            v_mul_f32 v61, v{o1}, v{t1}
            v_fma_f32 v{t0}, -v60, v{t3}, v{o0}
            v_fma_f32 v{o0}, v{t0}, v{t1}, v60
            v_fma_f32 v{t0}, -v61, v{t3}, v{o1}
            v_fma_f32 v{o1}, v{t0}, v{t1}, v61
            v_cvt_pk_bf16_f32 v{42+j}, v{o0}, v{o1}
            ds_write_b16 v4, v{42+j} offset:{2048*j + 2*rr}
            ds_write_b16_d16_hi v4, v{42+j} offset:{2048*j + 16 + 2*rr}
            ''')
    a('''
    s_waitcnt lgkmcnt(0)
    s_barrier
    v_lshlrev_b32 v4, 4, v0
    ds_read_b128 v[8:11], v4
    ds_read_b128 v[12:15], v4 offset:4096
    ds_read_b128 v[16:19], v4 offset:8192
    ds_read_b128 v[20:23], v4 offset:12288
    s_lshl_b32 s16, s2, 4
    v_lshlrev_b32 v3, 12, v0
    v_add_u32 v3, s16, v3
    v_add_u32 v5, 0x100000, v3
    v_add_u32 v6, 0x200000, v3
    v_add_u32 v7, 0x300000, v3
    s_waitcnt lgkmcnt(0)
    buffer_store_dwordx4 v[8:11], v3, s[28:31], 0 offen
    buffer_store_dwordx4 v[12:15], v5, s[28:31], 0 offen
    buffer_store_dwordx4 v[16:19], v6, s[28:31], 0 offen
    buffer_store_dwordx4 v[20:23], v7, s[28:31], 0 offen
    ''')
    a.label('lnz_done')
    a('s_endpgm')
    a.kernels.append((k, 64, 56, 64))

def gen_gemm(k, WM, WN, BK, K, M, N, A_src, B_src, epi):
    BM, BN = 2*WM, 2*WN
    TM, TN = WM//32, WN//32
    nmt, nnt = M//BM, -(-N//BN)
    rowb = BK*2
    nch = rowb//16
    rsh = {64: 2, 128: 1}[rowb]
    nsteps = K//BK
    Abytes, Bbytes = BM*rowb, BN*rowb
    stage = Abytes + Bbytes
    nla, nlb = Abytes//4096, Bbytes//4096
    assert nla >= 1 and nlb >= 1
    done = k + '_done'
    a.begin(k)
    a(f'''
    s_cmp_ge_u32 s2, {nmt*nnt}
    s_cbranch_scc1 {done}
    s_load_dwordx2 s[4:5], s[0:1], {A_src[0]}
    s_load_dwordx2 s[6:7], s[0:1], {B_src[0]}
    s_load_dwordx2 s[14:15], s[0:1], {WS}
    s_load_dwordx2 s[10:11], s[0:1], {B_BSP}
    s_load_dwordx2 s[12:13], s[0:1], {OUT}
    s_and_b32 s16, s2, {nmt-1}
    s_lshr_b32 s17, s2, {nmt.bit_length()-1}
    s_mul_i32 s18, s16, {BM}
    s_mul_i32 s19, s17, {BN}
    s_waitcnt lgkmcnt(0)
    ''')
    a.srd(24, 4, M*K*2, A_src[1])
    a.srd(28, 6, N*K*2, B_src[1])
    lsh = nch.bit_length()-1
    a(f'''
    v_lshrrev_b32 v1, {lsh}, v0
    v_and_b32 v2, {nch-1}, v0
    ''')
    rows_per = 256 // nch
    for i in range(max(nla, nlb)):
        a(f'v_add_u32 v3, {rows_per*i}, v1')
        a(f'''
        v_lshrrev_b32 v20, {rsh}, v3
        v_and_b32 v20, {nch-1}, v20
        v_xor_b32 v20, v20, v2
        v_lshlrev_b32 v20, 4, v20
        v_mul_u32_u24 v21, {rowb}, v3
        v_add_u32 v20, v20, v21
        ''')
        if i < nla:
            a(f'''
            v_mov_b32 v{12+i}, v20
            v_add_u32 v21, s18, v3
            v_mul_u32_u24 v21, {K*2}, v21
            v_lshlrev_b32 v22, 4, v2
            v_add_u32 v{4+i}, v21, v22
            ''')
        if i < nlb:
            a(f'''
            v_add_u32 v{16+i}, {Abytes}, v20
            v_add_u32 v21, s19, v3
            v_mul_u32_u24 v21, {K*2}, v21
            v_lshlrev_b32 v22, 4, v2
            v_add_u32 v{8+i}, v21, v22
            ''')
    a('''
    v_lshrrev_b32 v1, 6, v0
    v_and_b32 v2, 63, v0
    v_and_b32 v3, 31, v2
    v_lshrrev_b32 v20, 5, v2
    v_and_b32 v21, 1, v1
    v_lshrrev_b32 v22, 1, v1
    ''')
    nkk = BK//16
    AR, BR = 24, 24 + nkk
    for kk in range(nkk):
        for (isB, wsel, W, R) in ((0, 21, WM, AR), (1, 22, WN, BR)):
            a(f'''
            v_mul_u32_u24 v23, {W}, v{wsel}
            v_add_u32 v23, v23, v3
            v_lshrrev_b32 v{R+kk}, {rsh}, v23
            v_and_b32 v{R+kk}, {nch-1}, v{R+kk}
            v_xor_b32 v{R+kk}, {2*kk}, v{R+kk}
            v_xor_b32 v{R+kk}, v{R+kk}, v20
            v_lshlrev_b32 v{R+kk}, 4, v{R+kk}
            v_mul_u32_u24 v23, {rowb}, v23
            v_add_u32 v{R+kk}, v{R+kk}, v23
            ''')
            if isB:
                a(f'v_add_u32 v{R+kk}, {Abytes}, v{R+kk}')
    ST = 32
    FA = 64
    FB = FA + 4*TM*2
    ACC = 96
    nacc = TM*TN*16
    assert FB + 4*TN*2 <= ACC
    for i in range(nacc):
        a(f'v_mov_b32 v{ACC+i}, 0')
    def gload(step):
        for i in range(nla):
            a(f'buffer_load_dwordx4 v[{ST+4*i}:{ST+4*i+3}], v{4+i}, s[24:27], s20 offen')
        for i in range(nlb):
            j = nla + i
            a(f'buffer_load_dwordx4 v[{ST+4*j}:{ST+4*j+3}], v{8+i}, s[28:31], s20 offen')
    def lwrite(buf):
        for i in range(nla):
            a(f'ds_write_b128 v{12+i}, v[{ST+4*i}:{ST+4*i+3}] offset:{buf*stage}')
        for i in range(nlb):
            j = nla + i
            a(f'ds_write_b128 v{16+i}, v[{ST+4*j}:{ST+4*j+3}] offset:{buf*stage}')
    def compute(buf):
        def rd(kk, s):
            for i in range(TM):
                f = FA + 4*(s*TM + i)
                a(f'ds_read_b128 v[{f}:{f+3}], v{AR+kk} offset:{buf*stage + i*32*rowb}')
            for i in range(TN):
                f = FB + 4*(s*TN + i)
                a(f'ds_read_b128 v[{f}:{f+3}], v{BR+kk} offset:{buf*stage + i*32*rowb}')
        rd(0, 0)
        for kk in range(nkk):
            s = kk & 1
            if kk + 1 < nkk:
                rd(kk+1, s ^ 1)
                a(f's_waitcnt lgkmcnt({TM+TN})')
            else:
                a('s_waitcnt lgkmcnt(0)')
            for i in range(TM):
                for j in range(TN):
                    fa = FA + 4*(s*TM + i)
                    fb = FB + 4*(s*TN + j)
                    c = ACC + 16*(i*TN + j)
                    a(f'v_mfma_f32_32x32x16_bf16 v[{c}:{c+15}], v[{fb}:{fb+3}], v[{fa}:{fa+3}], v[{c}:{c+15}]')
    a('s_mov_b32 s20, 0')
    gload(0)
    a('s_waitcnt vmcnt(0)')
    lwrite(0)
    a(f's_mov_b32 s20, {rowb}')
    gload(1)
    a('''
    s_waitcnt lgkmcnt(0)
    s_barrier
    ''')
    loop = a.newlabel('gl')
    npairs = (nsteps - 2) // 2 if nsteps >= 2 else 0
    a(f's_mov_b32 s21, 0')
    if npairs > 0:
        a.label(loop)
        for b in range(2):
            compute(b)
            a('s_waitcnt vmcnt(0)')
            lwrite(b ^ 1)
            a(f's_add_u32 s20, s20, {rowb}')
            gload(0)
            a('''
            s_waitcnt lgkmcnt(0)
            s_barrier
            ''')
        a(f'''
        s_add_u32 s21, s21, 1
        s_cmp_lt_u32 s21, {npairs}
        s_cbranch_scc1 {loop}
        ''')
    s0 = 2*npairs
    for s in range(s0, nsteps):
        b = s & 1
        compute(b)
        if s + 1 < nsteps:
            a('s_waitcnt vmcnt(0)')
            lwrite(b ^ 1)
            if s + 2 < nsteps:
                a(f's_add_u32 s20, s20, {rowb}')
                gload(0)
            a('''
            s_waitcnt lgkmcnt(0)
            s_barrier
            ''')
    a('''
    s_nop 7
    s_nop 7
    ''')
    a(f'''
    v_mul_u32_u24 v4, {WM}, v21
    v_add_u32 v4, v4, v3
    v_add_u32 v4, s18, v4
    v_mul_u32_u24 v5, {WN}, v22
    v_lshlrev_b32 v6, 2, v20
    v_add_u32 v5, v5, v6
    v_add_u32 v5, s19, v5
    ''')
    epi(TM, TN, ACC)
    a.label(done)
    a('s_endpgm')
    lds = 2*stage
    a.kernels.append((k, ACC + nacc, 56, ACC + nacc))
    return nmt*nnt, lds

def gelu_regs(x, t0, t1):
    a(f'''
    v_mul_f32 v{t0}, v{x}, v{x}
    v_mul_f32 v{t0}, v{t0}, v{x}
    v_fma_f32 v{t0}, v{t0}, s46, v{x}
    v_mul_f32 v{t0}, s47, v{t0}
    v_exp_f32 v{t0}, v{t0}
    s_nop 0
    v_add_f32 v{t0}, 1.0, v{t0}
    v_rcp_f32 v{t0}, v{t0}
    s_nop 0
    v_fma_f32 v{t0}, v{t0}, -2.0, 2.0
    v_mul_f32 v{t1}, 0.5, v{x}
    v_mul_f32 v{x}, v{t1}, v{t0}
    ''')

def epi_gemm1(TM, TN, ACC):
    a.srd(32, 14, 7077888, ZZ)
    a('''
    s_mov_b32 s46, 0x3d372713
    s_mov_b32 s47, 0x40135761
    ''')
    for i in range(TM):
        a(f'''
        v_add_u32 v6, {32*i}, v4
        v_mul_u32_u24 v6, 3456, v6
        ''')
        for j in range(TN):
            for q in range(4):
                c = ACC + 16*(i*TN+j) + 4*q
                a.rnd2(c, c+1, 8)
                a.rnd2(c+2, c+3, 8)
                for e in range(4):
                    gelu_regs(c+e, 8, 9)
                a(f'''
                v_cvt_pk_bf16_f32 v10, v{c}, v{c+1}
                v_cvt_pk_bf16_f32 v11, v{c+2}, v{c+3}
                v_add_u32 v7, {32*j+8*q}, v5
                v_cmp_gt_u32 vcc, 1728, v7
                v_lshl_add_u32 v7, v7, 1, v6
                s_and_saveexec_b64 s[40:41], vcc
                buffer_store_dwordx2 v[10:11], v7, s[32:35], 0 offen
                s_mov_b64 exec, s[40:41]
                s_nop 1
                ''')

def epi_gemm2(TM, TN, ACC):
    a.srd(32, 14, 7077888, ZZ)
    a.srd(36, 14, 3538944, UU)
    a.srd(44, 10, 4096)
    for i in range(TM):
        a(f'''
        v_add_u32 v6, {32*i}, v4
        v_lshlrev_b32 v7, 1, v6
        buffer_load_ushort v12, v7, s[44:47], 0 offen
        v_mul_u32_u24 v13, 3456, v6
        v_mul_u32_u24 v6, 1728, v6
        s_waitcnt vmcnt(0)
        v_lshlrev_b32 v12, 16, v12
        ''')
        for j in range(TN):
            for q in range(4):
                c = ACC + 16*(i*TN+j) + 4*q
                a(f'''
                v_add_u32 v7, {32*j+8*q}, v5
                v_cmp_gt_u32 vcc, 864, v7
                v_lshl_add_u32 v14, v7, 1, v13
                v_lshl_add_u32 v7, v7, 1, v6
                s_and_saveexec_b64 s[40:41], vcc
                buffer_load_dwordx2 v[16:17], v14, s[32:35], 0 offen
                ''')
                a.rnd2(c, c+1, 8)
                a.rnd2(c+2, c+3, 8)
                for e in range(4):
                    a(f'v_add_f32 v{c+e}, v{c+e}, v12')
                a.rnd2(c, c+1, 8)
                a.rnd2(c+2, c+3, 8)
                a('s_waitcnt vmcnt(0)')
                a.unpack(18, 19, 16)
                a.unpack(8, 9, 17)
                a(f'''
                v_mul_f32 v18, v18, v{c}
                v_mul_f32 v19, v19, v{c+1}
                v_mul_f32 v8, v8, v{c+2}
                v_mul_f32 v9, v9, v{c+3}
                v_cvt_pk_bf16_f32 v10, v18, v19
                v_cvt_pk_bf16_f32 v11, v8, v9
                buffer_store_dwordx2 v[10:11], v7, s[36:39], 0 offen
                s_mov_b64 exec, s[40:41]
                s_nop 1
                ''')

def make_epi_gemm3(xin_off, out_ws_off):
    def epi(TM, TN, ACC):
        a.srd(32, 14, 2621440, xin_off)
        if out_ws_off is None:
            a.srd(36, 12, 2621440)
        else:
            a.srd(36, 14, 2621440, out_ws_off)
        for i in range(TM):
            a(f'''
            v_add_u32 v6, {32*i}, v4
            v_mul_u32_u24 v6, 1280, v6
            ''')
            for j in range(TN):
                for q in range(4):
                    c = ACC + 16*(i*TN+j) + 4*q
                    a(f'''
                    v_add_u32 v7, {32*j+8*q}, v5
                    v_lshl_add_u32 v7, v7, 1, v6
                    buffer_load_dwordx2 v[16:17], v7, s[32:35], 0 offen
                    ''')
                    a.rnd2(c, c+1, 8)
                    a.rnd2(c+2, c+3, 8)
                    a('s_waitcnt vmcnt(0)')
                    a.unpack(18, 19, 16)
                    a.unpack(8, 9, 17)
                    a(f'''
                    v_add_f32 v18, v18, v{c}
                    v_add_f32 v19, v19, v{c+1}
                    v_add_f32 v8, v8, v{c+2}
                    v_add_f32 v9, v9, v{c+3}
                    v_cvt_pk_bf16_f32 v10, v18, v19
                    v_cvt_pk_bf16_f32 v11, v8, v9
                    buffer_store_dwordx2 v[10:11], v7, s[36:39], 0 offen
                    s_nop 1
                    ''')
    return epi

gen_prep()
gen_conv()
gen_row('rowa_kernel', A_Q, 0, X1)
gen_row('rowb_kernel', WS, X2, X3)
gen_lnz()
g1, l1 = gen_gemm('gemm1_kernel', 64, 64, 64, 640, 2048, 1728, (WS, HH), (WS, WINT), epi_gemm1)
g2, l2 = gen_gemm('gemm2_kernel', 64, 32, 64, 2048, 2048, 864, (B_WSP, 0), (WS, Z2T), epi_gemm2)
g3, l3 = gen_gemm('gemm3a_kernel', 32, 32, 32, 864, 2048, 640, (WS, UU), (WS, WOUTT), make_epi_gemm3(X1, X2))
g3, l3 = gen_gemm('gemm3b_kernel', 32, 32, 32, 864, 2048, 640, (WS, UU), (WS, WOUTT), make_epi_gemm3(X3, None))

launches = [
    ('prep_kernel', 1450, 5120),
    ('conv_kernel', 640, KVL + 8192),
    ('rowa_kernel', 256, 12288),
    ('gemm1_kernel', g1, l1),
    ('lnz_kernel', 256, 16384),
    ('gemm2_kernel', g2, l2),
    ('gemm3a_kernel', g3, l3),
    ('rowb_kernel', 256, 12288),
    ('gemm1_kernel', g1, l1),
    ('lnz_kernel', 256, 16384),
    ('gemm2_kernel', g2, l2),
    ('gemm3b_kernel', g3, l3),
]

ref = open('cdna_kernels/' + NAME + '.s.ref').read().split('\n')
head = [l for l in ref if l.startswith(';') and '@launch' not in l]
out = head[:]
for (k, g, lds) in launches:
    out.append(f'; @launch kernel={k} grid=({g},1,1) block=(256,1,1) lds={lds}')
out.append('.amdgcn_target "amdgcn-amd-amdhsa--gfx950"')
out.append('.text')
out += a.L
out.append('.section .rodata,"a"')
for (k, v, s, acc) in a.kernels:
    out.append('.p2align 6')
    out.append(f'.amdhsa_kernel {k}')
    out.append(f'  .amdhsa_next_free_vgpr {v}')
    out.append(f'  .amdhsa_next_free_sgpr {s}')
    out.append(f'  .amdhsa_accum_offset {((acc+3)//4)*4}')
    out.append('  .amdhsa_group_segment_fixed_size 0')
    out.append('  .amdhsa_kernarg_size 112')
    out.append('  .amdhsa_user_sgpr_count 2')
    out.append('  .amdhsa_user_sgpr_kernarg_segment_ptr 1')
    out.append('  .amdhsa_system_sgpr_workgroup_id_x 1')
    out.append('.end_amdhsa_kernel')
open('cdna_kernels/' + NAME + '.s', 'w').write('\n'.join(out) + '\n')
print('ok', len(out), 'lines', g1, l1, g2, l2, g3, l3)
```

```python
NAME = "interleave_layers__ssm_conv_h3__mixer_gmlp__prompt"

KVR = 0x0
YYT = 0x300000
WINT = 0x600000
WOUTT = 0x900000
X1 = 0xB00000
X2 = 0xE00000
X3 = 0x1100000
HH = 0x1400000
ZZ = 0x1700000
Z2T = 0x1E00000
UU = 0x2200000

A_Q, A_K, A_V, A_SK, A_SSMK, A_D, B_X, B_WIN, B_WSP, B_BSP, B_WOUT, OUT, DBG, WS = [8*i for i in range(14)]

class Asm:
    def __init__(self):
        self.L = []
        self.kernels = []
        self.launches = []
        self.uid = 0
    def __call__(self, s):
        for line in s.strip().split('\n'):
            self.L.append('    ' + line.strip())
    def label(self, l):
        self.L.append(l + ':')
    def newlabel(self, p='L'):
        self.uid += 1
        return f'{p}_{self.uid}'
    def begin(self, label):
        self.L.append('.globl ' + label)
        self.L.append('.p2align 8')
        self.L.append(f'.type {label},@function')
        self.label(label)
    def srd(self, d, p, nbytes, off=0):
        if off:
            self(f's_add_u32 s{d}, s{p}, {off}')
            self(f's_addc_u32 s{d+1}, s{p+1}, 0')
        else:
            self(f's_mov_b32 s{d}, s{p}')
            self(f's_mov_b32 s{d+1}, s{p+1}')
        self(f's_mov_b32 s{d+2}, {nbytes}')
        self(f's_mov_b32 s{d+3}, 0x00020000')
    def rnd2(self, a, b, t):
        self(f'v_cvt_pk_bf16_f32 v{t}, v{a}, v{b}')
        self(f'v_lshlrev_b32 v{a}, 16, v{t}')
        self(f'v_and_b32 v{b}, 0xffff0000, v{t}')
    def unpack(self, lo, hi, src):
        self(f'v_lshlrev_b32 v{lo}, 16, v{src}')
        self(f'v_and_b32 v{hi}, 0xffff0000, v{src}')
    def wave_sum(self, v, t, sdst):
        self('s_nop 1')
        self(f'v_add_f32_dpp v{t}, v{v}, v{v} quad_perm:[1,0,3,2] row_mask:0xf bank_mask:0xf')
        self('s_nop 1')
        self(f'v_add_f32_dpp v{v}, v{t}, v{t} quad_perm:[2,3,0,1] row_mask:0xf bank_mask:0xf')
        self('s_nop 1')
        self(f'v_add_f32_dpp v{t}, v{v}, v{v} row_half_mirror row_mask:0xf bank_mask:0xf')
        self('s_nop 1')
        self(f'v_add_f32_dpp v{v}, v{t}, v{t} row_mirror row_mask:0xf bank_mask:0xf')
        self('s_nop 0')
        self(f'v_readlane_b32 s52, v{v}, 16')
        self(f'v_readlane_b32 s53, v{v}, 32')
        self(f'v_readlane_b32 s54, v{v}, 48')
        self('s_nop 1')
        self(f'v_add_f32 v{v}, s52, v{v}')
        self(f'v_add_f32 v{v}, s53, v{v}')
        self(f'v_add_f32 v{v}, s54, v{v}')
        self('s_nop 0')
        self(f'v_readlane_b32 s{sdst}, v{v}, 0')
        self('s_nop 1')

a = Asm()

def gen_prep():
    k = 'prep_kernel'
    a.begin(k)
    a(f'''
    s_cmp_ge_u32 s2, 1460
    s_cbranch_scc1 prep_done
    s_load_dwordx2 s[4:5], s[0:1], {A_K}
    s_load_dwordx2 s[6:7], s[0:1], {A_V}
    s_load_dwordx2 s[8:9], s[0:1], {A_SK}
    s_load_dwordx2 s[10:11], s[0:1], {B_WIN}
    s_load_dwordx2 s[12:13], s[0:1], {B_WOUT}
    s_load_dwordx2 s[14:15], s[0:1], {WS}
    v_lshrrev_b32 v1, 3, v0
    v_and_b32 v2, 7, v0
    s_waitcnt lgkmcnt(0)
    s_cmp_ge_u32 s2, 640
    s_cbranch_scc1 prep_tr
    ''')
    a(f'''
    s_mov_b32 s16, 429496730
    s_mul_hi_u32 s17, s2, s16
    s_mul_i32 s18, s17, 10
    s_sub_u32 s18, s2, s18
    s_lshl_b32 s19, s17, 5
    s_lshl_b32 s20, s18, 6
    ''')
    a.srd(24, 4, 2621440)
    a.srd(28, 6, 2621440)
    a.srd(32, 8, 5120)
    a.srd(36, 14, 2621440, KVR)
    a(f'''
    v_add_u32 v3, s19, v1
    v_mul_u32_u24 v3, 1280, v3
    v_lshlrev_b32 v4, 4, v2
    v_add_u32 v3, v3, v4
    s_lshl_b32 s21, s20, 1
    v_add_u32 v3, s21, v3
    v_subrev_u32 v5, 1280, v3
    v_subrev_u32 v6, 2560, v3
    v_subrev_u32 v7, 3840, v3
    buffer_load_dwordx4 v[8:11], v3, s[24:27], 0 offen
    buffer_load_dwordx4 v[12:15], v5, s[24:27], 0 offen
    buffer_load_dwordx4 v[16:19], v6, s[24:27], 0 offen
    buffer_load_dwordx4 v[20:23], v7, s[24:27], 0 offen
    buffer_load_dwordx4 v[24:27], v3, s[28:31], 0 offen
    v_lshlrev_b32 v4, 6, v2
    s_lshl_b32 s21, s20, 3
    v_add_u32 v4, s21, v4
    buffer_load_dwordx4 v[28:31], v4, s[32:35], 0 offen
    buffer_load_dwordx4 v[32:35], v4, s[32:35], 0 offen offset:16
    buffer_load_dwordx4 v[36:39], v4, s[32:35], 0 offen offset:32
    buffer_load_dwordx4 v[40:43], v4, s[32:35], 0 offen offset:48
    ''')
    a('''
    v_mul_u32_u24 v44, 640, v2
    v_sub_u32 v45, 31, v1
    v_lshlrev_b32 v45, 1, v45
    v_add_u32 v44, v44, v45
    s_waitcnt vmcnt(0)
    ''')
    for e in range(8):
        w = e // 2
        def g(dst, base):
            if e % 2 == 0:
                a(f'v_lshlrev_b32 v{dst}, 16, v{base+w}')
            else:
                a(f'v_and_b32 v{dst}, 0xffff0000, v{base+w}')
        g(50, 8); g(51, 12); g(52, 16); g(53, 20); g(54, 24)
        a.unpack(55, 56, 28 + 2*e)
        a.unpack(57, 58, 29 + 2*e)
        a(f'''
        v_mul_f32 v60, v53, v58
        v_mul_f32 v61, v52, v57
        ''')
        a.rnd2(60, 61, 62)
        a(f'''
        v_add_f32 v60, v60, v61
        v_mul_f32 v61, v51, v56
        ''')
        a.rnd2(60, 61, 62)
        a(f'''
        v_add_f32 v60, v60, v61
        v_mul_f32 v61, v50, v55
        ''')
        a.rnd2(60, 61, 62)
        a(f'''
        v_add_f32 v60, v60, v61
        v_cvt_pk_bf16_f32 v62, v60, v60
        v_lshlrev_b32 v60, 16, v62
        v_mul_f32 v60, v60, v54
        v_cvt_pk_bf16_f32 v62, v60, v60
        ds_write_b16 v44, v62 offset:{80*e}
        ''')
    a(f'''
    s_waitcnt lgkmcnt(0)
    s_barrier
    v_lshrrev_b32 v45, 2, v0
    v_and_b32 v46, 3, v0
    v_mul_u32_u24 v47, 80, v45
    v_lshlrev_b32 v48, 4, v46
    v_add_u32 v47, v47, v48
    ds_read_b128 v[8:11], v47
    v_add_u32 v45, s20, v45
    v_lshlrev_b32 v45, 12, v45
    s_sub_u32 s21, 2016, s19
    s_lshl_b32 s21, s21, 1
    v_add_u32 v45, s21, v45
    v_add_u32 v45, v45, v48
    s_waitcnt lgkmcnt(0)
    buffer_store_dwordx4 v[8:11], v45, s[36:39], 0 offen
    s_branch prep_done
    ''')
    a.label('prep_tr')
    a('''
    s_sub_u32 s16, s2, 640
    s_cmp_ge_u32 s16, 540
    s_cbranch_scc1 prep_tr2
    ''')
    a(f'''
    s_mov_b32 s17, 159072863
    s_mul_hi_u32 s18, s16, s17
    s_mul_i32 s19, s18, 27
    s_sub_u32 s19, s16, s19
    s_mov_b32 s20, 640
    s_mov_b32 s21, 1728
    ''')
    a.srd(24, 10, 2211840)
    a.srd(28, 14, 2211840, WINT)
    a('s_branch prep_tr3')
    a.label('prep_tr2')
    a(f'''
    s_sub_u32 s16, s16, 540
    s_mov_b32 s17, 429496730
    s_mul_hi_u32 s18, s16, s17
    s_mul_i32 s19, s18, 10
    s_sub_u32 s19, s16, s19
    s_mov_b32 s20, 896
    s_mov_b32 s21, 640
    ''')
    a.srd(24, 12, 1105920)
    a.srd(28, 14, 1146880, WOUTT)
    a.label('prep_tr3')
    a('''
    s_lshl_b32 s22, s18, 5
    s_lshl_b32 s23, s19, 6
    v_add_u32 v3, s22, v1
    v_mul_lo_u32 v3, v3, s21
    v_lshlrev_b32 v4, 3, v2
    v_add_u32 v3, v3, v4
    v_add_u32 v3, s23, v3
    v_lshlrev_b32 v3, 1, v3
    buffer_load_dwordx4 v[8:11], v3, s[24:27], 0 offen
    v_mul_u32_u24 v44, 640, v2
    v_lshlrev_b32 v45, 1, v1
    v_add_u32 v44, v44, v45
    s_waitcnt vmcnt(0)
    ''')
    for e in range(8):
        if e % 2 == 0:
            a(f'ds_write_b16 v44, v{8+e//2} offset:{80*e}')
        else:
            a(f'ds_write_b16_d16_hi v44, v{8+e//2} offset:{80*e}')
    a('''
    s_waitcnt lgkmcnt(0)
    s_barrier
    v_lshrrev_b32 v45, 2, v0
    v_and_b32 v46, 3, v0
    v_mul_u32_u24 v47, 80, v45
    v_lshlrev_b32 v48, 4, v46
    v_add_u32 v47, v47, v48
    ds_read_b128 v[8:11], v47
    v_add_u32 v45, s23, v45
    v_mul_lo_u32 v45, v45, s20
    v_add_u32 v45, s22, v45
    v_lshlrev_b32 v45, 1, v45
    v_add_u32 v45, v45, v48
    s_waitcnt lgkmcnt(0)
    buffer_store_dwordx4 v[8:11], v45, s[28:31], 0 offen
    ''')
    a.label('prep_done')
    a('s_endpgm')
    a.kernels.append((k, 64, 48, 64))

HP = 4256
KVL = 8 * HP
def gen_conv():
    k = 'conv_kernel'
    a.begin(k)
    a(f'''
    s_cmp_ge_u32 s2, 640
    s_cbranch_scc1 conv_done
    s_load_dwordx2 s[4:5], s[0:1], {A_SSMK}
    s_load_dwordx2 s[6:7], s[0:1], {A_D}
    s_load_dwordx2 s[14:15], s[0:1], {WS}
    s_lshl_b32 s16, s2, 12
    s_waitcnt lgkmcnt(0)
    s_add_u32 s4, s4, s16
    s_addc_u32 s5, s5, 0
    s_add_u32 s8, s14, s16
    s_addc_u32 s9, s15, 0
    ''')
    a.srd(24, 4, 4096)
    a.srd(28, 8, 4096, KVR)
    a.srd(32, 8, 4096, YYT)
    a.srd(36, 6, 1280)
    def fill(ci_reg):
        a(f'''
        v_lshlrev_b32 v3, 4, v{ci_reg}
        v_subrev_u32 v4, 128, v3
        v_subrev_u32 v5, 112, v3
        buffer_load_dwordx4 v[8:11], v4, s[24:27], 0 offen
        buffer_load_dwordx4 v[12:15], v5, s[24:27], 0 offen
        s_waitcnt vmcnt(0)
        ''')
        for c in range(8):
            if c % 2 == 0:
                j = c // 2
                if j == 0:
                    a(f'ds_write_b128 v3, v[8:11] offset:{c*HP}')
                else:
                    for i in range(4):
                        a(f'v_mov_b32 v{16+i}, v{8+j+i}')
                    a(f'ds_write_b128 v3, v[16:19] offset:{c*HP}')
            else:
                j = (c - 1) // 2
                base = 20 if (c % 4 == 1) else 24
                for i in range(4):
                    a(f'v_alignbit_b32 v{base+i}, v{8+j+i+1}, v{8+j+i}, 16')
                a(f'ds_write_b128 v3, v[{base}:{base+3}] offset:{c*HP}')
    fill(0)
    a('''
    v_add_u32 v2, 256, v0
    v_cmp_gt_u32 vcc, 265, v2
    s_and_saveexec_b64 s[40:41], vcc
    s_cbranch_execz conv_f2
    ''')
    fill(2)
    a.label('conv_f2')
    a('s_mov_b64 exec, s[40:41]')
    a(f'''
    v_lshlrev_b32 v3, 4, v0
    buffer_load_dwordx4 v[8:11], v3, s[28:31], 0 offen
    s_lshl_b32 s17, s2, 1
    v_mov_b32 v4, s17
    buffer_load_ushort v30, v4, s[36:39], 0 offen
    v_mov_b32 v12, 0
    v_mov_b32 v13, 0
    v_mov_b32 v14, 0
    v_mov_b32 v15, 0
    v_lshrrev_b32 v5, 3, v0
    v_lshlrev_b32 v5, 4, v5
    v_add_u32 v3, v3, v5
    ds_write_b128 v3, v[12:15] offset:{KVL+4608}
    s_waitcnt vmcnt(0)
    ds_write_b128 v3, v[8:11] offset:{KVL}
    v_lshlrev_b32 v30, 16, v30
    ''')
    a('''
    v_lshrrev_b32 v1, 6, v0
    v_and_b32 v2, 63, v0
    v_and_b32 v3, 31, v2
    v_lshrrev_b32 v4, 5, v2
    ''')
    for r in range(2):
        a(f'''
        v_lshlrev_b32 v5, 1, v3
        v_add_u32 v5, {r+1}, v5
        v_and_b32 v6, 7, v5
        v_mul_u32_u24 v6, {HP}, v6
        v_and_b32 v5, 0x78, v5
        v_lshlrev_b32 v7, 9, v1
        v_add_u32 v5, v5, v7
        v_lshlrev_b32 v7, 3, v4
        v_add_u32 v5, v5, v7
        v_lshlrev_b32 v5, 1, v5
        v_add_u32 v{32+r}, v5, v6
        ''')
    a(f'''
    v_lshlrev_b32 v5, 6, v3
    v_sub_u32 v5, 1984, v5
    v_lshlrev_b32 v7, 9, v1
    v_add_u32 v5, v5, v7
    v_lshlrev_b32 v7, 3, v4
    v_add_u32 v5, v5, v7
    v_lshrrev_b32 v6, 6, v5
    v_lshlrev_b32 v6, 4, v6
    v_lshlrev_b32 v5, 1, v5
    v_add_u32 v5, v5, v6
    v_add_u32 v34, {KVL}, v5
    ''')
    for i in range(32):
        a(f'v_mov_b32 v{64+i}, 0')
    a('''
    s_waitcnt lgkmcnt(0)
    s_barrier
    ''')
    def rd(step, s):
        b = 40 + 12*s
        a(f'''
        ds_read_b128 v[{b}:{b+3}], v32 offset:{32*step}
        ds_read_b128 v[{b+4}:{b+7}], v33 offset:{32*step}
        ds_read_b128 v[{b+8}:{b+11}], v34 offset:{32*step + 16*(step>>2)}
        ''')
    rd(0, 0)
    for step in range(32):
        s = step & 1
        if step + 1 < 32:
            rd(step + 1, s ^ 1)
            a('s_waitcnt lgkmcnt(3)')
        else:
            a('s_waitcnt lgkmcnt(0)')
        b = 40 + 12*s
        a(f'''
        v_mfma_f32_32x32x16_bf16 v[64:79], v[{b}:{b+3}], v[{b+8}:{b+11}], v[64:79]
        v_mfma_f32_32x32x16_bf16 v[80:95], v[{b+4}:{b+7}], v[{b+8}:{b+11}], v[80:95]
        ''')
    a('''
    s_barrier
    s_nop 7
    s_nop 7
    v_lshlrev_b32 v5, 13, v1
    v_lshlrev_b32 v6, 2, v2
    v_add_u32 v5, v5, v6
    ''')
    for r in range(2):
        for j in range(16):
            a(f'ds_write_b32 v5, v{64+16*r+j} offset:{r*4096+j*256}')
    a(f'''
    v_and_b32 v5, 7, v0
    v_lshrrev_b32 v5, 1, v5
    v_lshlrev_b32 v5, 10, v5
    v_lshrrev_b32 v6, 3, v0
    v_and_b32 v7, 1, v0
    v_lshlrev_b32 v7, 5, v7
    v_add_u32 v6, v6, v7
    v_lshlrev_b32 v6, 2, v6
    v_add_u32 v5, v5, v6
    v_sub_u32 v6, 255, v0
    v_lshrrev_b32 v7, 3, v6
    v_add_u32 v6, v6, v7
    v_lshlrev_b32 v6, 4, v6
    v_add_u32 v6, {KVL}, v6
    s_waitcnt lgkmcnt(0)
    s_barrier
    ds_read_b128 v[8:11], v6
    ''')
    for e in range(8):
        for w in range(4):
            a(f'ds_read_b32 v{40+4*e+w}, v5 offset:{w*8192 + (e&1)*4096 + (e>>1)*256}')
    a('s_waitcnt lgkmcnt(0)')
    for e in range(8):
        b = 40 + 4*e
        a(f'''
        v_add_f32 v{b}, v{b}, v{b+1}
        v_add_f32 v{b+2}, v{b+2}, v{b+3}
        v_add_f32 v{b}, v{b}, v{b+2}
        ''')
    for e in range(0, 8, 2):
        b0, b1 = 40 + 4*e, 40 + 4*(e+1)
        a.rnd2(b0, b1, 12)
        p0, p1 = 7 - e, 7 - (e+1)
        a(f'''
        v_and_b32 v13, 0xffff0000, v{8 + p0//2}
        v_lshlrev_b32 v14, 16, v{8 + p1//2}
        v_mul_f32 v13, v13, v30
        v_mul_f32 v14, v14, v30
        ''')
        a.rnd2(13, 14, 12)
        a(f'''
        v_add_f32 v13, v13, v{b0}
        v_add_f32 v14, v14, v{b1}
        v_cvt_pk_bf16_f32 v{16+e//2}, v13, v14
        ''')
    a('''
    v_lshlrev_b32 v3, 4, v0
    buffer_store_dwordx4 v[16:19], v3, s[32:35], 0 offen
    ''')
    a.label('conv_done')
    a('s_endpgm')
    a.kernels.append((k, 96, 48, 96))

def ln_rows(vals, n_elems, outs, tmp, neps_s):
    t0, t1, t2, t3 = tmp, tmp+1, tmp+2, tmp+3
    a(f'v_mov_b32 v{t0}, v{vals[0]}')
    for v in vals[1:]:
        a(f'v_add_f32 v{t0}, v{t0}, v{v}')
    a.wave_sum(t0, t1, 50)
    a(f'''
    v_mov_b32 v{t0}, {1.0/n_elems!r}
    v_mul_f32 v{t2}, s50, v{t0}
    ''')
    a(f'v_sub_f32 v{t1}, v{vals[0]}, v{t2}')
    a(f'v_mul_f32 v{t0}, v{t1}, v{t1}')
    for v in vals[1:]:
        a(f'v_sub_f32 v{t1}, v{v}, v{t2}')
        a(f'v_fmac_f32 v{t0}, v{t1}, v{t1}')
    a.wave_sum(t0, t1, 51)
    a(f'''
    v_mov_b32 v{t0}, {1.0/n_elems!r}
    v_mul_f32 v{t3}, s51, v{t0}
    ''')
    a.rnd2(t2, t3, t0)
    a(f'''
    v_add_f32 v{t3}, 0x3727c5ac, v{t3}
    v_cvt_pk_bf16_f32 v{t0}, v{t3}, v{t3}
    v_lshlrev_b32 v{t3}, 16, v{t0}
    v_sqrt_f32 v{t3}, v{t3}
    s_nop 0
    v_cvt_pk_bf16_f32 v{t0}, v{t3}, v{t3}
    v_lshlrev_b32 v{t3}, 16, v{t0}
    v_rcp_f32 v{t1}, v{t3}
    s_nop 0
    ''')
    a(f'''
    v_fma_f32 v{t0}, -v{t3}, v{t1}, 2.0
    v_mul_f32 v{t1}, v{t1}, v{t0}
    ''')
    for i in range(0, len(vals), 2):
        o0, o1 = outs[i], outs[i+1]
        a(f'''
        v_sub_f32 v{o0}, v{vals[i]}, v{t2}
        v_sub_f32 v{o1}, v{vals[i+1]}, v{t2}
        ''')
        a.rnd2(o0, o1, t0)
        a(f'''
        v_mul_f32 v{tmp+4}, v{o0}, v{t1}
        v_mul_f32 v{tmp+5}, v{o1}, v{t1}
        v_fma_f32 v{t0}, -v{tmp+4}, v{t3}, v{o0}
        v_fma_f32 v{o0}, v{t0}, v{t1}, v{tmp+4}
        v_fma_f32 v{t0}, -v{tmp+5}, v{t3}, v{o1}
        v_fma_f32 v{o1}, v{t0}, v{t1}, v{tmp+5}
        ''')
        a.rnd2(o0, o1, t0)

def gen_row(k, xin_arg, xin_off, xout_off):
    a.begin(k)
    done = k + '_done'
    a(f'''
    s_cmp_ge_u32 s2, 256
    s_cbranch_scc1 {done}
    s_load_dwordx2 s[4:5], s[0:1], {xin_arg}
    s_load_dwordx2 s[14:15], s[0:1], {WS}
    s_waitcnt lgkmcnt(0)
    ''')
    a.srd(24, 4, 2621440, xin_off)
    a.srd(28, 14, 2621440, YYT)
    a.srd(32, 14, 2621440, xout_off)
    a.srd(36, 14, 2621440, HH)
    a('''
    s_lshl_b32 s16, s2, 4
    v_lshlrev_b32 v3, 12, v0
    v_add_u32 v3, s16, v3
    v_add_u32 v4, 0x100000, v3
    v_add_u32 v5, 0x200000, v3
    buffer_load_dwordx4 v[8:11], v3, s[28:31], 0 offen
    buffer_load_dwordx4 v[12:15], v4, s[28:31], 0 offen
    buffer_load_dwordx4 v[16:19], v5, s[28:31], 0 offen
    v_lshlrev_b32 v6, 4, v0
    s_waitcnt vmcnt(0)
    ds_write_b128 v6, v[8:11]
    ds_write_b128 v6, v[12:15] offset:4096
    ds_write_b128 v6, v[16:19] offset:8192
    s_waitcnt lgkmcnt(0)
    s_barrier
    v_lshrrev_b32 v1, 6, v0
    v_and_b32 v2, 63, v0
    ''')
    for rr in range(2):
        a(f'''
        s_lshl_b32 s17, s2, 3
        s_add_u32 s17, s17, {rr}
        v_lshlrev_b32 v3, 1, v1
        v_add_u32 v3, s17, v3
        v_mul_u32_u24 v3, 1280, v3
        v_lshlrev_b32 v4, 2, v2
        v_add_u32 v3, v3, v4
        ''')
        for j in range(5):
            a(f'buffer_load_dword v{8+j}, v3, s[24:27], 0 offen offset:{256*j}')
        a(f'''
        v_lshlrev_b32 v4, 5, v2
        v_lshlrev_b32 v5, 2, v1
        v_add_u32 v4, v4, v5
        ''')
        for j in range(5):
            a(f'ds_read_u16 v{40+2*j}, v4 offset:{2048*j + 2*rr}')
            a(f'ds_read_u16 v{41+2*j}, v4 offset:{2048*j + 16 + 2*rr}')
        a('s_waitcnt vmcnt(0) lgkmcnt(0)')
        xs = list(range(16, 26))
        for j in range(5):
            a.unpack(16+2*j, 17+2*j, 8+j)
        for j in range(10):
            a(f'v_lshlrev_b32 v{40+j}, 16, v{40+j}')
        qs = list(range(28, 38))
        ln_rows(xs, 640, qs, 56, None)
        for i in range(0, 10, 2):
            a(f'''
            v_mul_f32 v{qs[i]}, v{qs[i]}, v{40+i}
            v_mul_f32 v{qs[i+1]}, v{qs[i+1]}, v{41+i}
            ''')
            a.rnd2(qs[i], qs[i+1], 56)
            a(f'''
            v_add_f32 v{xs[i]}, v{xs[i]}, v{qs[i]}
            v_add_f32 v{xs[i+1]}, v{xs[i+1]}, v{qs[i+1]}
            ''')
            a.rnd2(xs[i], xs[i+1], 56)
            a(f'buffer_store_dword v56, v3, s[32:35], 0 offen offset:{256*(i//2)}')
            a('s_nop 1')
        ln_rows(xs, 640, qs, 56, None)
        for i in range(0, 10, 2):
            a(f'v_cvt_pk_bf16_f32 v{8+i//2}, v{qs[i]}, v{qs[i+1]}')
            a(f'buffer_store_dword v{8+i//2}, v3, s[36:39], 0 offen offset:{256*(i//2)}')
        a('s_waitcnt vmcnt(0)')
    a.label(done)
    a('s_endpgm')
    a.kernels.append((k, 64, 56, 64))

def gen_lnz():
    k = 'lnz_kernel'
    a.begin(k)
    a(f'''
    s_cmp_ge_u32 s2, 256
    s_cbranch_scc1 lnz_done
    s_load_dwordx2 s[14:15], s[0:1], {WS}
    s_waitcnt lgkmcnt(0)
    ''')
    a.srd(24, 14, 7077888, ZZ)
    a.srd(28, 14, 3538944, Z2T)
    a('''
    v_lshrrev_b32 v1, 6, v0
    v_and_b32 v2, 63, v0
    ''')
    for rr in range(2):
        a(f'''
        s_lshl_b32 s17, s2, 3
        s_add_u32 s17, s17, {rr}
        v_lshlrev_b32 v3, 1, v1
        v_add_u32 v3, s17, v3
        v_mul_u32_u24 v3, 3456, v3
        v_lshlrev_b32 v4, 2, v2
        v_add_u32 v3, v3, v4
        v_mov_b32 v14, 0
        ''')
        for j in range(6):
            a(f'buffer_load_dword v{8+j}, v3, s[24:27], 0 offen offset:{1728 + 256*j}')
        a(f'''
        v_cmp_gt_u32 vcc, 48, v2
        s_and_saveexec_b64 s[40:41], vcc
        buffer_load_dword v14, v3, s[24:27], 0 offen offset:{1728 + 256*6}
        s_mov_b64 exec, s[40:41]
        s_waitcnt vmcnt(0)
        ''')
        xs = list(range(16, 30))
        for j in range(7):
            a.unpack(16+2*j, 17+2*j, 8+j)
        t0, t1, t2, t3 = 56, 57, 58, 59
        a(f'v_mov_b32 v{t0}, v16')
        for v in xs[1:]:
            a(f'v_add_f32 v{t0}, v{t0}, v{v}')
        a.wave_sum(t0, t1, 50)
        a(f'''
        v_mov_b32 v{t0}, {1.0/864!r}
        v_mul_f32 v{t2}, s50, v{t0}
        v_mov_b32 v{t0}, 0
        ''')
        for v in xs[:12]:
            a(f'v_sub_f32 v{t1}, v{v}, v{t2}')
            a(f'v_fmac_f32 v{t0}, v{t1}, v{t1}')
        a(f'''
        v_cmp_gt_u32 vcc, 48, v2
        v_sub_f32 v{t1}, v28, v{t2}
        v_mul_f32 v{t1}, v{t1}, v{t1}
        v_sub_f32 v{t3}, v29, v{t2}
        v_fmac_f32 v{t1}, v{t3}, v{t3}
        v_cndmask_b32 v{t1}, 0, v{t1}, vcc
        v_add_f32 v{t0}, v{t0}, v{t1}
        ''')
        a.wave_sum(t0, t1, 51)
        a(f'''
        v_mov_b32 v{t0}, {1.0/864!r}
        v_mul_f32 v{t3}, s51, v{t0}
        ''')
        a.rnd2(t2, t3, t0)
        a(f'''
        v_add_f32 v{t3}, 0x3727c5ac, v{t3}
        v_cvt_pk_bf16_f32 v{t0}, v{t3}, v{t3}
        v_lshlrev_b32 v{t3}, 16, v{t0}
        v_sqrt_f32 v{t3}, v{t3}
        s_nop 0
        v_cvt_pk_bf16_f32 v{t0}, v{t3}, v{t3}
        v_lshlrev_b32 v{t3}, 16, v{t0}
        v_rcp_f32 v{t1}, v{t3}
        s_nop 0
        v_fma_f32 v{t0}, -v{t3}, v{t1}, 2.0
        v_mul_f32 v{t1}, v{t1}, v{t0}
        ''')
        a(f'''
        v_lshlrev_b32 v4, 5, v2
        v_lshlrev_b32 v5, 2, v1
        v_add_u32 v4, v4, v5
        ''')
        for j in range(7):
            o0, o1 = 40, 41
            a(f'''
            v_sub_f32 v{o0}, v{xs[2*j]}, v{t2}
            v_sub_f32 v{o1}, v{xs[2*j+1]}, v{t2}
            ''')
            a.rnd2(o0, o1, t0)
            a(f'''
            v_mul_f32 v60, v{o0}, v{t1}
            v_mul_f32 v61, v{o1}, v{t1}
            v_fma_f32 v{t0}, -v60, v{t3}, v{o0}
            v_fma_f32 v{o0}, v{t0}, v{t1}, v60
            v_fma_f32 v{t0}, -v61, v{t3}, v{o1}
            v_fma_f32 v{o1}, v{t0}, v{t1}, v61
            v_cvt_pk_bf16_f32 v{42+j}, v{o0}, v{o1}
            ds_write_b16 v4, v{42+j} offset:{2048*j + 2*rr}
            ds_write_b16_d16_hi v4, v{42+j} offset:{2048*j + 16 + 2*rr}
            ''')
    a('''
    s_waitcnt lgkmcnt(0)
    s_barrier
    v_lshlrev_b32 v4, 4, v0
    ds_read_b128 v[8:11], v4
    ds_read_b128 v[12:15], v4 offset:4096
    ds_read_b128 v[16:19], v4 offset:8192
    ds_read_b128 v[20:23], v4 offset:12288
    s_lshl_b32 s16, s2, 4
    v_lshlrev_b32 v3, 12, v0
    v_add_u32 v3, s16, v3
    v_add_u32 v5, 0x100000, v3
    v_add_u32 v6, 0x200000, v3
    v_add_u32 v7, 0x300000, v3
    s_waitcnt lgkmcnt(0)
    buffer_store_dwordx4 v[8:11], v3, s[28:31], 0 offen
    buffer_store_dwordx4 v[12:15], v5, s[28:31], 0 offen
    buffer_store_dwordx4 v[16:19], v6, s[28:31], 0 offen
    buffer_store_dwordx4 v[20:23], v7, s[28:31], 0 offen
    ''')
    a.label('lnz_done')
    a('s_endpgm')
    a.kernels.append((k, 64, 56, 64))

def gen_gemm(k, WM, WN, BK, K, M, N, A_src, B_src, epi):
    BM, BN = 2*WM, 2*WN
    TM, TN = WM//32, WN//32
    nmt, nnt = M//BM, -(-N//BN)
    rowb = BK*2
    nch = rowb//16
    rsh = {64: 2, 128: 1}[rowb]
    nsteps = K//BK
    Abytes, Bbytes = BM*rowb, BN*rowb
    stage = Abytes + Bbytes
    nla, nlb = Abytes//4096, Bbytes//4096
    assert nla >= 1 and nlb >= 1
    done = k + '_done'
    a.begin(k)
    a(f'''
    s_cmp_ge_u32 s2, {nmt*nnt}
    s_cbranch_scc1 {done}
    s_load_dwordx2 s[4:5], s[0:1], {A_src[0]}
    s_load_dwordx2 s[6:7], s[0:1], {B_src[0]}
    s_load_dwordx2 s[14:15], s[0:1], {WS}
    s_load_dwordx2 s[10:11], s[0:1], {B_BSP}
    s_load_dwordx2 s[12:13], s[0:1], {OUT}
    s_and_b32 s16, s2, {nmt-1}
    s_lshr_b32 s17, s2, {nmt.bit_length()-1}
    s_mul_i32 s18, s16, {BM}
    s_mul_i32 s19, s17, {BN}
    s_waitcnt lgkmcnt(0)
    ''')
    a.srd(24, 4, M*K*2, A_src[1])
    a.srd(28, 6, N*K*2, B_src[1])
    lsh = nch.bit_length()-1
    a(f'''
    v_lshrrev_b32 v1, {lsh}, v0
    v_and_b32 v2, {nch-1}, v0
    ''')
    rows_per = 256 // nch
    for i in range(max(nla, nlb)):
        a(f'v_add_u32 v3, {rows_per*i}, v1')
        a(f'''
        v_lshrrev_b32 v20, {rsh}, v3
        v_and_b32 v20, {nch-1}, v20
        v_xor_b32 v20, v20, v2
        v_lshlrev_b32 v20, 4, v20
        v_mul_u32_u24 v21, {rowb}, v3
        v_add_u32 v20, v20, v21
        ''')
        if i < nla:
            a(f'''
            v_mov_b32 v{12+i}, v20
            v_add_u32 v21, s18, v3
            v_mul_u32_u24 v21, {K*2}, v21
            v_lshlrev_b32 v22, 4, v2
            v_add_u32 v{4+i}, v21, v22
            ''')
        if i < nlb:
            a(f'''
            v_add_u32 v{16+i}, {Abytes}, v20
            v_add_u32 v21, s19, v3
            v_mul_u32_u24 v21, {K*2}, v21
            v_lshlrev_b32 v22, 4, v2
            v_add_u32 v{8+i}, v21, v22
            ''')
    a('''
    v_lshrrev_b32 v1, 6, v0
    v_and_b32 v2, 63, v0
    v_and_b32 v3, 31, v2
    v_lshrrev_b32 v20, 5, v2
    v_and_b32 v21, 1, v1
    v_lshrrev_b32 v22, 1, v1
    ''')
    nkk = BK//16
    AR, BR = 24, 24 + nkk
    for kk in range(nkk):
        for (isB, wsel, W, R) in ((0, 21, WM, AR), (1, 22, WN, BR)):
            a(f'''
            v_mul_u32_u24 v23, {W}, v{wsel}
            v_add_u32 v23, v23, v3
            v_lshrrev_b32 v{R+kk}, {rsh}, v23
            v_and_b32 v{R+kk}, {nch-1}, v{R+kk}
            v_xor_b32 v{R+kk}, {2*kk}, v{R+kk}
            v_xor_b32 v{R+kk}, v{R+kk}, v20
            v_lshlrev_b32 v{R+kk}, 4, v{R+kk}
            v_mul_u32_u24 v23, {rowb}, v23
            v_add_u32 v{R+kk}, v{R+kk}, v23
            ''')
            if isB:
                a(f'v_add_u32 v{R+kk}, {Abytes}, v{R+kk}')
    ST = 32
    FA = 64
    FB = FA + 4*TM*2
    ACC = 96
    nacc = TM*TN*16
    assert FB + 4*TN*2 <= ACC
    for i in range(nacc):
        a(f'v_mov_b32 v{ACC+i}, 0')
    def gload(step):
        for i in range(nla):
            a(f'buffer_load_dwordx4 v[{ST+4*i}:{ST+4*i+3}], v{4+i}, s[24:27], s20 offen')
        for i in range(nlb):
            j = nla + i
            a(f'buffer_load_dwordx4 v[{ST+4*j}:{ST+4*j+3}], v{8+i}, s[28:31], s20 offen')
    def lwrite(buf):
        for i in range(nla):
            a(f'ds_write_b128 v{12+i}, v[{ST+4*i}:{ST+4*i+3}] offset:{buf*stage}')
        for i in range(nlb):
            j = nla + i
            a(f'ds_write_b128 v{16+i}, v[{ST+4*j}:{ST+4*j+3}] offset:{buf*stage}')
    def compute(buf, do_write=False, do_load=False):
        def rd(kk, s):
            for i in range(TM):
                f = FA + 4*(s*TM + i)
                a(f'ds_read_b128 v[{f}:{f+3}], v{AR+kk} offset:{buf*stage + i*32*rowb}')
            for i in range(TN):
                f = FB + 4*(s*TN + i)
                a(f'ds_read_b128 v[{f}:{f+3}], v{BR+kk} offset:{buf*stage + i*32*rowb}')
        rd(0, 0)
        for kk in range(nkk):
            s = kk & 1
            if kk + 1 < nkk:
                rd(kk+1, s ^ 1)
                a(f's_waitcnt lgkmcnt({TM+TN})')
            else:
                a('s_waitcnt lgkmcnt(0)')
            for i in range(TM):
                for j in range(TN):
                    fa = FA + 4*(s*TM + i)
                    fb = FB + 4*(s*TN + j)
                    c = ACC + 16*(i*TN + j)
                    a(f'v_mfma_f32_32x32x16_bf16 v[{c}:{c+15}], v[{fb}:{fb+3}], v[{fa}:{fa+3}], v[{c}:{c+15}]')
            if kk == 0 and do_write:
                a('s_waitcnt vmcnt(0)')
                lwrite(buf ^ 1)
            if kk == 1 and do_load:
                a(f's_add_u32 s20, s20, {rowb}')
                gload(0)
    a('s_mov_b32 s20, 0')
    gload(0)
    a('s_waitcnt vmcnt(0)')
    lwrite(0)
    a(f's_mov_b32 s20, {rowb}')
    gload(1)
    a('''
    s_waitcnt lgkmcnt(0)
    s_barrier
    ''')
    loop = a.newlabel('gl')
    npairs = (nsteps - 2) // 2 if nsteps >= 2 else 0
    a(f's_mov_b32 s21, 0')
    if npairs > 0:
        a.label(loop)
        for b in range(2):
            compute(b, True, True)
            a('''
            s_waitcnt lgkmcnt(0)
            s_barrier
            ''')
        a(f'''
        s_add_u32 s21, s21, 1
        s_cmp_lt_u32 s21, {npairs}
        s_cbranch_scc1 {loop}
        ''')
    s0 = 2*npairs
    for s in range(s0, nsteps):
        b = s & 1
        compute(b, s + 1 < nsteps, s + 2 < nsteps)
        if s + 1 < nsteps:
            a('''
            s_waitcnt lgkmcnt(0)
            s_barrier
            ''')
    a('''
    s_nop 7
    s_nop 7
    ''')
    a(f'''
    v_mul_u32_u24 v4, {WM}, v21
    v_add_u32 v4, v4, v3
    v_add_u32 v4, s18, v4
    v_mul_u32_u24 v5, {WN}, v22
    v_lshlrev_b32 v6, 2, v20
    v_add_u32 v5, v5, v6
    v_add_u32 v5, s19, v5
    ''')
    epi(TM, TN, ACC)
    a.label(done)
    a('s_endpgm')
    lds = 2*stage
    a.kernels.append((k, ACC + nacc, 56, ACC + nacc))
    return nmt*nnt, lds

def gelu_regs(x, t0, t1):
    a(f'''
    v_mul_f32 v{t0}, v{x}, v{x}
    v_mul_f32 v{t0}, v{t0}, v{x}
    v_fma_f32 v{t0}, v{t0}, s46, v{x}
    v_mul_f32 v{t0}, s47, v{t0}
    v_exp_f32 v{t0}, v{t0}
    s_nop 0
    v_add_f32 v{t0}, 1.0, v{t0}
    v_rcp_f32 v{t0}, v{t0}
    s_nop 0
    v_fma_f32 v{t0}, v{t0}, -2.0, 2.0
    v_mul_f32 v{t1}, 0.5, v{x}
    v_mul_f32 v{x}, v{t1}, v{t0}
    ''')

def epi_gemm1(TM, TN, ACC):
    a.srd(32, 14, 7077888, ZZ)
    a('''
    s_mov_b32 s46, 0x3d372713
    s_mov_b32 s47, 0x40135761
    ''')
    for i in range(TM):
        a(f'''
        v_add_u32 v6, {32*i}, v4
        v_mul_u32_u24 v6, 3456, v6
        ''')
        for j in range(TN):
            for q in range(4):
                c = ACC + 16*(i*TN+j) + 4*q
                a.rnd2(c, c+1, 8)
                a.rnd2(c+2, c+3, 8)
                for e in range(4):
                    gelu_regs(c+e, 8, 9)
                a(f'''
                v_cvt_pk_bf16_f32 v10, v{c}, v{c+1}
                v_cvt_pk_bf16_f32 v11, v{c+2}, v{c+3}
                v_add_u32 v7, {32*j+8*q}, v5
                v_cmp_gt_u32 vcc, 1728, v7
                v_lshl_add_u32 v7, v7, 1, v6
                s_and_saveexec_b64 s[40:41], vcc
                buffer_store_dwordx2 v[10:11], v7, s[32:35], 0 offen
                s_mov_b64 exec, s[40:41]
                s_nop 1
                ''')

def epi_gemm2(TM, TN, ACC):
    a.srd(32, 14, 7077888, ZZ)
    a.srd(36, 14, 3670016, UU)
    a.srd(44, 10, 4096)
    for i in range(TM):
        a(f'''
        v_add_u32 v6, {32*i}, v4
        v_lshlrev_b32 v7, 1, v6
        buffer_load_ushort v12, v7, s[44:47], 0 offen
        v_mul_u32_u24 v13, 3456, v6
        v_mul_u32_u24 v6, 1792, v6
        s_waitcnt vmcnt(0)
        v_lshlrev_b32 v12, 16, v12
        ''')
        for j in range(TN):
            for q in range(4):
                c = ACC + 16*(i*TN+j) + 4*q
                a(f'''
                v_add_u32 v7, {32*j+8*q}, v5
                v_cmp_gt_u32 vcc, 864, v7
                v_lshl_add_u32 v14, v7, 1, v13
                v_lshl_add_u32 v7, v7, 1, v6
                v_mov_b32 v16, 0
                v_mov_b32 v17, 0
                s_and_saveexec_b64 s[40:41], vcc
                buffer_load_dwordx2 v[16:17], v14, s[32:35], 0 offen
                s_mov_b64 exec, s[40:41]
                ''')
                a.rnd2(c, c+1, 8)
                a.rnd2(c+2, c+3, 8)
                for e in range(4):
                    a(f'v_add_f32 v{c+e}, v{c+e}, v12')
                a.rnd2(c, c+1, 8)
                a.rnd2(c+2, c+3, 8)
                a('s_waitcnt vmcnt(0)')
                a.unpack(18, 19, 16)
                a.unpack(8, 9, 17)
                a(f'''
                v_mul_f32 v18, v18, v{c}
                v_mul_f32 v19, v19, v{c+1}
                v_mul_f32 v8, v8, v{c+2}
                v_mul_f32 v9, v9, v{c+3}
                v_cvt_pk_bf16_f32 v10, v18, v19
                v_cvt_pk_bf16_f32 v11, v8, v9
                buffer_store_dwordx2 v[10:11], v7, s[36:39], 0 offen
                s_nop 1
                ''')

def make_epi_gemm3(xin_off, out_ws_off):
    def epi(TM, TN, ACC):
        a.srd(32, 14, 2621440, xin_off)
        if out_ws_off is None:
            a.srd(36, 12, 2621440)
        else:
            a.srd(36, 14, 2621440, out_ws_off)
        for i in range(TM):
            a(f'''
            v_add_u32 v6, {32*i}, v4
            v_mul_u32_u24 v6, 1280, v6
            ''')
            for j in range(TN):
                for q in range(4):
                    c = ACC + 16*(i*TN+j) + 4*q
                    a(f'''
                    v_add_u32 v7, {32*j+8*q}, v5
                    v_lshl_add_u32 v7, v7, 1, v6
                    buffer_load_dwordx2 v[16:17], v7, s[32:35], 0 offen
                    ''')
                    a.rnd2(c, c+1, 8)
                    a.rnd2(c+2, c+3, 8)
                    a('s_waitcnt vmcnt(0)')
                    a.unpack(18, 19, 16)
                    a.unpack(8, 9, 17)
                    a(f'''
                    v_add_f32 v18, v18, v{c}
                    v_add_f32 v19, v19, v{c+1}
                    v_add_f32 v8, v8, v{c+2}
                    v_add_f32 v9, v9, v{c+3}
                    v_cvt_pk_bf16_f32 v10, v18, v19
                    v_cvt_pk_bf16_f32 v11, v8, v9
                    buffer_store_dwordx2 v[10:11], v7, s[36:39], 0 offen
                    s_nop 1
                    ''')
    return epi

gen_prep()
gen_conv()
gen_row('rowa_kernel', A_Q, 0, X1)
gen_row('rowb_kernel', WS, X2, X3)
gen_lnz()
g1, l1 = gen_gemm('gemm1_kernel', 64, 32, 64, 640, 2048, 1728, (WS, HH), (WS, WINT), epi_gemm1)
g2, l2 = gen_gemm('gemm2_kernel', 64, 32, 64, 2048, 2048, 864, (B_WSP, 0), (WS, Z2T), epi_gemm2)
g3, l3 = gen_gemm('gemm3a_kernel', 32, 32, 64, 896, 2048, 640, (WS, UU), (WS, WOUTT), make_epi_gemm3(X1, X2))
g3, l3 = gen_gemm('gemm3b_kernel', 32, 32, 64, 896, 2048, 640, (WS, UU), (WS, WOUTT), make_epi_gemm3(X3, None))

launches = [
    ('prep_kernel', 1460, 5120),
    ('conv_kernel', 640, KVL + 9216),
    ('rowa_kernel', 256, 12288),
    ('gemm1_kernel', g1, l1),
    ('lnz_kernel', 256, 16384),
    ('gemm2_kernel', g2, l2),
    ('gemm3a_kernel', g3, l3),
    ('rowb_kernel', 256, 12288),
    ('gemm1_kernel', g1, l1),
    ('lnz_kernel', 256, 16384),
    ('gemm2_kernel', g2, l2),
    ('gemm3b_kernel', g3, l3),
]

ref = open('cdna_kernels/' + NAME + '.s.ref').read().split('\n')
head = [l for l in ref if l.startswith(';') and '@launch' not in l]
out = head[:]
for (k, g, lds) in launches:
    out.append(f'; @launch kernel={k} grid=({g},1,1) block=(256,1,1) lds={lds}')
out.append('.amdgcn_target "amdgcn-amd-amdhsa--gfx950"')
out.append('.text')
out += a.L
out.append('.section .rodata,"a"')
for (k, v, s, acc) in a.kernels:
    out.append('.p2align 6')
    out.append(f'.amdhsa_kernel {k}')
    out.append(f'  .amdhsa_next_free_vgpr {v}')
    out.append(f'  .amdhsa_next_free_sgpr {s}')
    out.append(f'  .amdhsa_accum_offset {((acc+3)//4)*4}')
    out.append('  .amdhsa_group_segment_fixed_size 0')
    out.append('  .amdhsa_kernarg_size 112')
    out.append('  .amdhsa_user_sgpr_count 2')
    out.append('  .amdhsa_user_sgpr_kernarg_segment_ptr 1')
    out.append('  .amdhsa_system_sgpr_workgroup_id_x 1')
    out.append('.end_amdhsa_kernel')
open('cdna_kernels/' + NAME + '.s', 'w').write('\n'.join(out) + '\n')
print('ok', len(out), 'lines', g1, l1, g2, l2, g3, l3)
```

```python
NAME = "interleave_layers__ssm_conv_h3__mixer_gmlp__prompt"

KVR = 0x0
YYT = 0x300000
WINT = 0x600000
WOUTT = 0x900000
X1 = 0xB00000
X2 = 0xE00000
X3 = 0x1100000
HH = 0x1400000
ZZ = 0x1700000
Z2T = 0x1E00000
UU = 0x2200000

A_Q, A_K, A_V, A_SK, A_SSMK, A_D, B_X, B_WIN, B_WSP, B_BSP, B_WOUT, OUT, DBG, WS = [8*i for i in range(14)]

class Asm:
    def __init__(self):
        self.L = []
        self.kernels = []
        self.launches = []
        self.uid = 0
    def __call__(self, s):
        for line in s.strip().split('\n'):
            self.L.append('    ' + line.strip())
    def label(self, l):
        self.L.append(l + ':')
    def newlabel(self, p='L'):
        self.uid += 1
        return f'{p}_{self.uid}'
    def begin(self, label):
        self.L.append('.globl ' + label)
        self.L.append('.p2align 8')
        self.L.append(f'.type {label},@function')
        self.label(label)
    def srd(self, d, p, nbytes, off=0):
        if off:
            self(f's_add_u32 s{d}, s{p}, {off}')
            self(f's_addc_u32 s{d+1}, s{p+1}, 0')
        else:
            self(f's_mov_b32 s{d}, s{p}')
            self(f's_mov_b32 s{d+1}, s{p+1}')
        self(f's_mov_b32 s{d+2}, {nbytes}')
        self(f's_mov_b32 s{d+3}, 0x00020000')
    def rnd2(self, a, b, t):
        self(f'v_cvt_pk_bf16_f32 v{t}, v{a}, v{b}')
        self(f'v_lshlrev_b32 v{a}, 16, v{t}')
        self(f'v_and_b32 v{b}, 0xffff0000, v{t}')
    def unpack(self, lo, hi, src):
        self(f'v_lshlrev_b32 v{lo}, 16, v{src}')
        self(f'v_and_b32 v{hi}, 0xffff0000, v{src}')
    def wave_sum(self, v, t, sdst):
        self('s_nop 1')
        self(f'v_add_f32_dpp v{t}, v{v}, v{v} quad_perm:[1,0,3,2] row_mask:0xf bank_mask:0xf')
        self('s_nop 1')
        self(f'v_add_f32_dpp v{v}, v{t}, v{t} quad_perm:[2,3,0,1] row_mask:0xf bank_mask:0xf')
        self('s_nop 1')
        self(f'v_add_f32_dpp v{t}, v{v}, v{v} row_half_mirror row_mask:0xf bank_mask:0xf')
        self('s_nop 1')
        self(f'v_add_f32_dpp v{v}, v{t}, v{t} row_mirror row_mask:0xf bank_mask:0xf')
        self('s_nop 0')
        self(f'v_readlane_b32 s52, v{v}, 16')
        self(f'v_readlane_b32 s53, v{v}, 32')
        self(f'v_readlane_b32 s54, v{v}, 48')
        self('s_nop 1')
        self(f'v_add_f32 v{v}, s52, v{v}')
        self(f'v_add_f32 v{v}, s53, v{v}')
        self(f'v_add_f32 v{v}, s54, v{v}')
        self('s_nop 0')
        self(f'v_readlane_b32 s{sdst}, v{v}, 0')
        self('s_nop 1')

a = Asm()

def gen_prep():
    k = 'prep_kernel'
    a.begin(k)
    a(f'''
    s_cmp_ge_u32 s2, 1460
    s_cbranch_scc1 prep_done
    s_load_dwordx2 s[4:5], s[0:1], {A_K}
    s_load_dwordx2 s[6:7], s[0:1], {A_V}
    s_load_dwordx2 s[8:9], s[0:1], {A_SK}
    s_load_dwordx2 s[10:11], s[0:1], {B_WIN}
    s_load_dwordx2 s[12:13], s[0:1], {B_WOUT}
    s_load_dwordx2 s[14:15], s[0:1], {WS}
    v_lshrrev_b32 v1, 3, v0
    v_and_b32 v2, 7, v0
    s_waitcnt lgkmcnt(0)
    s_cmp_ge_u32 s2, 640
    s_cbranch_scc1 prep_tr
    ''')
    a(f'''
    s_mov_b32 s16, 429496730
    s_mul_hi_u32 s17, s2, s16
    s_mul_i32 s18, s17, 10
    s_sub_u32 s18, s2, s18
    s_lshl_b32 s19, s17, 5
    s_lshl_b32 s20, s18, 6
    ''')
    a.srd(24, 4, 2621440)
    a.srd(28, 6, 2621440)
    a.srd(32, 8, 5120)
    a.srd(36, 14, 2621440, KVR)
    a(f'''
    v_add_u32 v3, s19, v1
    v_mul_u32_u24 v3, 1280, v3
    v_lshlrev_b32 v4, 4, v2
    v_add_u32 v3, v3, v4
    s_lshl_b32 s21, s20, 1
    v_add_u32 v3, s21, v3
    v_subrev_u32 v5, 1280, v3
    v_subrev_u32 v6, 2560, v3
    v_subrev_u32 v7, 3840, v3
    buffer_load_dwordx4 v[8:11], v3, s[24:27], 0 offen
    buffer_load_dwordx4 v[12:15], v5, s[24:27], 0 offen
    buffer_load_dwordx4 v[16:19], v6, s[24:27], 0 offen
    buffer_load_dwordx4 v[20:23], v7, s[24:27], 0 offen
    buffer_load_dwordx4 v[24:27], v3, s[28:31], 0 offen
    v_lshlrev_b32 v4, 6, v2
    s_lshl_b32 s21, s20, 3
    v_add_u32 v4, s21, v4
    buffer_load_dwordx4 v[28:31], v4, s[32:35], 0 offen
    buffer_load_dwordx4 v[32:35], v4, s[32:35], 0 offen offset:16
    buffer_load_dwordx4 v[36:39], v4, s[32:35], 0 offen offset:32
    buffer_load_dwordx4 v[40:43], v4, s[32:35], 0 offen offset:48
    ''')
    a('''
    v_mul_u32_u24 v44, 640, v2
    v_sub_u32 v45, 31, v1
    v_lshlrev_b32 v45, 1, v45
    v_add_u32 v44, v44, v45
    s_waitcnt vmcnt(0)
    ''')
    for e in range(8):
        w = e // 2
        def g(dst, base):
            if e % 2 == 0:
                a(f'v_lshlrev_b32 v{dst}, 16, v{base+w}')
            else:
                a(f'v_and_b32 v{dst}, 0xffff0000, v{base+w}')
        g(50, 8); g(51, 12); g(52, 16); g(53, 20); g(54, 24)
        a.unpack(55, 56, 28 + 2*e)
        a.unpack(57, 58, 29 + 2*e)
        a(f'''
        v_mul_f32 v60, v53, v58
        v_mul_f32 v61, v52, v57
        ''')
        a.rnd2(60, 61, 62)
        a(f'''
        v_add_f32 v60, v60, v61
        v_mul_f32 v61, v51, v56
        ''')
        a.rnd2(60, 61, 62)
        a(f'''
        v_add_f32 v60, v60, v61
        v_mul_f32 v61, v50, v55
        ''')
        a.rnd2(60, 61, 62)
        a(f'''
        v_add_f32 v60, v60, v61
        v_cvt_pk_bf16_f32 v62, v60, v60
        v_lshlrev_b32 v60, 16, v62
        v_mul_f32 v60, v60, v54
        v_cvt_pk_bf16_f32 v62, v60, v60
        ds_write_b16 v44, v62 offset:{80*e}
        ''')
    a(f'''
    s_waitcnt lgkmcnt(0)
    s_barrier
    v_lshrrev_b32 v45, 2, v0
    v_and_b32 v46, 3, v0
    v_mul_u32_u24 v47, 80, v45
    v_lshlrev_b32 v48, 4, v46
    v_add_u32 v47, v47, v48
    ds_read_b128 v[8:11], v47
    v_add_u32 v45, s20, v45
    v_lshlrev_b32 v45, 12, v45
    s_sub_u32 s21, 2016, s19
    s_lshl_b32 s21, s21, 1
    v_add_u32 v45, s21, v45
    v_add_u32 v45, v45, v48
    s_waitcnt lgkmcnt(0)
    buffer_store_dwordx4 v[8:11], v45, s[36:39], 0 offen
    s_branch prep_done
    ''')
    a.label('prep_tr')
    a('''
    s_sub_u32 s16, s2, 640
    s_cmp_ge_u32 s16, 540
    s_cbranch_scc1 prep_tr2
    ''')
    a(f'''
    s_mov_b32 s17, 159072863
    s_mul_hi_u32 s18, s16, s17
    s_mul_i32 s19, s18, 27
    s_sub_u32 s19, s16, s19
    s_mov_b32 s20, 640
    s_mov_b32 s21, 1728
    ''')
    a.srd(24, 10, 2211840)
    a.srd(28, 14, 2211840, WINT)
    a('s_branch prep_tr3')
    a.label('prep_tr2')
    a(f'''
    s_sub_u32 s16, s16, 540
    s_mov_b32 s17, 429496730
    s_mul_hi_u32 s18, s16, s17
    s_mul_i32 s19, s18, 10
    s_sub_u32 s19, s16, s19
    s_mov_b32 s20, 896
    s_mov_b32 s21, 640
    ''')
    a.srd(24, 12, 1105920)
    a.srd(28, 14, 1146880, WOUTT)
    a.label('prep_tr3')
    a('''
    s_lshl_b32 s22, s18, 5
    s_lshl_b32 s23, s19, 6
    v_add_u32 v3, s22, v1
    v_mul_lo_u32 v3, v3, s21
    v_lshlrev_b32 v4, 3, v2
    v_add_u32 v3, v3, v4
    v_add_u32 v3, s23, v3
    v_lshlrev_b32 v3, 1, v3
    buffer_load_dwordx4 v[8:11], v3, s[24:27], 0 offen
    v_mul_u32_u24 v44, 640, v2
    v_lshlrev_b32 v45, 1, v1
    v_add_u32 v44, v44, v45
    s_waitcnt vmcnt(0)
    ''')
    for e in range(8):
        if e % 2 == 0:
            a(f'ds_write_b16 v44, v{8+e//2} offset:{80*e}')
        else:
            a(f'ds_write_b16_d16_hi v44, v{8+e//2} offset:{80*e}')
    a('''
    s_waitcnt lgkmcnt(0)
    s_barrier
    v_lshrrev_b32 v45, 2, v0
    v_and_b32 v46, 3, v0
    v_mul_u32_u24 v47, 80, v45
    v_lshlrev_b32 v48, 4, v46
    v_add_u32 v47, v47, v48
    ds_read_b128 v[8:11], v47
    v_add_u32 v45, s23, v45
    v_mul_lo_u32 v45, v45, s20
    v_add_u32 v45, s22, v45
    v_lshlrev_b32 v45, 1, v45
    v_add_u32 v45, v45, v48
    s_waitcnt lgkmcnt(0)
    buffer_store_dwordx4 v[8:11], v45, s[28:31], 0 offen
    ''')
    a.label('prep_done')
    a('s_endpgm')
    a.kernels.append((k, 64, 48, 64))

HP = 4256
KVL = 8 * HP
def gen_conv():
    k = 'conv_kernel'
    a.begin(k)
    a(f'''
    s_cmp_ge_u32 s2, 640
    s_cbranch_scc1 conv_done
    s_load_dwordx2 s[4:5], s[0:1], {A_SSMK}
    s_load_dwordx2 s[6:7], s[0:1], {A_D}
    s_load_dwordx2 s[14:15], s[0:1], {WS}
    s_lshl_b32 s16, s2, 12
    s_waitcnt lgkmcnt(0)
    s_add_u32 s4, s4, s16
    s_addc_u32 s5, s5, 0
    s_add_u32 s8, s14, s16
    s_addc_u32 s9, s15, 0
    ''')
    a.srd(24, 4, 4096)
    a.srd(28, 8, 4096, KVR)
    a.srd(32, 8, 4096, YYT)
    a.srd(36, 6, 1280)
    def fill(ci_reg):
        a(f'''
        v_lshlrev_b32 v3, 4, v{ci_reg}
        v_subrev_u32 v4, 128, v3
        v_subrev_u32 v5, 112, v3
        buffer_load_dwordx4 v[8:11], v4, s[24:27], 0 offen
        buffer_load_dwordx4 v[12:15], v5, s[24:27], 0 offen
        s_waitcnt vmcnt(0)
        ''')
        for c in range(8):
            if c % 2 == 0:
                j = c // 2
                if j == 0:
                    a(f'ds_write_b128 v3, v[8:11] offset:{c*HP}')
                else:
                    for i in range(4):
                        a(f'v_mov_b32 v{16+i}, v{8+j+i}')
                    a(f'ds_write_b128 v3, v[16:19] offset:{c*HP}')
            else:
                j = (c - 1) // 2
                base = 20 if (c % 4 == 1) else 24
                for i in range(4):
                    a(f'v_alignbit_b32 v{base+i}, v{8+j+i+1}, v{8+j+i}, 16')
                a(f'ds_write_b128 v3, v[{base}:{base+3}] offset:{c*HP}')
    fill(0)
    a('''
    v_add_u32 v2, 256, v0
    v_cmp_gt_u32 vcc, 265, v2
    s_and_saveexec_b64 s[40:41], vcc
    s_cbranch_execz conv_f2
    ''')
    fill(2)
    a.label('conv_f2')
    a('s_mov_b64 exec, s[40:41]')
    a(f'''
    v_lshlrev_b32 v3, 4, v0
    buffer_load_dwordx4 v[8:11], v3, s[28:31], 0 offen
    s_lshl_b32 s17, s2, 1
    v_mov_b32 v4, s17
    buffer_load_ushort v30, v4, s[36:39], 0 offen
    v_mov_b32 v12, 0
    v_mov_b32 v13, 0
    v_mov_b32 v14, 0
    v_mov_b32 v15, 0
    v_lshrrev_b32 v5, 3, v0
    v_lshlrev_b32 v5, 4, v5
    v_add_u32 v3, v3, v5
    ds_write_b128 v3, v[12:15] offset:{KVL+4608}
    s_waitcnt vmcnt(0)
    ds_write_b128 v3, v[8:11] offset:{KVL}
    v_lshlrev_b32 v30, 16, v30
    ''')
    a('''
    v_lshrrev_b32 v1, 6, v0
    v_and_b32 v2, 63, v0
    v_and_b32 v3, 31, v2
    v_lshrrev_b32 v4, 5, v2
    ''')
    for r in range(2):
        a(f'''
        v_lshlrev_b32 v5, 1, v3
        v_add_u32 v5, {r+1}, v5
        v_and_b32 v6, 7, v5
        v_mul_u32_u24 v6, {HP}, v6
        v_and_b32 v5, 0x78, v5
        v_lshlrev_b32 v7, 9, v1
        v_add_u32 v5, v5, v7
        v_lshlrev_b32 v7, 3, v4
        v_add_u32 v5, v5, v7
        v_lshlrev_b32 v5, 1, v5
        v_add_u32 v{32+r}, v5, v6
        ''')
    a(f'''
    v_lshlrev_b32 v5, 6, v3
    v_sub_u32 v5, 1984, v5
    v_lshlrev_b32 v7, 9, v1
    v_add_u32 v5, v5, v7
    v_lshlrev_b32 v7, 3, v4
    v_add_u32 v5, v5, v7
    v_lshrrev_b32 v6, 6, v5
    v_lshlrev_b32 v6, 4, v6
    v_lshlrev_b32 v5, 1, v5
    v_add_u32 v5, v5, v6
    v_add_u32 v34, {KVL}, v5
    ''')
    for i in range(32):
        a(f'v_mov_b32 v{64+i}, 0')
    a('''
    s_waitcnt lgkmcnt(0)
    s_barrier
    ''')
    def rd(step, s):
        b = 40 + 12*s
        a(f'''
        ds_read_b128 v[{b}:{b+3}], v32 offset:{32*step}
        ds_read_b128 v[{b+4}:{b+7}], v33 offset:{32*step}
        ds_read_b128 v[{b+8}:{b+11}], v34 offset:{32*step + 16*(step>>2)}
        ''')
    rd(0, 0)
    for step in range(32):
        s = step & 1
        if step + 1 < 32:
            rd(step + 1, s ^ 1)
            a('s_waitcnt lgkmcnt(3)')
        else:
            a('s_waitcnt lgkmcnt(0)')
        b = 40 + 12*s
        a(f'''
        v_mfma_f32_32x32x16_bf16 v[64:79], v[{b}:{b+3}], v[{b+8}:{b+11}], v[64:79]
        v_mfma_f32_32x32x16_bf16 v[80:95], v[{b+4}:{b+7}], v[{b+8}:{b+11}], v[80:95]
        ''')
    a('''
    s_barrier
    s_nop 7
    s_nop 7
    v_lshlrev_b32 v5, 13, v1
    v_lshlrev_b32 v6, 2, v2
    v_add_u32 v5, v5, v6
    ''')
    for r in range(2):
        for j in range(16):
            a(f'ds_write_b32 v5, v{64+16*r+j} offset:{r*4096+j*256}')
    a(f'''
    v_and_b32 v5, 7, v0
    v_lshrrev_b32 v5, 1, v5
    v_lshlrev_b32 v5, 10, v5
    v_lshrrev_b32 v6, 3, v0
    v_and_b32 v7, 1, v0
    v_lshlrev_b32 v7, 5, v7
    v_add_u32 v6, v6, v7
    v_lshlrev_b32 v6, 2, v6
    v_add_u32 v5, v5, v6
    v_sub_u32 v6, 255, v0
    v_lshrrev_b32 v7, 3, v6
    v_add_u32 v6, v6, v7
    v_lshlrev_b32 v6, 4, v6
    v_add_u32 v6, {KVL}, v6
    s_waitcnt lgkmcnt(0)
    s_barrier
    ds_read_b128 v[8:11], v6
    ''')
    for e in range(8):
        for w in range(4):
            a(f'ds_read_b32 v{40+4*e+w}, v5 offset:{w*8192 + (e&1)*4096 + (e>>1)*256}')
    a('s_waitcnt lgkmcnt(0)')
    for e in range(8):
        b = 40 + 4*e
        a(f'''
        v_add_f32 v{b}, v{b}, v{b+1}
        v_add_f32 v{b+2}, v{b+2}, v{b+3}
        v_add_f32 v{b}, v{b}, v{b+2}
        ''')
    for e in range(0, 8, 2):
        b0, b1 = 40 + 4*e, 40 + 4*(e+1)
        a.rnd2(b0, b1, 12)
        p0, p1 = 7 - e, 7 - (e+1)
        a(f'''
        v_and_b32 v13, 0xffff0000, v{8 + p0//2}
        v_lshlrev_b32 v14, 16, v{8 + p1//2}
        v_mul_f32 v13, v13, v30
        v_mul_f32 v14, v14, v30
        ''')
        a.rnd2(13, 14, 12)
        a(f'''
        v_add_f32 v13, v13, v{b0}
        v_add_f32 v14, v14, v{b1}
        v_cvt_pk_bf16_f32 v{16+e//2}, v13, v14
        ''')
    a('''
    v_lshlrev_b32 v3, 4, v0
    buffer_store_dwordx4 v[16:19], v3, s[32:35], 0 offen
    ''')
    a.label('conv_done')
    a('s_endpgm')
    a.kernels.append((k, 96, 48, 96))

def ln_rows(vals, n_elems, outs, tmp, neps_s):
    t0, t1, t2, t3 = tmp, tmp+1, tmp+2, tmp+3
    a(f'v_mov_b32 v{t0}, v{vals[0]}')
    for v in vals[1:]:
        a(f'v_add_f32 v{t0}, v{t0}, v{v}')
    a.wave_sum(t0, t1, 50)
    a(f'''
    v_mov_b32 v{t0}, {1.0/n_elems!r}
    v_mul_f32 v{t2}, s50, v{t0}
    ''')
    a(f'v_sub_f32 v{t1}, v{vals[0]}, v{t2}')
    a(f'v_mul_f32 v{t0}, v{t1}, v{t1}')
    for v in vals[1:]:
        a(f'v_sub_f32 v{t1}, v{v}, v{t2}')
        a(f'v_fmac_f32 v{t0}, v{t1}, v{t1}')
    a.wave_sum(t0, t1, 51)
    a(f'''
    v_mov_b32 v{t0}, {1.0/n_elems!r}
    v_mul_f32 v{t3}, s51, v{t0}
    ''')
    a.rnd2(t2, t3, t0)
    a(f'''
    v_add_f32 v{t3}, 0x3727c5ac, v{t3}
    v_cvt_pk_bf16_f32 v{t0}, v{t3}, v{t3}
    v_lshlrev_b32 v{t3}, 16, v{t0}
    v_sqrt_f32 v{t3}, v{t3}
    s_nop 0
    v_cvt_pk_bf16_f32 v{t0}, v{t3}, v{t3}
    v_lshlrev_b32 v{t3}, 16, v{t0}
    v_rcp_f32 v{t1}, v{t3}
    s_nop 0
    ''')
    a(f'''
    v_fma_f32 v{t0}, -v{t3}, v{t1}, 2.0
    v_mul_f32 v{t1}, v{t1}, v{t0}
    ''')
    for i in range(0, len(vals), 2):
        o0, o1 = outs[i], outs[i+1]
        a(f'''
        v_sub_f32 v{o0}, v{vals[i]}, v{t2}
        v_sub_f32 v{o1}, v{vals[i+1]}, v{t2}
        ''')
        a.rnd2(o0, o1, t0)
        a(f'''
        v_mul_f32 v{tmp+4}, v{o0}, v{t1}
        v_mul_f32 v{tmp+5}, v{o1}, v{t1}
        v_fma_f32 v{t0}, -v{tmp+4}, v{t3}, v{o0}
        v_fma_f32 v{o0}, v{t0}, v{t1}, v{tmp+4}
        v_fma_f32 v{t0}, -v{tmp+5}, v{t3}, v{o1}
        v_fma_f32 v{o1}, v{t0}, v{t1}, v{tmp+5}
        ''')
        a.rnd2(o0, o1, t0)

def gen_row(k, xin_arg, xin_off, xout_off):
    a.begin(k)
    done = k + '_done'
    a(f'''
    s_cmp_ge_u32 s2, 256
    s_cbranch_scc1 {done}
    s_load_dwordx2 s[4:5], s[0:1], {xin_arg}
    s_load_dwordx2 s[14:15], s[0:1], {WS}
    s_waitcnt lgkmcnt(0)
    ''')
    a.srd(24, 4, 2621440, xin_off)
    a.srd(28, 14, 2621440, YYT)
    a.srd(32, 14, 2621440, xout_off)
    a.srd(36, 14, 2621440, HH)
    a('''
    s_lshl_b32 s16, s2, 4
    v_lshlrev_b32 v3, 12, v0
    v_add_u32 v3, s16, v3
    v_add_u32 v4, 0x100000, v3
    v_add_u32 v5, 0x200000, v3
    buffer_load_dwordx4 v[8:11], v3, s[28:31], 0 offen
    buffer_load_dwordx4 v[12:15], v4, s[28:31], 0 offen
    buffer_load_dwordx4 v[16:19], v5, s[28:31], 0 offen
    v_lshlrev_b32 v6, 4, v0
    s_waitcnt vmcnt(0)
    ds_write_b128 v6, v[8:11]
    ds_write_b128 v6, v[12:15] offset:4096
    ds_write_b128 v6, v[16:19] offset:8192
    s_waitcnt lgkmcnt(0)
    s_barrier
    v_lshrrev_b32 v1, 6, v0
    v_and_b32 v2, 63, v0
    ''')
    for rr in range(2):
        a(f'''
        s_lshl_b32 s17, s2, 3
        s_add_u32 s17, s17, {rr}
        v_lshlrev_b32 v3, 1, v1
        v_add_u32 v3, s17, v3
        v_mul_u32_u24 v3, 1280, v3
        v_lshlrev_b32 v4, 2, v2
        v_add_u32 v3, v3, v4
        ''')
        for j in range(5):
            a(f'buffer_load_dword v{8+j}, v3, s[24:27], 0 offen offset:{256*j}')
        a(f'''
        v_lshlrev_b32 v4, 5, v2
        v_lshlrev_b32 v5, 2, v1
        v_add_u32 v4, v4, v5
        ''')
        for j in range(5):
            a(f'ds_read_u16 v{40+2*j}, v4 offset:{2048*j + 2*rr}')
            a(f'ds_read_u16 v{41+2*j}, v4 offset:{2048*j + 16 + 2*rr}')
        a('s_waitcnt vmcnt(0) lgkmcnt(0)')
        xs = list(range(16, 26))
        for j in range(5):
            a.unpack(16+2*j, 17+2*j, 8+j)
        for j in range(10):
            a(f'v_lshlrev_b32 v{40+j}, 16, v{40+j}')
        qs = list(range(28, 38))
        ln_rows(xs, 640, qs, 56, None)
        for i in range(0, 10, 2):
            a(f'''
            v_mul_f32 v{qs[i]}, v{qs[i]}, v{40+i}
            v_mul_f32 v{qs[i+1]}, v{qs[i+1]}, v{41+i}
            ''')
            a.rnd2(qs[i], qs[i+1], 56)
            a(f'''
            v_add_f32 v{xs[i]}, v{xs[i]}, v{qs[i]}
            v_add_f32 v{xs[i+1]}, v{xs[i+1]}, v{qs[i+1]}
            ''')
            a.rnd2(xs[i], xs[i+1], 56)
            a(f'buffer_store_dword v56, v3, s[32:35], 0 offen offset:{256*(i//2)}')
            a('s_nop 1')
        ln_rows(xs, 640, qs, 56, None)
        for i in range(0, 10, 2):
            a(f'v_cvt_pk_bf16_f32 v{8+i//2}, v{qs[i]}, v{qs[i+1]}')
            a(f'buffer_store_dword v{8+i//2}, v3, s[36:39], 0 offen offset:{256*(i//2)}')
        a('s_waitcnt vmcnt(0)')
    a.label(done)
    a('s_endpgm')
    a.kernels.append((k, 64, 56, 64))

def gen_lnz():
    k = 'lnz_kernel'
    a.begin(k)
    a(f'''
    s_cmp_ge_u32 s2, 256
    s_cbranch_scc1 lnz_done
    s_load_dwordx2 s[14:15], s[0:1], {WS}
    s_waitcnt lgkmcnt(0)
    ''')
    a.srd(24, 14, 7077888, ZZ)
    a.srd(28, 14, 3538944, Z2T)
    a('''
    v_lshrrev_b32 v1, 6, v0
    v_and_b32 v2, 63, v0
    ''')
    for rr in range(2):
        a(f'''
        s_lshl_b32 s17, s2, 3
        s_add_u32 s17, s17, {rr}
        v_lshlrev_b32 v3, 1, v1
        v_add_u32 v3, s17, v3
        v_mul_u32_u24 v3, 3456, v3
        v_lshlrev_b32 v4, 2, v2
        v_add_u32 v3, v3, v4
        v_mov_b32 v14, 0
        ''')
        for j in range(6):
            a(f'buffer_load_dword v{8+j}, v3, s[24:27], 0 offen offset:{1728 + 256*j}')
        a(f'''
        v_cmp_gt_u32 vcc, 48, v2
        s_and_saveexec_b64 s[40:41], vcc
        buffer_load_dword v14, v3, s[24:27], 0 offen offset:{1728 + 256*6}
        s_mov_b64 exec, s[40:41]
        s_waitcnt vmcnt(0)
        ''')
        xs = list(range(16, 30))
        for j in range(7):
            a.unpack(16+2*j, 17+2*j, 8+j)
        t0, t1, t2, t3 = 56, 57, 58, 59
        a(f'v_mov_b32 v{t0}, v16')
        for v in xs[1:]:
            a(f'v_add_f32 v{t0}, v{t0}, v{v}')
        a.wave_sum(t0, t1, 50)
        a(f'''
        v_mov_b32 v{t0}, {1.0/864!r}
        v_mul_f32 v{t2}, s50, v{t0}
        v_mov_b32 v{t0}, 0
        ''')
        for v in xs[:12]:
            a(f'v_sub_f32 v{t1}, v{v}, v{t2}')
            a(f'v_fmac_f32 v{t0}, v{t1}, v{t1}')
        a(f'''
        v_cmp_gt_u32 vcc, 48, v2
        v_sub_f32 v{t1}, v28, v{t2}
        v_mul_f32 v{t1}, v{t1}, v{t1}
        v_sub_f32 v{t3}, v29, v{t2}
        v_fmac_f32 v{t1}, v{t3}, v{t3}
        v_cndmask_b32 v{t1}, 0, v{t1}, vcc
        v_add_f32 v{t0}, v{t0}, v{t1}
        ''')
        a.wave_sum(t0, t1, 51)
        a(f'''
        v_mov_b32 v{t0}, {1.0/864!r}
        v_mul_f32 v{t3}, s51, v{t0}
        ''')
        a.rnd2(t2, t3, t0)
        a(f'''
        v_add_f32 v{t3}, 0x3727c5ac, v{t3}
        v_cvt_pk_bf16_f32 v{t0}, v{t3}, v{t3}
        v_lshlrev_b32 v{t3}, 16, v{t0}
        v_sqrt_f32 v{t3}, v{t3}
        s_nop 0
        v_cvt_pk_bf16_f32 v{t0}, v{t3}, v{t3}
        v_lshlrev_b32 v{t3}, 16, v{t0}
        v_rcp_f32 v{t1}, v{t3}
        s_nop 0
        v_fma_f32 v{t0}, -v{t3}, v{t1}, 2.0
        v_mul_f32 v{t1}, v{t1}, v{t0}
        ''')
        a(f'''
        v_lshlrev_b32 v4, 5, v2
        v_lshlrev_b32 v5, 2, v1
        v_add_u32 v4, v4, v5
        ''')
        for j in range(7):
            o0, o1 = 40, 41
            a(f'''
            v_sub_f32 v{o0}, v{xs[2*j]}, v{t2}
            v_sub_f32 v{o1}, v{xs[2*j+1]}, v{t2}
            ''')
            a.rnd2(o0, o1, t0)
            a(f'''
            v_mul_f32 v60, v{o0}, v{t1}
            v_mul_f32 v61, v{o1}, v{t1}
            v_fma_f32 v{t0}, -v60, v{t3}, v{o0}
            v_fma_f32 v{o0}, v{t0}, v{t1}, v60
            v_fma_f32 v{t0}, -v61, v{t3}, v{o1}
            v_fma_f32 v{o1}, v{t0}, v{t1}, v61
            v_cvt_pk_bf16_f32 v{42+j}, v{o0}, v{o1}
            ds_write_b16 v4, v{42+j} offset:{2048*j + 2*rr}
            ds_write_b16_d16_hi v4, v{42+j} offset:{2048*j + 16 + 2*rr}
            ''')
    a('''
    s_waitcnt lgkmcnt(0)
    s_barrier
    v_lshlrev_b32 v4, 4, v0
    ds_read_b128 v[8:11], v4
    ds_read_b128 v[12:15], v4 offset:4096
    ds_read_b128 v[16:19], v4 offset:8192
    ds_read_b128 v[20:23], v4 offset:12288
    s_lshl_b32 s16, s2, 4
    v_lshlrev_b32 v3, 12, v0
    v_add_u32 v3, s16, v3
    v_add_u32 v5, 0x100000, v3
    v_add_u32 v6, 0x200000, v3
    v_add_u32 v7, 0x300000, v3
    s_waitcnt lgkmcnt(0)
    buffer_store_dwordx4 v[8:11], v3, s[28:31], 0 offen
    buffer_store_dwordx4 v[12:15], v5, s[28:31], 0 offen
    buffer_store_dwordx4 v[16:19], v6, s[28:31], 0 offen
    buffer_store_dwordx4 v[20:23], v7, s[28:31], 0 offen
    ''')
    a.label('lnz_done')
    a('s_endpgm')
    a.kernels.append((k, 64, 56, 64))

def gen_gemm(k, WM, WN, BK, K, M, N, A_src, B_src, epi, D=4):
    BM, BN = 2*WM, 2*WN
    TM, TN = WM//32, WN//32
    nmt, nnt = M//BM, -(-N//BN)
    rowb = BK*2
    assert rowb == 128
    nch = 8
    nsteps = K//BK
    Abytes, Bbytes = BM*rowb, BN*rowb
    stage = Abytes + Bbytes
    nla, nlb = Abytes//4096, Bbytes//4096
    nl = nla + nlb
    done = k + '_done'
    a.begin(k)
    a(f"""
    s_cmp_ge_u32 s2, {nmt*nnt}
    s_cbranch_scc1 {done}
    s_load_dwordx2 s[4:5], s[0:1], {A_src[0]}
    s_load_dwordx2 s[6:7], s[0:1], {B_src[0]}
    s_load_dwordx2 s[14:15], s[0:1], {WS}
    s_load_dwordx2 s[10:11], s[0:1], {B_BSP}
    s_load_dwordx2 s[12:13], s[0:1], {OUT}
    s_and_b32 s16, s2, {nmt-1}
    s_lshr_b32 s17, s2, {nmt.bit_length()-1}
    s_mul_i32 s18, s16, {BM}
    s_mul_i32 s19, s17, {BN}
    v_lshrrev_b32 v1, 6, v0
    v_lshlrev_b32 v1, 10, v1
    s_nop 0
    v_readfirstlane_b32 s22, v1
    s_waitcnt lgkmcnt(0)
    """)
    a.srd(24, 4, M*K*2, A_src[1])
    a.srd(28, 6, N*K*2, B_src[1])
    a(f"""
    v_lshrrev_b32 v1, 3, v0
    v_and_b32 v2, 7, v0
    v_lshrrev_b32 v3, 1, v1
    v_and_b32 v3, 7, v3
    v_xor_b32 v2, v2, v3
    v_lshlrev_b32 v2, 4, v2
    """)
    for i in range(nla):
        a(f"""
        v_add_u32 v3, {32*i}, v1
        v_add_u32 v3, s18, v3
        v_mul_u32_u24 v3, {K*2}, v3
        v_add_u32 v{4+i}, v3, v2
        """)
    for i in range(nlb):
        a(f"""
        v_add_u32 v3, {32*i}, v1
        v_add_u32 v3, s19, v3
        v_mul_u32_u24 v3, {K*2}, v3
        v_add_u32 v{8+i}, v3, v2
        """)
    a("""
    v_lshrrev_b32 v1, 6, v0
    v_and_b32 v2, 63, v0
    v_and_b32 v3, 31, v2
    v_lshrrev_b32 v20, 5, v2
    v_and_b32 v21, 1, v1
    v_lshrrev_b32 v22, 1, v1
    """)
    nkk = BK//16
    AR, BR = 24, 24 + nkk
    for kk in range(nkk):
        for (isB, wsel, W, R) in ((0, 21, WM, AR), (1, 22, WN, BR)):
            a(f"""
            v_mul_u32_u24 v23, {W}, v{wsel}
            v_add_u32 v23, v23, v3
            v_lshrrev_b32 v{R+kk}, 1, v23
            v_and_b32 v{R+kk}, 7, v{R+kk}
            v_xor_b32 v{R+kk}, {2*kk}, v{R+kk}
            v_xor_b32 v{R+kk}, v{R+kk}, v20
            v_lshlrev_b32 v{R+kk}, 4, v{R+kk}
            v_mul_u32_u24 v23, {rowb}, v23
            v_add_u32 v{R+kk}, v{R+kk}, v23
            """)
            if isB:
                a(f'v_add_u32 v{R+kk}, {Abytes}, v{R+kk}')
            a(f'v_add_u32 v{R+kk-12}, 0x10000, v{R+kk}')
    FA = 32
    FB = FA + 4*TM*2
    ACC = 64
    nacc = TM*TN*16
    assert FB + 4*TN*2 <= ACC
    for i in range(nacc):
        a(f'v_mov_b32 v{ACC+i}, 0')
    def gload(step):
        buf = step % D
        a(f's_mov_b32 s20, {step*rowb}')
        for i in range(nl):
            a(f's_add_u32 m0, s22, {buf*stage + i*4096}')
            a('s_nop 0')
            if i < nla:
                a(f'buffer_load_dwordx4 v{4+i}, s[24:27], s20 offen lds')
            else:
                a(f'buffer_load_dwordx4 v{8+i-nla}, s[28:31], s20 offen lds')
    def compute(buf, nxt):
        def rd(kk, s):
            def one(f, R, off):
                if off >= 65536:
                    a(f'ds_read_b128 v[{f}:{f+3}], v{R-12} offset:{off-65536}')
                else:
                    a(f'ds_read_b128 v[{f}:{f+3}], v{R} offset:{off}')
            for i in range(TM):
                one(FA + 4*(s*TM + i), AR+kk, buf*stage + i*32*rowb)
            for i in range(TN):
                one(FB + 4*(s*TN + i), BR+kk, buf*stage + i*32*rowb)
        rd(0, 0)
        if nxt is not None:
            gload(nxt)
        for kk in range(nkk):
            s = kk & 1
            if kk + 1 < nkk:
                rd(kk+1, s ^ 1)
                a(f's_waitcnt lgkmcnt({TM+TN})')
            else:
                a('s_waitcnt lgkmcnt(0)')
            for i in range(TM):
                for j in range(TN):
                    fa = FA + 4*(s*TM + i)
                    fb = FB + 4*(s*TN + j)
                    c = ACC + 16*(i*TN + j)
                    a(f'v_mfma_f32_32x32x16_bf16 v[{c}:{c+15}], v[{fb}:{fb+3}], v[{fa}:{fa+3}], v[{c}:{c+15}]')
    for st in range(min(D-1, nsteps)):
        gload(st)
    for s in range(nsteps):
        last_issued = min(s + D - 2, nsteps - 1)
        a(f's_waitcnt vmcnt({nl*(last_issued - s)})')
        a('s_barrier')
        nxt = s + D - 1 if s + D - 1 < nsteps else None
        compute(s % D, nxt)
    a("""
    s_nop 7
    s_nop 7
    """)
    a(f"""
    v_mul_u32_u24 v4, {WM}, v21
    v_add_u32 v4, v4, v3
    v_add_u32 v4, s18, v4
    v_mul_u32_u24 v5, {WN}, v22
    v_lshlrev_b32 v6, 2, v20
    v_add_u32 v5, v5, v6
    v_add_u32 v5, s19, v5
    """)
    epi(TM, TN, ACC)
    a.label(done)
    a('s_endpgm')
    lds = D*stage
    a.kernels.append((k, ACC + nacc, 56, ACC + nacc))
    return nmt*nnt, lds

def gelu_regs(x, t0, t1):
    a(f'''
    v_mul_f32 v{t0}, v{x}, v{x}
    v_mul_f32 v{t0}, v{t0}, v{x}
    v_fma_f32 v{t0}, v{t0}, s46, v{x}
    v_mul_f32 v{t0}, s47, v{t0}
    v_exp_f32 v{t0}, v{t0}
    s_nop 0
    v_add_f32 v{t0}, 1.0, v{t0}
    v_rcp_f32 v{t0}, v{t0}
    s_nop 0
    v_fma_f32 v{t0}, v{t0}, -2.0, 2.0
    v_mul_f32 v{t1}, 0.5, v{x}
    v_mul_f32 v{x}, v{t1}, v{t0}
    ''')

def epi_gemm1(TM, TN, ACC):
    a.srd(32, 14, 7077888, ZZ)
    a('''
    s_mov_b32 s46, 0x3d372713
    s_mov_b32 s47, 0x40135761
    ''')
    for i in range(TM):
        a(f'''
        v_add_u32 v6, {32*i}, v4
        v_mul_u32_u24 v6, 3456, v6
        ''')
        for j in range(TN):
            for q in range(4):
                c = ACC + 16*(i*TN+j) + 4*q
                a.rnd2(c, c+1, 8)
                a.rnd2(c+2, c+3, 8)
                for e in range(4):
                    gelu_regs(c+e, 8, 9)
                a(f'''
                v_cvt_pk_bf16_f32 v10, v{c}, v{c+1}
                v_cvt_pk_bf16_f32 v11, v{c+2}, v{c+3}
                v_add_u32 v7, {32*j+8*q}, v5
                v_cmp_gt_u32 vcc, 1728, v7
                v_lshl_add_u32 v7, v7, 1, v6
                s_and_saveexec_b64 s[40:41], vcc
                buffer_store_dwordx2 v[10:11], v7, s[32:35], 0 offen
                s_mov_b64 exec, s[40:41]
                s_nop 1
                ''')

def epi_gemm2(TM, TN, ACC):
    a.srd(32, 14, 7077888, ZZ)
    a.srd(36, 14, 3670016, UU)
    a.srd(44, 10, 4096)
    for i in range(TM):
        a(f'''
        v_add_u32 v6, {32*i}, v4
        v_lshlrev_b32 v7, 1, v6
        buffer_load_ushort v12, v7, s[44:47], 0 offen
        v_mul_u32_u24 v13, 3456, v6
        v_mul_u32_u24 v6, 1792, v6
        s_waitcnt vmcnt(0)
        v_lshlrev_b32 v12, 16, v12
        ''')
        for j in range(TN):
            for q in range(4):
                c = ACC + 16*(i*TN+j) + 4*q
                a(f'''
                v_add_u32 v7, {32*j+8*q}, v5
                v_cmp_gt_u32 vcc, 864, v7
                v_lshl_add_u32 v14, v7, 1, v13
                v_lshl_add_u32 v7, v7, 1, v6
                v_mov_b32 v16, 0
                v_mov_b32 v17, 0
                s_and_saveexec_b64 s[40:41], vcc
                buffer_load_dwordx2 v[16:17], v14, s[32:35], 0 offen
                s_mov_b64 exec, s[40:41]
                ''')
                a.rnd2(c, c+1, 8)
                a.rnd2(c+2, c+3, 8)
                for e in range(4):
                    a(f'v_add_f32 v{c+e}, v{c+e}, v12')
                a.rnd2(c, c+1, 8)
                a.rnd2(c+2, c+3, 8)
                a('s_waitcnt vmcnt(0)')
                a.unpack(18, 19, 16)
                a.unpack(8, 9, 17)
                a(f'''
                v_mul_f32 v18, v18, v{c}
                v_mul_f32 v19, v19, v{c+1}
                v_mul_f32 v8, v8, v{c+2}
                v_mul_f32 v9, v9, v{c+3}
                v_cvt_pk_bf16_f32 v10, v18, v19
                v_cvt_pk_bf16_f32 v11, v8, v9
                buffer_store_dwordx2 v[10:11], v7, s[36:39], 0 offen
                s_nop 1
                ''')

def make_epi_gemm3(xin_off, out_ws_off):
    def epi(TM, TN, ACC):
        a.srd(32, 14, 2621440, xin_off)
        if out_ws_off is None:
            a.srd(36, 12, 2621440)
        else:
            a.srd(36, 14, 2621440, out_ws_off)
        for i in range(TM):
            a(f'''
            v_add_u32 v6, {32*i}, v4
            v_mul_u32_u24 v6, 1280, v6
            ''')
            for j in range(TN):
                for q in range(4):
                    c = ACC + 16*(i*TN+j) + 4*q
                    a(f'''
                    v_add_u32 v7, {32*j+8*q}, v5
                    v_lshl_add_u32 v7, v7, 1, v6
                    buffer_load_dwordx2 v[16:17], v7, s[32:35], 0 offen
                    ''')
                    a.rnd2(c, c+1, 8)
                    a.rnd2(c+2, c+3, 8)
                    a('s_waitcnt vmcnt(0)')
                    a.unpack(18, 19, 16)
                    a.unpack(8, 9, 17)
                    a(f'''
                    v_add_f32 v18, v18, v{c}
                    v_add_f32 v19, v19, v{c+1}
                    v_add_f32 v8, v8, v{c+2}
                    v_add_f32 v9, v9, v{c+3}
                    v_cvt_pk_bf16_f32 v10, v18, v19
                    v_cvt_pk_bf16_f32 v11, v8, v9
                    buffer_store_dwordx2 v[10:11], v7, s[36:39], 0 offen
                    s_nop 1
                    ''')
    return epi

gen_prep()
gen_conv()
gen_row('rowa_kernel', A_Q, 0, X1)
gen_row('rowb_kernel', WS, X2, X3)
gen_lnz()
g1, l1 = gen_gemm('gemm1_kernel', 64, 32, 64, 640, 2048, 1728, (WS, HH), (WS, WINT), epi_gemm1, D=3)
g2, l2 = gen_gemm('gemm2_kernel', 64, 32, 64, 2048, 2048, 864, (B_WSP, 0), (WS, Z2T), epi_gemm2)
g3, l3 = gen_gemm('gemm3a_kernel', 32, 32, 64, 896, 2048, 640, (WS, UU), (WS, WOUTT), make_epi_gemm3(X1, X2))
g3, l3 = gen_gemm('gemm3b_kernel', 32, 32, 64, 896, 2048, 640, (WS, UU), (WS, WOUTT), make_epi_gemm3(X3, None))

launches = [
    ('prep_kernel', 1460, 5120),
    ('conv_kernel', 640, KVL + 9216),
    ('rowa_kernel', 256, 12288),
    ('gemm1_kernel', g1, l1),
    ('lnz_kernel', 256, 16384),
    ('gemm2_kernel', g2, l2),
    ('gemm3a_kernel', g3, l3),
    ('rowb_kernel', 256, 12288),
    ('gemm1_kernel', g1, l1),
    ('lnz_kernel', 256, 16384),
    ('gemm2_kernel', g2, l2),
    ('gemm3b_kernel', g3, l3),
]

ref = open('cdna_kernels/' + NAME + '.s.ref').read().split('\n')
head = [l for l in ref if l.startswith(';') and '@launch' not in l]
out = head[:]
for (k, g, lds) in launches:
    out.append(f'; @launch kernel={k} grid=({g},1,1) block=(256,1,1) lds={lds}')
out.append('.amdgcn_target "amdgcn-amd-amdhsa--gfx950"')
out.append('.text')
out += a.L
out.append('.section .rodata,"a"')
for (k, v, s, acc) in a.kernels:
    out.append('.p2align 6')
    out.append(f'.amdhsa_kernel {k}')
    out.append(f'  .amdhsa_next_free_vgpr {v}')
    out.append(f'  .amdhsa_next_free_sgpr {s}')
    out.append(f'  .amdhsa_accum_offset {((acc+3)//4)*4}')
    out.append('  .amdhsa_group_segment_fixed_size 0')
    out.append('  .amdhsa_kernarg_size 112')
    out.append('  .amdhsa_user_sgpr_count 2')
    out.append('  .amdhsa_user_sgpr_kernarg_segment_ptr 1')
    out.append('  .amdhsa_system_sgpr_workgroup_id_x 1')
    out.append('.end_amdhsa_kernel')
open('cdna_kernels/' + NAME + '.s', 'w').write('\n'.join(out) + '\n')
print('ok', len(out), 'lines', g1, l1, g2, l2, g3, l3)
```

```python
NAME = "interleave_layers__ssm_conv_h3__mixer_gmlp__prompt"

KVR = 0x0
YYT = 0x300000
WINT = 0x600000
WOUTT = 0x900000
X1 = 0xB00000
X2 = 0xE00000
X3 = 0x1100000
HH = 0x1400000
ZZ = 0x1700000
Z2T = 0x1E00000
UU = 0x2200000

A_Q, A_K, A_V, A_SK, A_SSMK, A_D, B_X, B_WIN, B_WSP, B_BSP, B_WOUT, OUT, DBG, WS = [8*i for i in range(14)]

class Asm:
    def __init__(self):
        self.L = []
        self.kernels = []
        self.launches = []
        self.uid = 0
    def __call__(self, s):
        for line in s.strip().split('\n'):
            self.L.append('    ' + line.strip())
    def label(self, l):
        self.L.append(l + ':')
    def newlabel(self, p='L'):
        self.uid += 1
        return f'{p}_{self.uid}'
    def begin(self, label):
        self.L.append('.globl ' + label)
        self.L.append('.p2align 8')
        self.L.append(f'.type {label},@function')
        self.label(label)
    def srd(self, d, p, nbytes, off=0):
        if off:
            self(f's_add_u32 s{d}, s{p}, {off}')
            self(f's_addc_u32 s{d+1}, s{p+1}, 0')
        else:
            self(f's_mov_b32 s{d}, s{p}')
            self(f's_mov_b32 s{d+1}, s{p+1}')
        self(f's_mov_b32 s{d+2}, {nbytes}')
        self(f's_mov_b32 s{d+3}, 0x00020000')
    def rnd2(self, a, b, t):
        self(f'v_cvt_pk_bf16_f32 v{t}, v{a}, v{b}')
        self(f'v_lshlrev_b32 v{a}, 16, v{t}')
        self(f'v_and_b32 v{b}, 0xffff0000, v{t}')
    def unpack(self, lo, hi, src):
        self(f'v_lshlrev_b32 v{lo}, 16, v{src}')
        self(f'v_and_b32 v{hi}, 0xffff0000, v{src}')
    def wave_sum(self, v, t, sdst):
        self('s_nop 1')
        self(f'v_add_f32_dpp v{t}, v{v}, v{v} quad_perm:[1,0,3,2] row_mask:0xf bank_mask:0xf')
        self('s_nop 1')
        self(f'v_add_f32_dpp v{v}, v{t}, v{t} quad_perm:[2,3,0,1] row_mask:0xf bank_mask:0xf')
        self('s_nop 1')
        self(f'v_add_f32_dpp v{t}, v{v}, v{v} row_half_mirror row_mask:0xf bank_mask:0xf')
        self('s_nop 1')
        self(f'v_add_f32_dpp v{v}, v{t}, v{t} row_mirror row_mask:0xf bank_mask:0xf')
        self('s_nop 0')
        self(f'v_readlane_b32 s52, v{v}, 16')
        self(f'v_readlane_b32 s53, v{v}, 32')
        self(f'v_readlane_b32 s54, v{v}, 48')
        self('s_nop 1')
        self(f'v_add_f32 v{v}, s52, v{v}')
        self(f'v_add_f32 v{v}, s53, v{v}')
        self(f'v_add_f32 v{v}, s54, v{v}')
        self('s_nop 0')
        self(f'v_readlane_b32 s{sdst}, v{v}, 0')
        self('s_nop 1')

a = Asm()

def gen_prep():
    k = 'prep_kernel'
    a.begin(k)
    a(f'''
    s_cmp_ge_u32 s2, 1460
    s_cbranch_scc1 prep_done
    s_load_dwordx2 s[4:5], s[0:1], {A_K}
    s_load_dwordx2 s[6:7], s[0:1], {A_V}
    s_load_dwordx2 s[8:9], s[0:1], {A_SK}
    s_load_dwordx2 s[10:11], s[0:1], {B_WIN}
    s_load_dwordx2 s[12:13], s[0:1], {B_WOUT}
    s_load_dwordx2 s[14:15], s[0:1], {WS}
    v_lshrrev_b32 v1, 3, v0
    v_and_b32 v2, 7, v0
    s_waitcnt lgkmcnt(0)
    s_cmp_ge_u32 s2, 640
    s_cbranch_scc1 prep_tr
    ''')
    a(f'''
    s_mov_b32 s16, 429496730
    s_mul_hi_u32 s17, s2, s16
    s_mul_i32 s18, s17, 10
    s_sub_u32 s18, s2, s18
    s_lshl_b32 s19, s17, 5
    s_lshl_b32 s20, s18, 6
    ''')
    a.srd(24, 4, 2621440)
    a.srd(28, 6, 2621440)
    a.srd(32, 8, 5120)
    a.srd(36, 14, 2621440, KVR)
    a(f'''
    v_add_u32 v3, s19, v1
    v_mul_u32_u24 v3, 1280, v3
    v_lshlrev_b32 v4, 4, v2
    v_add_u32 v3, v3, v4
    s_lshl_b32 s21, s20, 1
    v_add_u32 v3, s21, v3
    v_subrev_u32 v5, 1280, v3
    v_subrev_u32 v6, 2560, v3
    v_subrev_u32 v7, 3840, v3
    buffer_load_dwordx4 v[8:11], v3, s[24:27], 0 offen
    buffer_load_dwordx4 v[12:15], v5, s[24:27], 0 offen
    buffer_load_dwordx4 v[16:19], v6, s[24:27], 0 offen
    buffer_load_dwordx4 v[20:23], v7, s[24:27], 0 offen
    buffer_load_dwordx4 v[24:27], v3, s[28:31], 0 offen
    v_lshlrev_b32 v4, 6, v2
    s_lshl_b32 s21, s20, 3
    v_add_u32 v4, s21, v4
    buffer_load_dwordx4 v[28:31], v4, s[32:35], 0 offen
    buffer_load_dwordx4 v[32:35], v4, s[32:35], 0 offen offset:16
    buffer_load_dwordx4 v[36:39], v4, s[32:35], 0 offen offset:32
    buffer_load_dwordx4 v[40:43], v4, s[32:35], 0 offen offset:48
    ''')
    a('''
    v_mul_u32_u24 v44, 640, v2
    v_sub_u32 v45, 31, v1
    v_lshlrev_b32 v45, 1, v45
    v_add_u32 v44, v44, v45
    s_waitcnt vmcnt(0)
    ''')
    for e in range(8):
        w = e // 2
        def g(dst, base):
            if e % 2 == 0:
                a(f'v_lshlrev_b32 v{dst}, 16, v{base+w}')
            else:
                a(f'v_and_b32 v{dst}, 0xffff0000, v{base+w}')
        g(50, 8); g(51, 12); g(52, 16); g(53, 20); g(54, 24)
        a.unpack(55, 56, 28 + 2*e)
        a.unpack(57, 58, 29 + 2*e)
        a(f'''
        v_mul_f32 v60, v53, v58
        v_mul_f32 v61, v52, v57
        ''')
        a.rnd2(60, 61, 62)
        a(f'''
        v_add_f32 v60, v60, v61
        v_mul_f32 v61, v51, v56
        ''')
        a.rnd2(60, 61, 62)
        a(f'''
        v_add_f32 v60, v60, v61
        v_mul_f32 v61, v50, v55
        ''')
        a.rnd2(60, 61, 62)
        a(f'''
        v_add_f32 v60, v60, v61
        v_cvt_pk_bf16_f32 v62, v60, v60
        v_lshlrev_b32 v60, 16, v62
        v_mul_f32 v60, v60, v54
        v_cvt_pk_bf16_f32 v62, v60, v60
        ds_write_b16 v44, v62 offset:{80*e}
        ''')
    a(f'''
    s_waitcnt lgkmcnt(0)
    s_barrier
    v_lshrrev_b32 v45, 2, v0
    v_and_b32 v46, 3, v0
    v_mul_u32_u24 v47, 80, v45
    v_lshlrev_b32 v48, 4, v46
    v_add_u32 v47, v47, v48
    ds_read_b128 v[8:11], v47
    v_add_u32 v45, s20, v45
    v_lshlrev_b32 v45, 12, v45
    s_sub_u32 s21, 2016, s19
    s_lshl_b32 s21, s21, 1
    v_add_u32 v45, s21, v45
    v_add_u32 v45, v45, v48
    s_waitcnt lgkmcnt(0)
    buffer_store_dwordx4 v[8:11], v45, s[36:39], 0 offen
    s_branch prep_done
    ''')
    a.label('prep_tr')
    a('''
    s_sub_u32 s16, s2, 640
    s_cmp_ge_u32 s16, 540
    s_cbranch_scc1 prep_tr2
    ''')
    a(f'''
    s_mov_b32 s17, 159072863
    s_mul_hi_u32 s18, s16, s17
    s_mul_i32 s19, s18, 27
    s_sub_u32 s19, s16, s19
    s_mov_b32 s20, 640
    s_mov_b32 s21, 1728
    ''')
    a.srd(24, 10, 2211840)
    a.srd(28, 14, 2211840, WINT)
    a('s_branch prep_tr3')
    a.label('prep_tr2')
    a(f'''
    s_sub_u32 s16, s16, 540
    s_mov_b32 s17, 429496730
    s_mul_hi_u32 s18, s16, s17
    s_mul_i32 s19, s18, 10
    s_sub_u32 s19, s16, s19
    s_mov_b32 s20, 896
    s_mov_b32 s21, 640
    ''')
    a.srd(24, 12, 1105920)
    a.srd(28, 14, 1146880, WOUTT)
    a.label('prep_tr3')
    a('''
    s_lshl_b32 s22, s18, 5
    s_lshl_b32 s23, s19, 6
    v_add_u32 v3, s22, v1
    v_mul_lo_u32 v3, v3, s21
    v_lshlrev_b32 v4, 3, v2
    v_add_u32 v3, v3, v4
    v_add_u32 v3, s23, v3
    v_lshlrev_b32 v3, 1, v3
    buffer_load_dwordx4 v[8:11], v3, s[24:27], 0 offen
    v_mul_u32_u24 v44, 640, v2
    v_lshlrev_b32 v45, 1, v1
    v_add_u32 v44, v44, v45
    s_waitcnt vmcnt(0)
    ''')
    for e in range(8):
        if e % 2 == 0:
            a(f'ds_write_b16 v44, v{8+e//2} offset:{80*e}')
        else:
            a(f'ds_write_b16_d16_hi v44, v{8+e//2} offset:{80*e}')
    a('''
    s_waitcnt lgkmcnt(0)
    s_barrier
    v_lshrrev_b32 v45, 2, v0
    v_and_b32 v46, 3, v0
    v_mul_u32_u24 v47, 80, v45
    v_lshlrev_b32 v48, 4, v46
    v_add_u32 v47, v47, v48
    ds_read_b128 v[8:11], v47
    v_add_u32 v45, s23, v45
    v_mul_lo_u32 v45, v45, s20
    v_add_u32 v45, s22, v45
    v_lshlrev_b32 v45, 1, v45
    v_add_u32 v45, v45, v48
    s_waitcnt lgkmcnt(0)
    buffer_store_dwordx4 v[8:11], v45, s[28:31], 0 offen
    ''')
    a.label('prep_done')
    a('s_endpgm')
    a.kernels.append((k, 64, 48, 64))

HP = 4256
KVL = 8 * HP
def gen_conv():
    k = 'conv_kernel'
    a.begin(k)
    a(f'''
    s_cmp_ge_u32 s2, 640
    s_cbranch_scc1 conv_done
    s_load_dwordx2 s[4:5], s[0:1], {A_SSMK}
    s_load_dwordx2 s[6:7], s[0:1], {A_D}
    s_load_dwordx2 s[14:15], s[0:1], {WS}
    s_lshl_b32 s16, s2, 12
    s_waitcnt lgkmcnt(0)
    s_add_u32 s4, s4, s16
    s_addc_u32 s5, s5, 0
    s_add_u32 s8, s14, s16
    s_addc_u32 s9, s15, 0
    ''')
    a.srd(24, 4, 4096)
    a.srd(28, 8, 4096, KVR)
    a.srd(32, 8, 4096, YYT)
    a.srd(36, 6, 1280)
    def fill(ci_reg):
        a(f'''
        v_lshlrev_b32 v3, 4, v{ci_reg}
        v_subrev_u32 v4, 128, v3
        v_subrev_u32 v5, 112, v3
        buffer_load_dwordx4 v[8:11], v4, s[24:27], 0 offen
        buffer_load_dwordx4 v[12:15], v5, s[24:27], 0 offen
        s_waitcnt vmcnt(0)
        ''')
        for c in range(8):
            if c % 2 == 0:
                j = c // 2
                if j == 0:
                    a(f'ds_write_b128 v3, v[8:11] offset:{c*HP}')
                else:
                    for i in range(4):
                        a(f'v_mov_b32 v{16+i}, v{8+j+i}')
                    a(f'ds_write_b128 v3, v[16:19] offset:{c*HP}')
            else:
                j = (c - 1) // 2
                base = 20 if (c % 4 == 1) else 24
                for i in range(4):
                    a(f'v_alignbit_b32 v{base+i}, v{8+j+i+1}, v{8+j+i}, 16')
                a(f'ds_write_b128 v3, v[{base}:{base+3}] offset:{c*HP}')
    fill(0)
    a('''
    v_add_u32 v2, 256, v0
    v_cmp_gt_u32 vcc, 265, v2
    s_and_saveexec_b64 s[40:41], vcc
    s_cbranch_execz conv_f2
    ''')
    fill(2)
    a.label('conv_f2')
    a('s_mov_b64 exec, s[40:41]')
    a(f'''
    v_lshlrev_b32 v3, 4, v0
    buffer_load_dwordx4 v[8:11], v3, s[28:31], 0 offen
    s_lshl_b32 s17, s2, 1
    v_mov_b32 v4, s17
    buffer_load_ushort v30, v4, s[36:39], 0 offen
    v_mov_b32 v12, 0
    v_mov_b32 v13, 0
    v_mov_b32 v14, 0
    v_mov_b32 v15, 0
    v_lshrrev_b32 v5, 3, v0
    v_lshlrev_b32 v5, 4, v5
    v_add_u32 v3, v3, v5
    ds_write_b128 v3, v[12:15] offset:{KVL+4608}
    s_waitcnt vmcnt(0)
    ds_write_b128 v3, v[8:11] offset:{KVL}
    v_lshlrev_b32 v30, 16, v30
    ''')
    a('''
    v_lshrrev_b32 v1, 6, v0
    v_and_b32 v2, 63, v0
    v_and_b32 v3, 31, v2
    v_lshrrev_b32 v4, 5, v2
    ''')
    for r in range(2):
        a(f'''
        v_lshlrev_b32 v5, 1, v3
        v_add_u32 v5, {r+1}, v5
        v_and_b32 v6, 7, v5
        v_mul_u32_u24 v6, {HP}, v6
        v_and_b32 v5, 0x78, v5
        v_lshlrev_b32 v7, 9, v1
        v_add_u32 v5, v5, v7
        v_lshlrev_b32 v7, 3, v4
        v_add_u32 v5, v5, v7
        v_lshlrev_b32 v5, 1, v5
        v_add_u32 v{32+r}, v5, v6
        ''')
    a(f'''
    v_lshlrev_b32 v5, 6, v3
    v_sub_u32 v5, 1984, v5
    v_lshlrev_b32 v7, 9, v1
    v_add_u32 v5, v5, v7
    v_lshlrev_b32 v7, 3, v4
    v_add_u32 v5, v5, v7
    v_lshrrev_b32 v6, 6, v5
    v_lshlrev_b32 v6, 4, v6
    v_lshlrev_b32 v5, 1, v5
    v_add_u32 v5, v5, v6
    v_add_u32 v34, {KVL}, v5
    ''')
    for i in range(32):
        a(f'v_mov_b32 v{64+i}, 0')
    a('''
    s_waitcnt lgkmcnt(0)
    s_barrier
    ''')
    def rd(step, s):
        b = 40 + 12*s
        a(f'''
        ds_read_b128 v[{b}:{b+3}], v32 offset:{32*step}
        ds_read_b128 v[{b+4}:{b+7}], v33 offset:{32*step}
        ds_read_b128 v[{b+8}:{b+11}], v34 offset:{32*step + 16*(step>>2)}
        ''')
    rd(0, 0)
    for step in range(32):
        s = step & 1
        if step + 1 < 32:
            rd(step + 1, s ^ 1)
            a('s_waitcnt lgkmcnt(3)')
        else:
            a('s_waitcnt lgkmcnt(0)')
        b = 40 + 12*s
        a(f'''
        v_mfma_f32_32x32x16_bf16 v[64:79], v[{b}:{b+3}], v[{b+8}:{b+11}], v[64:79]
        v_mfma_f32_32x32x16_bf16 v[80:95], v[{b+4}:{b+7}], v[{b+8}:{b+11}], v[80:95]
        ''')
    a('''
    s_barrier
    s_nop 7
    s_nop 7
    v_lshlrev_b32 v5, 13, v1
    v_lshlrev_b32 v6, 2, v2
    v_add_u32 v5, v5, v6
    ''')
    for r in range(2):
        for j in range(16):
            a(f'ds_write_b32 v5, v{64+16*r+j} offset:{r*4096+j*256}')
    a(f'''
    v_and_b32 v5, 7, v0
    v_lshrrev_b32 v5, 1, v5
    v_lshlrev_b32 v5, 10, v5
    v_lshrrev_b32 v6, 3, v0
    v_and_b32 v7, 1, v0
    v_lshlrev_b32 v7, 5, v7
    v_add_u32 v6, v6, v7
    v_lshlrev_b32 v6, 2, v6
    v_add_u32 v5, v5, v6
    v_sub_u32 v6, 255, v0
    v_lshrrev_b32 v7, 3, v6
    v_add_u32 v6, v6, v7
    v_lshlrev_b32 v6, 4, v6
    v_add_u32 v6, {KVL}, v6
    s_waitcnt lgkmcnt(0)
    s_barrier
    ds_read_b128 v[8:11], v6
    ''')
    for e in range(8):
        for w in range(4):
            a(f'ds_read_b32 v{40+4*e+w}, v5 offset:{w*8192 + (e&1)*4096 + (e>>1)*256}')
    a('s_waitcnt lgkmcnt(0)')
    for e in range(8):
        b = 40 + 4*e
        a(f'''
        v_add_f32 v{b}, v{b}, v{b+1}
        v_add_f32 v{b+2}, v{b+2}, v{b+3}
        v_add_f32 v{b}, v{b}, v{b+2}
        ''')
    for e in range(0, 8, 2):
        b0, b1 = 40 + 4*e, 40 + 4*(e+1)
        a.rnd2(b0, b1, 12)
        p0, p1 = 7 - e, 7 - (e+1)
        a(f'''
        v_and_b32 v13, 0xffff0000, v{8 + p0//2}
        v_lshlrev_b32 v14, 16, v{8 + p1//2}
        v_mul_f32 v13, v13, v30
        v_mul_f32 v14, v14, v30
        ''')
        a.rnd2(13, 14, 12)
        a(f'''
        v_add_f32 v13, v13, v{b0}
        v_add_f32 v14, v14, v{b1}
        v_cvt_pk_bf16_f32 v{16+e//2}, v13, v14
        ''')
    a('''
    v_lshlrev_b32 v3, 4, v0
    buffer_store_dwordx4 v[16:19], v3, s[32:35], 0 offen
    ''')
    a.label('conv_done')
    a('s_endpgm')
    a.kernels.append((k, 96, 48, 96))

def ln_rows(vals, n_elems, outs, tmp, neps_s):
    t0, t1, t2, t3 = tmp, tmp+1, tmp+2, tmp+3
    a(f'v_mov_b32 v{t0}, v{vals[0]}')
    for v in vals[1:]:
        a(f'v_add_f32 v{t0}, v{t0}, v{v}')
    a.wave_sum(t0, t1, 50)
    a(f'''
    v_mov_b32 v{t0}, {1.0/n_elems!r}
    v_mul_f32 v{t2}, s50, v{t0}
    ''')
    a(f'v_sub_f32 v{t1}, v{vals[0]}, v{t2}')
    a(f'v_mul_f32 v{t0}, v{t1}, v{t1}')
    for v in vals[1:]:
        a(f'v_sub_f32 v{t1}, v{v}, v{t2}')
        a(f'v_fmac_f32 v{t0}, v{t1}, v{t1}')
    a.wave_sum(t0, t1, 51)
    a(f'''
    v_mov_b32 v{t0}, {1.0/n_elems!r}
    v_mul_f32 v{t3}, s51, v{t0}
    ''')
    a.rnd2(t2, t3, t0)
    a(f'''
    v_add_f32 v{t3}, 0x3727c5ac, v{t3}
    v_cvt_pk_bf16_f32 v{t0}, v{t3}, v{t3}
    v_lshlrev_b32 v{t3}, 16, v{t0}
    v_sqrt_f32 v{t3}, v{t3}
    s_nop 0
    v_cvt_pk_bf16_f32 v{t0}, v{t3}, v{t3}
    v_lshlrev_b32 v{t3}, 16, v{t0}
    v_rcp_f32 v{t1}, v{t3}
    s_nop 0
    ''')
    a(f'''
    v_fma_f32 v{t0}, -v{t3}, v{t1}, 2.0
    v_mul_f32 v{t1}, v{t1}, v{t0}
    ''')
    for i in range(0, len(vals), 2):
        o0, o1 = outs[i], outs[i+1]
        a(f'''
        v_sub_f32 v{o0}, v{vals[i]}, v{t2}
        v_sub_f32 v{o1}, v{vals[i+1]}, v{t2}
        ''')
        a.rnd2(o0, o1, t0)
        a(f'''
        v_mul_f32 v{tmp+4}, v{o0}, v{t1}
        v_mul_f32 v{tmp+5}, v{o1}, v{t1}
        v_fma_f32 v{t0}, -v{tmp+4}, v{t3}, v{o0}
        v_fma_f32 v{o0}, v{t0}, v{t1}, v{tmp+4}
        v_fma_f32 v{t0}, -v{tmp+5}, v{t3}, v{o1}
        v_fma_f32 v{o1}, v{t0}, v{t1}, v{tmp+5}
        ''')
        a.rnd2(o0, o1, t0)

def gen_row(k, xin_arg, xin_off, xout_off):
    a.begin(k)
    done = k + '_done'
    a(f'''
    s_cmp_ge_u32 s2, 256
    s_cbranch_scc1 {done}
    s_load_dwordx2 s[4:5], s[0:1], {xin_arg}
    s_load_dwordx2 s[14:15], s[0:1], {WS}
    s_waitcnt lgkmcnt(0)
    ''')
    a.srd(24, 4, 2621440, xin_off)
    a.srd(28, 14, 2621440, YYT)
    a.srd(32, 14, 2621440, xout_off)
    a.srd(36, 14, 2621440, HH)
    a('''
    v_lshrrev_b32 v1, 6, v0
    v_and_b32 v2, 63, v0
    ''')
    for rr in range(2):
        a(f'''
        s_lshl_b32 s17, s2, 3
        s_add_u32 s17, s17, {rr}
        v_lshlrev_b32 v3, 1, v1
        v_add_u32 v3, s17, v3
        v_mul_u32_u24 v3, 1280, v3
        v_lshlrev_b32 v4, 2, v2
        v_add_u32 v{74+rr}, v3, v4
        ''')
        for j in range(5):
            a(f'buffer_load_dword v{64+5*rr+j}, v{74+rr}, s[24:27], 0 offen offset:{256*j}')
    a('''
    s_lshl_b32 s16, s2, 4
    v_lshlrev_b32 v3, 12, v0
    v_add_u32 v3, s16, v3
    v_add_u32 v4, 0x100000, v3
    v_add_u32 v5, 0x200000, v3
    buffer_load_dwordx4 v[8:11], v3, s[28:31], 0 offen
    buffer_load_dwordx4 v[12:15], v4, s[28:31], 0 offen
    buffer_load_dwordx4 v[16:19], v5, s[28:31], 0 offen
    v_lshlrev_b32 v6, 4, v0
    s_waitcnt vmcnt(0)
    ds_write_b128 v6, v[8:11]
    ds_write_b128 v6, v[12:15] offset:4096
    ds_write_b128 v6, v[16:19] offset:8192
    s_waitcnt lgkmcnt(0)
    s_barrier
    ''')
    for rr in range(2):
        a(f'v_mov_b32 v3, v{74+rr}')
        for j in range(5):
            a(f'v_mov_b32 v{8+j}, v{64+5*rr+j}')
        a(f'''
        v_lshlrev_b32 v4, 5, v2
        v_lshlrev_b32 v5, 2, v1
        v_add_u32 v4, v4, v5
        ''')
        for j in range(5):
            a(f'ds_read_u16 v{40+2*j}, v4 offset:{2048*j + 2*rr}')
            a(f'ds_read_u16 v{41+2*j}, v4 offset:{2048*j + 16 + 2*rr}')
        a('s_waitcnt lgkmcnt(0)')
        xs = list(range(16, 26))
        for j in range(5):
            a.unpack(16+2*j, 17+2*j, 8+j)
        for j in range(10):
            a(f'v_lshlrev_b32 v{40+j}, 16, v{40+j}')
        qs = list(range(28, 38))
        ln_rows(xs, 640, qs, 56, None)
        for i in range(0, 10, 2):
            a(f'''
            v_mul_f32 v{qs[i]}, v{qs[i]}, v{40+i}
            v_mul_f32 v{qs[i+1]}, v{qs[i+1]}, v{41+i}
            ''')
            a.rnd2(qs[i], qs[i+1], 56)
            a(f'''
            v_add_f32 v{xs[i]}, v{xs[i]}, v{qs[i]}
            v_add_f32 v{xs[i+1]}, v{xs[i+1]}, v{qs[i+1]}
            ''')
            a.rnd2(xs[i], xs[i+1], 56)
            a(f'buffer_store_dword v56, v3, s[32:35], 0 offen offset:{256*(i//2)}')
            a('s_nop 1')
        ln_rows(xs, 640, qs, 56, None)
        for i in range(0, 10, 2):
            a(f'v_cvt_pk_bf16_f32 v{8+i//2}, v{qs[i]}, v{qs[i+1]}')
            a(f'buffer_store_dword v{8+i//2}, v3, s[36:39], 0 offen offset:{256*(i//2)}')
        a('s_nop 2')
    a.label(done)
    a('s_endpgm')
    a.kernels.append((k, 80, 56, 80))

def gen_lnz():
    k = 'lnz_kernel'
    a.begin(k)
    a(f'''
    s_cmp_ge_u32 s2, 256
    s_cbranch_scc1 lnz_done
    s_load_dwordx2 s[14:15], s[0:1], {WS}
    s_waitcnt lgkmcnt(0)
    ''')
    a.srd(24, 14, 7077888, ZZ)
    a.srd(28, 14, 3538944, Z2T)
    a('''
    v_lshrrev_b32 v1, 6, v0
    v_and_b32 v2, 63, v0
    ''')
    for rr in range(2):
        a(f'''
        s_lshl_b32 s17, s2, 3
        s_add_u32 s17, s17, {rr}
        v_lshlrev_b32 v3, 1, v1
        v_add_u32 v3, s17, v3
        v_mul_u32_u24 v3, 3456, v3
        v_lshlrev_b32 v4, 2, v2
        v_add_u32 v3, v3, v4
        v_mov_b32 v{64+7*rr+6}, 0
        ''')
        for j in range(6):
            a(f'buffer_load_dword v{64+7*rr+j}, v3, s[24:27], 0 offen offset:{1728 + 256*j}')
        a(f'''
        v_cmp_gt_u32 vcc, 48, v2
        s_and_saveexec_b64 s[40:41], vcc
        buffer_load_dword v{64+7*rr+6}, v3, s[24:27], 0 offen offset:{1728 + 256*6}
        s_mov_b64 exec, s[40:41]
        ''')
    a('s_waitcnt vmcnt(0)')
    for rr in range(2):
        for j in range(7):
            a(f'v_mov_b32 v{8+j}, v{64+7*rr+j}')
        xs = list(range(16, 30))
        for j in range(7):
            a.unpack(16+2*j, 17+2*j, 8+j)
        t0, t1, t2, t3 = 56, 57, 58, 59
        a(f'v_mov_b32 v{t0}, v16')
        for v in xs[1:]:
            a(f'v_add_f32 v{t0}, v{t0}, v{v}')
        a.wave_sum(t0, t1, 50)
        a(f'''
        v_mov_b32 v{t0}, {1.0/864!r}
        v_mul_f32 v{t2}, s50, v{t0}
        v_mov_b32 v{t0}, 0
        ''')
        for v in xs[:12]:
            a(f'v_sub_f32 v{t1}, v{v}, v{t2}')
            a(f'v_fmac_f32 v{t0}, v{t1}, v{t1}')
        a(f'''
        v_cmp_gt_u32 vcc, 48, v2
        v_sub_f32 v{t1}, v28, v{t2}
        v_mul_f32 v{t1}, v{t1}, v{t1}
        v_sub_f32 v{t3}, v29, v{t2}
        v_fmac_f32 v{t1}, v{t3}, v{t3}
        v_cndmask_b32 v{t1}, 0, v{t1}, vcc
        v_add_f32 v{t0}, v{t0}, v{t1}
        ''')
        a.wave_sum(t0, t1, 51)
        a(f'''
        v_mov_b32 v{t0}, {1.0/864!r}
        v_mul_f32 v{t3}, s51, v{t0}
        ''')
        a.rnd2(t2, t3, t0)
        a(f'''
        v_add_f32 v{t3}, 0x3727c5ac, v{t3}
        v_cvt_pk_bf16_f32 v{t0}, v{t3}, v{t3}
        v_lshlrev_b32 v{t3}, 16, v{t0}
        v_sqrt_f32 v{t3}, v{t3}
        s_nop 0
        v_cvt_pk_bf16_f32 v{t0}, v{t3}, v{t3}
        v_lshlrev_b32 v{t3}, 16, v{t0}
        v_rcp_f32 v{t1}, v{t3}
        s_nop 0
        v_fma_f32 v{t0}, -v{t3}, v{t1}, 2.0
        v_mul_f32 v{t1}, v{t1}, v{t0}
        ''')
        a(f'''
        v_lshlrev_b32 v4, 5, v2
        v_lshlrev_b32 v5, 2, v1
        v_add_u32 v4, v4, v5
        ''')
        for j in range(7):
            o0, o1 = 40, 41
            a(f'''
            v_sub_f32 v{o0}, v{xs[2*j]}, v{t2}
            v_sub_f32 v{o1}, v{xs[2*j+1]}, v{t2}
            ''')
            a.rnd2(o0, o1, t0)
            a(f'''
            v_mul_f32 v60, v{o0}, v{t1}
            v_mul_f32 v61, v{o1}, v{t1}
            v_fma_f32 v{t0}, -v60, v{t3}, v{o0}
            v_fma_f32 v{o0}, v{t0}, v{t1}, v60
            v_fma_f32 v{t0}, -v61, v{t3}, v{o1}
            v_fma_f32 v{o1}, v{t0}, v{t1}, v61
            v_cvt_pk_bf16_f32 v{42+j}, v{o0}, v{o1}
            ds_write_b16 v4, v{42+j} offset:{2048*j + 2*rr}
            ds_write_b16_d16_hi v4, v{42+j} offset:{2048*j + 16 + 2*rr}
            ''')
    a('''
    s_waitcnt lgkmcnt(0)
    s_barrier
    v_lshlrev_b32 v4, 4, v0
    ds_read_b128 v[8:11], v4
    ds_read_b128 v[12:15], v4 offset:4096
    ds_read_b128 v[16:19], v4 offset:8192
    ds_read_b128 v[20:23], v4 offset:12288
    s_lshl_b32 s16, s2, 4
    v_lshlrev_b32 v3, 12, v0
    v_add_u32 v3, s16, v3
    v_add_u32 v5, 0x100000, v3
    v_add_u32 v6, 0x200000, v3
    v_add_u32 v7, 0x300000, v3
    s_waitcnt lgkmcnt(0)
    buffer_store_dwordx4 v[8:11], v3, s[28:31], 0 offen
    buffer_store_dwordx4 v[12:15], v5, s[28:31], 0 offen
    buffer_store_dwordx4 v[16:19], v6, s[28:31], 0 offen
    buffer_store_dwordx4 v[20:23], v7, s[28:31], 0 offen
    ''')
    a.label('lnz_done')
    a('s_endpgm')
    a.kernels.append((k, 80, 56, 80))

def gen_gemm(k, WM, WN, BK, K, M, N, A_src, B_src, epi, D=4):
    BM, BN = 2*WM, 2*WN
    TM, TN = WM//32, WN//32
    nmt, nnt = M//BM, -(-N//BN)
    rowb = BK*2
    assert rowb == 128
    nch = 8
    nsteps = K//BK
    Abytes, Bbytes = BM*rowb, BN*rowb
    stage = Abytes + Bbytes
    nla, nlb = Abytes//4096, Bbytes//4096
    nl = nla + nlb
    done = k + '_done'
    a.begin(k)
    a(f"""
    s_cmp_ge_u32 s2, {nmt*nnt}
    s_cbranch_scc1 {done}
    s_load_dwordx2 s[4:5], s[0:1], {A_src[0]}
    s_load_dwordx2 s[6:7], s[0:1], {B_src[0]}
    s_load_dwordx2 s[14:15], s[0:1], {WS}
    s_load_dwordx2 s[10:11], s[0:1], {B_BSP}
    s_load_dwordx2 s[12:13], s[0:1], {OUT}
    s_and_b32 s16, s2, {nmt-1}
    s_lshr_b32 s17, s2, {nmt.bit_length()-1}
    s_mul_i32 s18, s16, {BM}
    s_mul_i32 s19, s17, {BN}
    v_lshrrev_b32 v1, 6, v0
    v_lshlrev_b32 v1, 10, v1
    s_nop 0
    v_readfirstlane_b32 s22, v1
    s_waitcnt lgkmcnt(0)
    """)
    a.srd(24, 4, M*K*2, A_src[1])
    a.srd(28, 6, N*K*2, B_src[1])
    a(f"""
    v_lshrrev_b32 v1, 3, v0
    v_and_b32 v2, 7, v0
    v_lshrrev_b32 v3, 1, v1
    v_and_b32 v3, 7, v3
    v_xor_b32 v2, v2, v3
    v_lshlrev_b32 v2, 4, v2
    """)
    for i in range(nla):
        a(f"""
        v_add_u32 v3, {32*i}, v1
        v_add_u32 v3, s18, v3
        v_mul_u32_u24 v3, {K*2}, v3
        v_add_u32 v{4+i}, v3, v2
        """)
    for i in range(nlb):
        a(f"""
        v_add_u32 v3, {32*i}, v1
        v_add_u32 v3, s19, v3
        v_mul_u32_u24 v3, {K*2}, v3
        v_add_u32 v{8+i}, v3, v2
        """)
    a("""
    v_lshrrev_b32 v1, 6, v0
    v_and_b32 v2, 63, v0
    v_and_b32 v3, 31, v2
    v_lshrrev_b32 v20, 5, v2
    v_and_b32 v21, 1, v1
    v_lshrrev_b32 v22, 1, v1
    """)
    nkk = BK//16
    AR, BR = 24, 24 + nkk
    for kk in range(nkk):
        for (isB, wsel, W, R) in ((0, 21, WM, AR), (1, 22, WN, BR)):
            a(f"""
            v_mul_u32_u24 v23, {W}, v{wsel}
            v_add_u32 v23, v23, v3
            v_lshrrev_b32 v{R+kk}, 1, v23
            v_and_b32 v{R+kk}, 7, v{R+kk}
            v_xor_b32 v{R+kk}, {2*kk}, v{R+kk}
            v_xor_b32 v{R+kk}, v{R+kk}, v20
            v_lshlrev_b32 v{R+kk}, 4, v{R+kk}
            v_mul_u32_u24 v23, {rowb}, v23
            v_add_u32 v{R+kk}, v{R+kk}, v23
            """)
            if isB:
                a(f'v_add_u32 v{R+kk}, {Abytes}, v{R+kk}')
            a(f'v_add_u32 v{R+kk-12}, 0x10000, v{R+kk}')
    FA = 32
    FB = FA + 4*TM*2
    ACC = 64
    nacc = TM*TN*16
    EPR = ACC + nacc
    global G_EPR
    G_EPR = EPR
    assert FB + 4*TN*2 <= ACC
    for i in range(nacc):
        a(f'v_mov_b32 v{ACC+i}, 0')
    def gload(step):
        buf = step % D
        a(f's_mov_b32 s20, {step*rowb}')
        for i in range(nl):
            a(f's_add_u32 m0, s22, {buf*stage + i*4096}')
            a('s_nop 0')
            if i < nla:
                a(f'buffer_load_dwordx4 v{4+i}, s[24:27], s20 offen lds')
            else:
                a(f'buffer_load_dwordx4 v{8+i-nla}, s[28:31], s20 offen lds')
    def compute(buf, nxt):
        def rd(kk, s):
            def one(f, R, off):
                if off >= 65536:
                    a(f'ds_read_b128 v[{f}:{f+3}], v{R-12} offset:{off-65536}')
                else:
                    a(f'ds_read_b128 v[{f}:{f+3}], v{R} offset:{off}')
            for i in range(TM):
                one(FA + 4*(s*TM + i), AR+kk, buf*stage + i*32*rowb)
            for i in range(TN):
                one(FB + 4*(s*TN + i), BR+kk, buf*stage + i*32*rowb)
        rd(0, 0)
        if nxt is not None:
            gload(nxt)
        for kk in range(nkk):
            s = kk & 1
            if kk + 1 < nkk:
                rd(kk+1, s ^ 1)
                a(f's_waitcnt lgkmcnt({TM+TN})')
            else:
                a('s_waitcnt lgkmcnt(0)')
            for i in range(TM):
                for j in range(TN):
                    fa = FA + 4*(s*TM + i)
                    fb = FB + 4*(s*TN + j)
                    c = ACC + 16*(i*TN + j)
                    a(f'v_mfma_f32_32x32x16_bf16 v[{c}:{c+15}], v[{fb}:{fb+3}], v[{fa}:{fa+3}], v[{c}:{c+15}]')
    a(f"""
    v_mul_u32_u24 v4+P, {WM}, v21
    """.replace('v4+P', 'v23'))
    a(f"""
    v_add_u32 v23, v23, v3
    v_add_u32 v{EPR}, s18, v23
    v_mul_u32_u24 v23, {WN}, v22
    v_lshlrev_b32 v{EPR+1}, 2, v20
    v_add_u32 v23, v23, v{EPR+1}
    v_add_u32 v{EPR+1}, s19, v23
    """)
    epi(TM, TN, ACC, True)
    for st in range(min(D-1, nsteps)):
        gload(st)
    for s in range(nsteps):
        last_issued = min(s + D - 2, nsteps - 1)
        a(f's_waitcnt vmcnt({nl*(last_issued - s)})')
        a('s_barrier')
        nxt = s + D - 1 if s + D - 1 < nsteps else None
        compute(s % D, nxt)
    a("""
    s_nop 7
    s_nop 7
    """)
    a(f"""
    v_mov_b32 v4, v{EPR}
    v_mov_b32 v5, v{EPR+1}
    """)
    epi(TM, TN, ACC, False)
    a.label(done)
    a('s_endpgm')
    lds = D*stage
    a.kernels.append((k, EPR + 2 + 40, 56, EPR + 2 + 40))
    return nmt*nnt, lds

def gelu_regs(x, t0, t1):
    a(f'''
    v_mul_f32 v{t0}, v{x}, v{x}
    v_mul_f32 v{t0}, v{t0}, v{x}
    v_fma_f32 v{t0}, v{t0}, s46, v{x}
    v_mul_f32 v{t0}, s47, v{t0}
    v_exp_f32 v{t0}, v{t0}
    s_nop 0
    v_add_f32 v{t0}, 1.0, v{t0}
    v_rcp_f32 v{t0}, v{t0}
    s_nop 0
    v_fma_f32 v{t0}, v{t0}, -2.0, 2.0
    v_mul_f32 v{t1}, 0.5, v{x}
    v_mul_f32 v{x}, v{t1}, v{t0}
    ''')

def epi_gemm1(TM, TN, ACC, pre):
    if pre:
        return
    a.srd(32, 14, 7077888, ZZ)
    a("""
    s_mov_b32 s46, 0x3d372713
    s_mov_b32 s47, 0x40135761
    """)
    for i in range(TM):
        a(f"""
        v_add_u32 v6, {32*i}, v4
        v_mul_u32_u24 v6, 3456, v6
        """)
        for j in range(TN):
            for q in range(4):
                c = ACC + 16*(i*TN+j) + 4*q
                a.rnd2(c, c+1, 8)
                a.rnd2(c+2, c+3, 8)
                for e in range(4):
                    gelu_regs(c+e, 8, 9)
                o = 10 + 2*(q & 1)
                a(f"""
                v_cvt_pk_bf16_f32 v{o}, v{c}, v{c+1}
                v_cvt_pk_bf16_f32 v{o+1}, v{c+2}, v{c+3}
                v_add_u32 v7, {32*j+8*q}, v5
                v_cmp_gt_u32 vcc, 1728, v7
                v_lshl_add_u32 v7, v7, 1, v6
                s_and_saveexec_b64 s[40:41], vcc
                buffer_store_dwordx2 v[{o}:{o+1}], v7, s[32:35], 0 offen
                s_mov_b64 exec, s[40:41]
                """)

def epi_gemm2(TM, TN, ACC, pre):
    E = G_EPR
    R, C = E, E+1
    Z = E + 2
    BS = Z + 16
    if pre:
        a.srd(32, 14, 7077888, ZZ)
        a.srd(44, 10, 4096)
        for i in range(TM):
            a(f"""
            v_add_u32 v23, {32*i}, v{R}
            v_lshlrev_b32 v{BS+4}, 1, v23
            buffer_load_ushort v{BS+i}, v{BS+4}, s[44:47], 0 offen
            v_mul_u32_u24 v{BS+5}, 3456, v23
            """)
            for j in range(TN):
                for q in range(4):
                    z = Z + 2*((i*TN+j)*4 + q)
                    a(f"""
                    v_add_u32 v23, {32*j+8*q}, v{C}
                    v_cmp_gt_u32 vcc, 864, v23
                    v_lshl_add_u32 v23, v23, 1, v{BS+5}
                    v_mov_b32 v{z}, 0
                    v_mov_b32 v{z+1}, 0
                    s_and_saveexec_b64 s[40:41], vcc
                    buffer_load_dwordx2 v[{z}:{z+1}], v23, s[32:35], 0 offen
                    s_mov_b64 exec, s[40:41]
                    """)
        return
    a.srd(36, 14, 3670016, UU)
    for i in range(TM):
        a(f"""
        v_add_u32 v6, {32*i}, v4
        v_mul_u32_u24 v6, 1792, v6
        v_lshlrev_b32 v12, 16, v{BS+i}
        """)
        for j in range(TN):
            for q in range(4):
                c = ACC + 16*(i*TN+j) + 4*q
                z = Z + 2*((i*TN+j)*4 + q)
                a(f"""
                v_add_u32 v7, {32*j+8*q}, v5
                v_lshl_add_u32 v7, v7, 1, v6
                """)
                a.rnd2(c, c+1, 8)
                a.rnd2(c+2, c+3, 8)
                for e in range(4):
                    a(f'v_add_f32 v{c+e}, v{c+e}, v12')
                a.rnd2(c, c+1, 8)
                a.rnd2(c+2, c+3, 8)
                a.unpack(18, 19, z)
                a.unpack(8, 9, z+1)
                a(f"""
                v_mul_f32 v18, v18, v{c}
                v_mul_f32 v19, v19, v{c+1}
                v_mul_f32 v8, v8, v{c+2}
                v_mul_f32 v9, v9, v{c+3}
                v_cvt_pk_bf16_f32 v{z}, v18, v19
                v_cvt_pk_bf16_f32 v{z+1}, v8, v9
                buffer_store_dwordx2 v[{z}:{z+1}], v7, s[36:39], 0 offen
                """)

def make_epi_gemm3(xin_off, out_ws_off):
    def epi(TM, TN, ACC, pre):
        E = G_EPR
        R, C = E, E+1
        Z = E + 2
        if pre:
            a.srd(32, 14, 2621440, xin_off)
            for i in range(TM):
                a(f"""
                v_add_u32 v23, {32*i}, v{R}
                v_mul_u32_u24 v{Z+36}, 1280, v23
                """)
                for j in range(TN):
                    for q in range(4):
                        z = Z + 2*((i*TN+j)*4 + q)
                        a(f"""
                        v_add_u32 v23, {32*j+8*q}, v{C}
                        v_lshl_add_u32 v23, v23, 1, v{Z+36}
                        buffer_load_dwordx2 v[{z}:{z+1}], v23, s[32:35], 0 offen
                        """)
            return
        if out_ws_off is None:
            a.srd(36, 12, 2621440)
        else:
            a.srd(36, 14, 2621440, out_ws_off)
        for i in range(TM):
            a(f"""
            v_add_u32 v6, {32*i}, v4
            v_mul_u32_u24 v6, 1280, v6
            """)
            for j in range(TN):
                for q in range(4):
                    c = ACC + 16*(i*TN+j) + 4*q
                    z = Z + 2*((i*TN+j)*4 + q)
                    a(f"""
                    v_add_u32 v7, {32*j+8*q}, v5
                    v_lshl_add_u32 v7, v7, 1, v6
                    """)
                    a.rnd2(c, c+1, 8)
                    a.rnd2(c+2, c+3, 8)
                    a.unpack(18, 19, z)
                    a.unpack(8, 9, z+1)
                    a(f"""
                    v_add_f32 v18, v18, v{c}
                    v_add_f32 v19, v19, v{c+1}
                    v_add_f32 v8, v8, v{c+2}
                    v_add_f32 v9, v9, v{c+3}
                    v_cvt_pk_bf16_f32 v{z}, v18, v19
                    v_cvt_pk_bf16_f32 v{z+1}, v8, v9
                    buffer_store_dwordx2 v[{z}:{z+1}], v7, s[36:39], 0 offen
                    """)
    return epi

gen_prep()
gen_conv()
gen_row('rowa_kernel', A_Q, 0, X1)
gen_row('rowb_kernel', WS, X2, X3)
gen_lnz()
g1, l1 = gen_gemm('gemm1_kernel', 64, 64, 64, 640, 2048, 1728, (WS, HH), (WS, WINT), epi_gemm1, D=4)
g2, l2 = gen_gemm('gemm2_kernel', 64, 32, 64, 2048, 2048, 864, (B_WSP, 0), (WS, Z2T), epi_gemm2)
g3, l3 = gen_gemm('gemm3a_kernel', 32, 32, 64, 896, 2048, 640, (WS, UU), (WS, WOUTT), make_epi_gemm3(X1, X2))
g3, l3 = gen_gemm('gemm3b_kernel', 32, 32, 64, 896, 2048, 640, (WS, UU), (WS, WOUTT), make_epi_gemm3(X3, None))

launches = [
    ('prep_kernel', 1460, 5120),
    ('conv_kernel', 640, KVL + 9216),
    ('rowa_kernel', 256, 12288),
    ('gemm1_kernel', g1, l1),
    ('lnz_kernel', 256, 16384),
    ('gemm2_kernel', g2, l2),
    ('gemm3a_kernel', g3, l3),
    ('rowb_kernel', 256, 12288),
    ('gemm1_kernel', g1, l1),
    ('lnz_kernel', 256, 16384),
    ('gemm2_kernel', g2, l2),
    ('gemm3b_kernel', g3, l3),
]

ref = open('cdna_kernels/' + NAME + '.s.ref').read().split('\n')
head = [l for l in ref if l.startswith(';') and '@launch' not in l]
out = head[:]
for (k, g, lds) in launches:
    out.append(f'; @launch kernel={k} grid=({g},1,1) block=(256,1,1) lds={lds}')
out.append('.amdgcn_target "amdgcn-amd-amdhsa--gfx950"')
out.append('.text')
out += a.L
out.append('.section .rodata,"a"')
for (k, v, s, acc) in a.kernels:
    out.append('.p2align 6')
    out.append(f'.amdhsa_kernel {k}')
    out.append(f'  .amdhsa_next_free_vgpr {v}')
    out.append(f'  .amdhsa_next_free_sgpr {s}')
    out.append(f'  .amdhsa_accum_offset {((acc+3)//4)*4}')
    out.append('  .amdhsa_group_segment_fixed_size 0')
    out.append('  .amdhsa_kernarg_size 112')
    out.append('  .amdhsa_user_sgpr_count 2')
    out.append('  .amdhsa_user_sgpr_kernarg_segment_ptr 1')
    out.append('  .amdhsa_system_sgpr_workgroup_id_x 1')
    out.append('.end_amdhsa_kernel')
open('cdna_kernels/' + NAME + '.s', 'w').write('\n'.join(out) + '\n')
print('ok', len(out), 'lines', g1, l1, g2, l2, g3, l3)
```

```python
NAME = "interleave_layers__ssm_conv_h3__mixer_gmlp__prompt"

KVR = 0x0
YYT = 0x300000
WINT = 0x600000
WOUTT = 0x900000
X1 = 0xB00000
X2 = 0xE00000
X3 = 0x1100000
HH = 0x1400000
ZZ = 0x1700000
Z2T = 0x1E00000
UU = 0x2200000

A_Q, A_K, A_V, A_SK, A_SSMK, A_D, B_X, B_WIN, B_WSP, B_BSP, B_WOUT, OUT, DBG, WS = [8*i for i in range(14)]

class Asm:
    def __init__(self):
        self.L = []
        self.kernels = []
        self.launches = []
        self.uid = 0
    def __call__(self, s):
        for line in s.strip().split('\n'):
            self.L.append('    ' + line.strip())
    def label(self, l):
        self.L.append(l + ':')
    def newlabel(self, p='L'):
        self.uid += 1
        return f'{p}_{self.uid}'
    def begin(self, label):
        self.L.append('.globl ' + label)
        self.L.append('.p2align 8')
        self.L.append(f'.type {label},@function')
        self.label(label)
    def srd(self, d, p, nbytes, off=0):
        if off:
            self(f's_add_u32 s{d}, s{p}, {off}')
            self(f's_addc_u32 s{d+1}, s{p+1}, 0')
        else:
            self(f's_mov_b32 s{d}, s{p}')
            self(f's_mov_b32 s{d+1}, s{p+1}')
        self(f's_mov_b32 s{d+2}, {nbytes}')
        self(f's_mov_b32 s{d+3}, 0x00020000')
    def rnd2(self, a, b, t):
        self(f'v_cvt_pk_bf16_f32 v{t}, v{a}, v{b}')
        self(f'v_lshlrev_b32 v{a}, 16, v{t}')
        self(f'v_and_b32 v{b}, 0xffff0000, v{t}')
    def unpack(self, lo, hi, src):
        self(f'v_lshlrev_b32 v{lo}, 16, v{src}')
        self(f'v_and_b32 v{hi}, 0xffff0000, v{src}')
    def wave_sum(self, v, t, sdst):
        self('s_nop 1')
        self(f'v_add_f32_dpp v{t}, v{v}, v{v} quad_perm:[1,0,3,2] row_mask:0xf bank_mask:0xf')
        self('s_nop 1')
        self(f'v_add_f32_dpp v{v}, v{t}, v{t} quad_perm:[2,3,0,1] row_mask:0xf bank_mask:0xf')
        self('s_nop 1')
        self(f'v_add_f32_dpp v{t}, v{v}, v{v} row_half_mirror row_mask:0xf bank_mask:0xf')
        self('s_nop 1')
        self(f'v_add_f32_dpp v{v}, v{t}, v{t} row_mirror row_mask:0xf bank_mask:0xf')
        self('s_nop 0')
        self(f'v_readlane_b32 s52, v{v}, 16')
        self(f'v_readlane_b32 s53, v{v}, 32')
        self(f'v_readlane_b32 s54, v{v}, 48')
        self('s_nop 1')
        self(f'v_add_f32 v{v}, s52, v{v}')
        self(f'v_add_f32 v{v}, s53, v{v}')
        self(f'v_add_f32 v{v}, s54, v{v}')
        self('s_nop 0')
        self(f'v_readlane_b32 s{sdst}, v{v}, 0')
        self('s_nop 1')

a = Asm()

def gen_prep():
    k = 'prep_kernel'
    a.begin(k)
    a(f'''
    s_cmp_ge_u32 s2, 1460
    s_cbranch_scc1 prep_done
    s_load_dwordx2 s[4:5], s[0:1], {A_K}
    s_load_dwordx2 s[6:7], s[0:1], {A_V}
    s_load_dwordx2 s[8:9], s[0:1], {A_SK}
    s_load_dwordx2 s[10:11], s[0:1], {B_WIN}
    s_load_dwordx2 s[12:13], s[0:1], {B_WOUT}
    s_load_dwordx2 s[14:15], s[0:1], {WS}
    v_lshrrev_b32 v1, 3, v0
    v_and_b32 v2, 7, v0
    s_waitcnt lgkmcnt(0)
    s_cmp_ge_u32 s2, 640
    s_cbranch_scc1 prep_tr
    ''')
    a(f'''
    s_mov_b32 s16, 429496730
    s_mul_hi_u32 s17, s2, s16
    s_mul_i32 s18, s17, 10
    s_sub_u32 s18, s2, s18
    s_lshl_b32 s19, s17, 5
    s_lshl_b32 s20, s18, 6
    ''')
    a.srd(24, 4, 2621440)
    a.srd(28, 6, 2621440)
    a.srd(32, 8, 5120)
    a.srd(36, 14, 2621440, KVR)
    a(f'''
    v_add_u32 v3, s19, v1
    v_mul_u32_u24 v3, 1280, v3
    v_lshlrev_b32 v4, 4, v2
    v_add_u32 v3, v3, v4
    s_lshl_b32 s21, s20, 1
    v_add_u32 v3, s21, v3
    v_subrev_u32 v5, 1280, v3
    v_subrev_u32 v6, 2560, v3
    v_subrev_u32 v7, 3840, v3
    buffer_load_dwordx4 v[8:11], v3, s[24:27], 0 offen
    buffer_load_dwordx4 v[12:15], v5, s[24:27], 0 offen
    buffer_load_dwordx4 v[16:19], v6, s[24:27], 0 offen
    buffer_load_dwordx4 v[20:23], v7, s[24:27], 0 offen
    buffer_load_dwordx4 v[24:27], v3, s[28:31], 0 offen
    v_lshlrev_b32 v4, 6, v2
    s_lshl_b32 s21, s20, 3
    v_add_u32 v4, s21, v4
    buffer_load_dwordx4 v[28:31], v4, s[32:35], 0 offen
    buffer_load_dwordx4 v[32:35], v4, s[32:35], 0 offen offset:16
    buffer_load_dwordx4 v[36:39], v4, s[32:35], 0 offen offset:32
    buffer_load_dwordx4 v[40:43], v4, s[32:35], 0 offen offset:48
    ''')
    a('''
    v_mul_u32_u24 v44, 640, v2
    v_sub_u32 v45, 31, v1
    v_lshlrev_b32 v45, 1, v45
    v_add_u32 v44, v44, v45
    s_waitcnt vmcnt(0)
    ''')
    for e in range(8):
        w = e // 2
        def g(dst, base):
            if e % 2 == 0:
                a(f'v_lshlrev_b32 v{dst}, 16, v{base+w}')
            else:
                a(f'v_and_b32 v{dst}, 0xffff0000, v{base+w}')
        g(50, 8); g(51, 12); g(52, 16); g(53, 20); g(54, 24)
        a.unpack(55, 56, 28 + 2*e)
        a.unpack(57, 58, 29 + 2*e)
        a(f'''
        v_mul_f32 v60, v53, v58
        v_mul_f32 v61, v52, v57
        ''')
        a.rnd2(60, 61, 62)
        a(f'''
        v_add_f32 v60, v60, v61
        v_mul_f32 v61, v51, v56
        ''')
        a.rnd2(60, 61, 62)
        a(f'''
        v_add_f32 v60, v60, v61
        v_mul_f32 v61, v50, v55
        ''')
        a.rnd2(60, 61, 62)
        a(f'''
        v_add_f32 v60, v60, v61
        v_cvt_pk_bf16_f32 v62, v60, v60
        v_lshlrev_b32 v60, 16, v62
        v_mul_f32 v60, v60, v54
        v_cvt_pk_bf16_f32 v62, v60, v60
        ds_write_b16 v44, v62 offset:{80*e}
        ''')
    a(f'''
    s_waitcnt lgkmcnt(0)
    s_barrier
    v_lshrrev_b32 v45, 2, v0
    v_and_b32 v46, 3, v0
    v_mul_u32_u24 v47, 80, v45
    v_lshlrev_b32 v48, 4, v46
    v_add_u32 v47, v47, v48
    ds_read_b128 v[8:11], v47
    v_add_u32 v45, s20, v45
    v_lshlrev_b32 v45, 12, v45
    s_sub_u32 s21, 2016, s19
    s_lshl_b32 s21, s21, 1
    v_add_u32 v45, s21, v45
    v_add_u32 v45, v45, v48
    s_waitcnt lgkmcnt(0)
    buffer_store_dwordx4 v[8:11], v45, s[36:39], 0 offen
    s_branch prep_done
    ''')
    a.label('prep_tr')
    a('''
    s_sub_u32 s16, s2, 640
    s_cmp_ge_u32 s16, 540
    s_cbranch_scc1 prep_tr2
    ''')
    a(f'''
    s_mov_b32 s17, 159072863
    s_mul_hi_u32 s18, s16, s17
    s_mul_i32 s19, s18, 27
    s_sub_u32 s19, s16, s19
    s_mov_b32 s20, 640
    s_mov_b32 s21, 1728
    ''')
    a.srd(24, 10, 2211840)
    a.srd(28, 14, 2211840, WINT)
    a('s_branch prep_tr3')
    a.label('prep_tr2')
    a(f'''
    s_sub_u32 s16, s16, 540
    s_mov_b32 s17, 429496730
    s_mul_hi_u32 s18, s16, s17
    s_mul_i32 s19, s18, 10
    s_sub_u32 s19, s16, s19
    s_mov_b32 s20, 896
    s_mov_b32 s21, 640
    ''')
    a.srd(24, 12, 1105920)
    a.srd(28, 14, 1146880, WOUTT)
    a.label('prep_tr3')
    a('''
    s_lshl_b32 s22, s18, 5
    s_lshl_b32 s23, s19, 6
    v_add_u32 v3, s22, v1
    v_mul_lo_u32 v3, v3, s21
    v_lshlrev_b32 v4, 3, v2
    v_add_u32 v3, v3, v4
    v_add_u32 v3, s23, v3
    v_lshlrev_b32 v3, 1, v3
    buffer_load_dwordx4 v[8:11], v3, s[24:27], 0 offen
    v_mul_u32_u24 v44, 640, v2
    v_lshlrev_b32 v45, 1, v1
    v_add_u32 v44, v44, v45
    s_waitcnt vmcnt(0)
    ''')
    for e in range(8):
        if e % 2 == 0:
            a(f'ds_write_b16 v44, v{8+e//2} offset:{80*e}')
        else:
            a(f'ds_write_b16_d16_hi v44, v{8+e//2} offset:{80*e}')
    a('''
    s_waitcnt lgkmcnt(0)
    s_barrier
    v_lshrrev_b32 v45, 2, v0
    v_and_b32 v46, 3, v0
    v_mul_u32_u24 v47, 80, v45
    v_lshlrev_b32 v48, 4, v46
    v_add_u32 v47, v47, v48
    ds_read_b128 v[8:11], v47
    v_add_u32 v45, s23, v45
    v_mul_lo_u32 v45, v45, s20
    v_add_u32 v45, s22, v45
    v_lshlrev_b32 v45, 1, v45
    v_add_u32 v45, v45, v48
    s_waitcnt lgkmcnt(0)
    buffer_store_dwordx4 v[8:11], v45, s[28:31], 0 offen
    ''')
    a.label('prep_done')
    a('s_endpgm')
    a.kernels.append((k, 64, 48, 64))

HP = 4256
KVL = 8 * HP
def gen_conv():
    k = 'conv_kernel'
    a.begin(k)
    a(f'''
    s_cmp_ge_u32 s2, 640
    s_cbranch_scc1 conv_done
    s_load_dwordx2 s[4:5], s[0:1], {A_SSMK}
    s_load_dwordx2 s[6:7], s[0:1], {A_D}
    s_load_dwordx2 s[14:15], s[0:1], {WS}
    s_lshl_b32 s16, s2, 12
    s_waitcnt lgkmcnt(0)
    s_add_u32 s4, s4, s16
    s_addc_u32 s5, s5, 0
    s_add_u32 s8, s14, s16
    s_addc_u32 s9, s15, 0
    ''')
    a.srd(24, 4, 4096)
    a.srd(28, 8, 4096, KVR)
    a.srd(32, 8, 4096, YYT)
    a.srd(36, 6, 1280)
    def fill(ci_reg):
        a(f'''
        v_lshlrev_b32 v3, 4, v{ci_reg}
        v_subrev_u32 v4, 128, v3
        v_subrev_u32 v5, 112, v3
        buffer_load_dwordx4 v[8:11], v4, s[24:27], 0 offen
        buffer_load_dwordx4 v[12:15], v5, s[24:27], 0 offen
        s_waitcnt vmcnt(0)
        ''')
        for c in range(8):
            if c % 2 == 0:
                j = c // 2
                if j == 0:
                    a(f'ds_write_b128 v3, v[8:11] offset:{c*HP}')
                else:
                    for i in range(4):
                        a(f'v_mov_b32 v{16+i}, v{8+j+i}')
                    a(f'ds_write_b128 v3, v[16:19] offset:{c*HP}')
            else:
                j = (c - 1) // 2
                base = 20 if (c % 4 == 1) else 24
                for i in range(4):
                    a(f'v_alignbit_b32 v{base+i}, v{8+j+i+1}, v{8+j+i}, 16')
                a(f'ds_write_b128 v3, v[{base}:{base+3}] offset:{c*HP}')
    fill(0)
    a('''
    v_add_u32 v2, 256, v0
    v_cmp_gt_u32 vcc, 265, v2
    s_and_saveexec_b64 s[40:41], vcc
    s_cbranch_execz conv_f2
    ''')
    fill(2)
    a.label('conv_f2')
    a('s_mov_b64 exec, s[40:41]')
    a(f'''
    v_lshlrev_b32 v3, 4, v0
    buffer_load_dwordx4 v[8:11], v3, s[28:31], 0 offen
    s_lshl_b32 s17, s2, 1
    v_mov_b32 v4, s17
    buffer_load_ushort v30, v4, s[36:39], 0 offen
    v_mov_b32 v12, 0
    v_mov_b32 v13, 0
    v_mov_b32 v14, 0
    v_mov_b32 v15, 0
    v_lshrrev_b32 v5, 3, v0
    v_lshlrev_b32 v5, 4, v5
    v_add_u32 v3, v3, v5
    ds_write_b128 v3, v[12:15] offset:{KVL+4608}
    s_waitcnt vmcnt(0)
    ds_write_b128 v3, v[8:11] offset:{KVL}
    v_lshlrev_b32 v30, 16, v30
    ''')
    a('''
    v_lshrrev_b32 v1, 6, v0
    v_and_b32 v2, 63, v0
    v_and_b32 v3, 31, v2
    v_lshrrev_b32 v4, 5, v2
    ''')
    for r in range(2):
        a(f'''
        v_lshlrev_b32 v5, 1, v3
        v_add_u32 v5, {r+1}, v5
        v_and_b32 v6, 7, v5
        v_mul_u32_u24 v6, {HP}, v6
        v_and_b32 v5, 0x78, v5
        v_lshlrev_b32 v7, 9, v1
        v_add_u32 v5, v5, v7
        v_lshlrev_b32 v7, 3, v4
        v_add_u32 v5, v5, v7
        v_lshlrev_b32 v5, 1, v5
        v_add_u32 v{32+r}, v5, v6
        ''')
    a(f'''
    v_lshlrev_b32 v5, 6, v3
    v_sub_u32 v5, 1984, v5
    v_lshlrev_b32 v7, 9, v1
    v_add_u32 v5, v5, v7
    v_lshlrev_b32 v7, 3, v4
    v_add_u32 v5, v5, v7
    v_lshrrev_b32 v6, 6, v5
    v_lshlrev_b32 v6, 4, v6
    v_lshlrev_b32 v5, 1, v5
    v_add_u32 v5, v5, v6
    v_add_u32 v34, {KVL}, v5
    ''')
    for i in range(32):
        a(f'v_mov_b32 v{64+i}, 0')
    a('''
    s_waitcnt lgkmcnt(0)
    s_barrier
    ''')
    def rd(step, s):
        b = 40 + 12*s
        a(f'''
        ds_read_b128 v[{b}:{b+3}], v32 offset:{32*step}
        ds_read_b128 v[{b+4}:{b+7}], v33 offset:{32*step}
        ds_read_b128 v[{b+8}:{b+11}], v34 offset:{32*step + 16*(step>>2)}
        ''')
    rd(0, 0)
    for step in range(32):
        s = step & 1
        if step + 1 < 32:
            rd(step + 1, s ^ 1)
            a('s_waitcnt lgkmcnt(3)')
        else:
            a('s_waitcnt lgkmcnt(0)')
        b = 40 + 12*s
        a(f'''
        v_mfma_f32_32x32x16_bf16 v[64:79], v[{b}:{b+3}], v[{b+8}:{b+11}], v[64:79]
        v_mfma_f32_32x32x16_bf16 v[80:95], v[{b+4}:{b+7}], v[{b+8}:{b+11}], v[80:95]
        ''')
    a('''
    s_barrier
    s_nop 7
    s_nop 7
    v_lshlrev_b32 v5, 13, v1
    v_lshlrev_b32 v6, 2, v2
    v_add_u32 v5, v5, v6
    ''')
    for r in range(2):
        for j in range(16):
            a(f'ds_write_b32 v5, v{64+16*r+j} offset:{r*4096+j*256}')
    a(f'''
    v_and_b32 v5, 7, v0
    v_lshrrev_b32 v5, 1, v5
    v_lshlrev_b32 v5, 10, v5
    v_lshrrev_b32 v6, 3, v0
    v_and_b32 v7, 1, v0
    v_lshlrev_b32 v7, 5, v7
    v_add_u32 v6, v6, v7
    v_lshlrev_b32 v6, 2, v6
    v_add_u32 v5, v5, v6
    v_sub_u32 v6, 255, v0
    v_lshrrev_b32 v7, 3, v6
    v_add_u32 v6, v6, v7
    v_lshlrev_b32 v6, 4, v6
    v_add_u32 v6, {KVL}, v6
    s_waitcnt lgkmcnt(0)
    s_barrier
    ds_read_b128 v[8:11], v6
    ''')
    for e in range(8):
        for w in range(4):
            a(f'ds_read_b32 v{40+4*e+w}, v5 offset:{w*8192 + (e&1)*4096 + (e>>1)*256}')
    a('s_waitcnt lgkmcnt(0)')
    for e in range(8):
        b = 40 + 4*e
        a(f'''
        v_add_f32 v{b}, v{b}, v{b+1}
        v_add_f32 v{b+2}, v{b+2}, v{b+3}
        v_add_f32 v{b}, v{b}, v{b+2}
        ''')
    for e in range(0, 8, 2):
        b0, b1 = 40 + 4*e, 40 + 4*(e+1)
        a.rnd2(b0, b1, 12)
        p0, p1 = 7 - e, 7 - (e+1)
        a(f'''
        v_and_b32 v13, 0xffff0000, v{8 + p0//2}
        v_lshlrev_b32 v14, 16, v{8 + p1//2}
        v_mul_f32 v13, v13, v30
        v_mul_f32 v14, v14, v30
        ''')
        a.rnd2(13, 14, 12)
        a(f'''
        v_add_f32 v13, v13, v{b0}
        v_add_f32 v14, v14, v{b1}
        v_cvt_pk_bf16_f32 v{16+e//2}, v13, v14
        ''')
    a('''
    v_lshlrev_b32 v3, 4, v0
    buffer_store_dwordx4 v[16:19], v3, s[32:35], 0 offen
    ''')
    a.label('conv_done')
    a('s_endpgm')
    a.kernels.append((k, 96, 48, 96))

def ln_rows(vals, n_elems, outs, tmp, neps_s):
    t0, t1, t2, t3 = tmp, tmp+1, tmp+2, tmp+3
    a(f'v_mov_b32 v{t0}, v{vals[0]}')
    for v in vals[1:]:
        a(f'v_add_f32 v{t0}, v{t0}, v{v}')
    a.wave_sum(t0, t1, 50)
    a(f'''
    v_mov_b32 v{t0}, {1.0/n_elems!r}
    v_mul_f32 v{t2}, s50, v{t0}
    ''')
    a(f'v_sub_f32 v{t1}, v{vals[0]}, v{t2}')
    a(f'v_mul_f32 v{t0}, v{t1}, v{t1}')
    for v in vals[1:]:
        a(f'v_sub_f32 v{t1}, v{v}, v{t2}')
        a(f'v_fmac_f32 v{t0}, v{t1}, v{t1}')
    a.wave_sum(t0, t1, 51)
    a(f'''
    v_mov_b32 v{t0}, {1.0/n_elems!r}
    v_mul_f32 v{t3}, s51, v{t0}
    ''')
    a.rnd2(t2, t3, t0)
    a(f'''
    v_add_f32 v{t3}, 0x3727c5ac, v{t3}
    v_cvt_pk_bf16_f32 v{t0}, v{t3}, v{t3}
    v_lshlrev_b32 v{t3}, 16, v{t0}
    v_sqrt_f32 v{t3}, v{t3}
    s_nop 0
    v_cvt_pk_bf16_f32 v{t0}, v{t3}, v{t3}
    v_lshlrev_b32 v{t3}, 16, v{t0}
    v_rcp_f32 v{t1}, v{t3}
    s_nop 0
    ''')
    a(f'''
    v_fma_f32 v{t0}, -v{t3}, v{t1}, 2.0
    v_mul_f32 v{t1}, v{t1}, v{t0}
    ''')
    for i in range(0, len(vals), 2):
        o0, o1 = outs[i], outs[i+1]
        a(f'''
        v_sub_f32 v{o0}, v{vals[i]}, v{t2}
        v_sub_f32 v{o1}, v{vals[i+1]}, v{t2}
        ''')
        a.rnd2(o0, o1, t0)
        a(f'''
        v_mul_f32 v{tmp+4}, v{o0}, v{t1}
        v_mul_f32 v{tmp+5}, v{o1}, v{t1}
        v_fma_f32 v{t0}, -v{tmp+4}, v{t3}, v{o0}
        v_fma_f32 v{o0}, v{t0}, v{t1}, v{tmp+4}
        v_fma_f32 v{t0}, -v{tmp+5}, v{t3}, v{o1}
        v_fma_f32 v{o1}, v{t0}, v{t1}, v{tmp+5}
        ''')
        a.rnd2(o0, o1, t0)

def gen_row(k, xin_arg, xin_off, xout_off):
    a.begin(k)
    done = k + '_done'
    a(f'''
    s_cmp_ge_u32 s2, 256
    s_cbranch_scc1 {done}
    s_load_dwordx2 s[4:5], s[0:1], {xin_arg}
    s_load_dwordx2 s[14:15], s[0:1], {WS}
    s_waitcnt lgkmcnt(0)
    ''')
    a.srd(24, 4, 2621440, xin_off)
    a.srd(28, 14, 2621440, YYT)
    a.srd(32, 14, 2621440, xout_off)
    a.srd(36, 14, 2621440, HH)
    a('''
    v_lshrrev_b32 v1, 6, v0
    v_and_b32 v2, 63, v0
    ''')
    for rr in range(2):
        a(f'''
        s_lshl_b32 s17, s2, 3
        s_add_u32 s17, s17, {rr}
        v_lshlrev_b32 v3, 1, v1
        v_add_u32 v3, s17, v3
        v_mul_u32_u24 v3, 1280, v3
        v_lshlrev_b32 v4, 2, v2
        v_add_u32 v{74+rr}, v3, v4
        ''')
        for j in range(5):
            a(f'buffer_load_dword v{64+5*rr+j}, v{74+rr}, s[24:27], 0 offen offset:{256*j}')
    a('''
    s_lshl_b32 s16, s2, 4
    v_lshlrev_b32 v3, 12, v0
    v_add_u32 v3, s16, v3
    v_add_u32 v4, 0x100000, v3
    v_add_u32 v5, 0x200000, v3
    buffer_load_dwordx4 v[8:11], v3, s[28:31], 0 offen
    buffer_load_dwordx4 v[12:15], v4, s[28:31], 0 offen
    buffer_load_dwordx4 v[16:19], v5, s[28:31], 0 offen
    v_lshlrev_b32 v6, 4, v0
    s_waitcnt vmcnt(0)
    ds_write_b128 v6, v[8:11]
    ds_write_b128 v6, v[12:15] offset:4096
    ds_write_b128 v6, v[16:19] offset:8192
    s_waitcnt lgkmcnt(0)
    s_barrier
    ''')
    for rr in range(2):
        a(f'v_mov_b32 v3, v{74+rr}')
        for j in range(5):
            a(f'v_mov_b32 v{8+j}, v{64+5*rr+j}')
        a(f'''
        v_lshlrev_b32 v4, 5, v2
        v_lshlrev_b32 v5, 2, v1
        v_add_u32 v4, v4, v5
        ''')
        for j in range(5):
            a(f'ds_read_u16 v{40+2*j}, v4 offset:{2048*j + 2*rr}')
            a(f'ds_read_u16 v{41+2*j}, v4 offset:{2048*j + 16 + 2*rr}')
        a('s_waitcnt lgkmcnt(0)')
        xs = list(range(16, 26))
        for j in range(5):
            a.unpack(16+2*j, 17+2*j, 8+j)
        for j in range(10):
            a(f'v_lshlrev_b32 v{40+j}, 16, v{40+j}')
        qs = list(range(28, 38))
        ln_rows(xs, 640, qs, 56, None)
        for i in range(0, 10, 2):
            a(f'''
            v_mul_f32 v{qs[i]}, v{qs[i]}, v{40+i}
            v_mul_f32 v{qs[i+1]}, v{qs[i+1]}, v{41+i}
            ''')
            a.rnd2(qs[i], qs[i+1], 56)
            a(f'''
            v_add_f32 v{xs[i]}, v{xs[i]}, v{qs[i]}
            v_add_f32 v{xs[i+1]}, v{xs[i+1]}, v{qs[i+1]}
            ''')
            a.rnd2(xs[i], xs[i+1], 56)
            a(f'buffer_store_dword v56, v3, s[32:35], 0 offen offset:{256*(i//2)}')
            a('s_nop 1')
        ln_rows(xs, 640, qs, 56, None)
        for i in range(0, 10, 2):
            a(f'v_cvt_pk_bf16_f32 v{8+i//2}, v{qs[i]}, v{qs[i+1]}')
            a(f'buffer_store_dword v{8+i//2}, v3, s[36:39], 0 offen offset:{256*(i//2)}')
        a('s_nop 2')
    a.label(done)
    a('s_endpgm')
    a.kernels.append((k, 80, 56, 80))

def gen_lnz():
    k = 'lnz_kernel'
    a.begin(k)
    a(f'''
    s_cmp_ge_u32 s2, 256
    s_cbranch_scc1 lnz_done
    s_load_dwordx2 s[14:15], s[0:1], {WS}
    s_waitcnt lgkmcnt(0)
    ''')
    a.srd(24, 14, 7077888, ZZ)
    a.srd(28, 14, 3538944, Z2T)
    a('''
    v_lshrrev_b32 v1, 6, v0
    v_and_b32 v2, 63, v0
    ''')
    for rr in range(2):
        a(f'''
        s_lshl_b32 s17, s2, 3
        s_add_u32 s17, s17, {rr}
        v_lshlrev_b32 v3, 1, v1
        v_add_u32 v3, s17, v3
        v_mul_u32_u24 v3, 3456, v3
        v_lshlrev_b32 v4, 2, v2
        v_add_u32 v3, v3, v4
        v_mov_b32 v{64+7*rr+6}, 0
        ''')
        for j in range(6):
            a(f'buffer_load_dword v{64+7*rr+j}, v3, s[24:27], 0 offen offset:{1728 + 256*j}')
        a(f'''
        v_cmp_gt_u32 vcc, 48, v2
        s_and_saveexec_b64 s[40:41], vcc
        buffer_load_dword v{64+7*rr+6}, v3, s[24:27], 0 offen offset:{1728 + 256*6}
        s_mov_b64 exec, s[40:41]
        ''')
    a('s_waitcnt vmcnt(0)')
    for rr in range(2):
        for j in range(7):
            a(f'v_mov_b32 v{8+j}, v{64+7*rr+j}')
        xs = list(range(16, 30))
        for j in range(7):
            a.unpack(16+2*j, 17+2*j, 8+j)
        t0, t1, t2, t3 = 56, 57, 58, 59
        a(f'v_mov_b32 v{t0}, v16')
        for v in xs[1:]:
            a(f'v_add_f32 v{t0}, v{t0}, v{v}')
        a.wave_sum(t0, t1, 50)
        a(f'''
        v_mov_b32 v{t0}, {1.0/864!r}
        v_mul_f32 v{t2}, s50, v{t0}
        v_mov_b32 v{t0}, 0
        ''')
        for v in xs[:12]:
            a(f'v_sub_f32 v{t1}, v{v}, v{t2}')
            a(f'v_fmac_f32 v{t0}, v{t1}, v{t1}')
        a(f'''
        v_cmp_gt_u32 vcc, 48, v2
        v_sub_f32 v{t1}, v28, v{t2}
        v_mul_f32 v{t1}, v{t1}, v{t1}
        v_sub_f32 v{t3}, v29, v{t2}
        v_fmac_f32 v{t1}, v{t3}, v{t3}
        v_cndmask_b32 v{t1}, 0, v{t1}, vcc
        v_add_f32 v{t0}, v{t0}, v{t1}
        ''')
        a.wave_sum(t0, t1, 51)
        a(f'''
        v_mov_b32 v{t0}, {1.0/864!r}
        v_mul_f32 v{t3}, s51, v{t0}
        ''')
        a.rnd2(t2, t3, t0)
        a(f'''
        v_add_f32 v{t3}, 0x3727c5ac, v{t3}
        v_cvt_pk_bf16_f32 v{t0}, v{t3}, v{t3}
        v_lshlrev_b32 v{t3}, 16, v{t0}
        v_sqrt_f32 v{t3}, v{t3}
        s_nop 0
        v_cvt_pk_bf16_f32 v{t0}, v{t3}, v{t3}
        v_lshlrev_b32 v{t3}, 16, v{t0}
        v_rcp_f32 v{t1}, v{t3}
        s_nop 0
        v_fma_f32 v{t0}, -v{t3}, v{t1}, 2.0
        v_mul_f32 v{t1}, v{t1}, v{t0}
        ''')
        a(f'''
        v_lshlrev_b32 v4, 5, v2
        v_lshlrev_b32 v5, 2, v1
        v_add_u32 v4, v4, v5
        ''')
        for j in range(7):
            o0, o1 = 40, 41
            a(f'''
            v_sub_f32 v{o0}, v{xs[2*j]}, v{t2}
            v_sub_f32 v{o1}, v{xs[2*j+1]}, v{t2}
            ''')
            a.rnd2(o0, o1, t0)
            a(f'''
            v_mul_f32 v60, v{o0}, v{t1}
            v_mul_f32 v61, v{o1}, v{t1}
            v_fma_f32 v{t0}, -v60, v{t3}, v{o0}
            v_fma_f32 v{o0}, v{t0}, v{t1}, v60
            v_fma_f32 v{t0}, -v61, v{t3}, v{o1}
            v_fma_f32 v{o1}, v{t0}, v{t1}, v61
            v_cvt_pk_bf16_f32 v{42+j}, v{o0}, v{o1}
            ds_write_b16 v4, v{42+j} offset:{2048*j + 2*rr}
            ds_write_b16_d16_hi v4, v{42+j} offset:{2048*j + 16 + 2*rr}
            ''')
    a('''
    s_waitcnt lgkmcnt(0)
    s_barrier
    v_lshlrev_b32 v4, 4, v0
    ds_read_b128 v[8:11], v4
    ds_read_b128 v[12:15], v4 offset:4096
    ds_read_b128 v[16:19], v4 offset:8192
    ds_read_b128 v[20:23], v4 offset:12288
    s_lshl_b32 s16, s2, 4
    v_lshlrev_b32 v3, 12, v0
    v_add_u32 v3, s16, v3
    v_add_u32 v5, 0x100000, v3
    v_add_u32 v6, 0x200000, v3
    v_add_u32 v7, 0x300000, v3
    s_waitcnt lgkmcnt(0)
    buffer_store_dwordx4 v[8:11], v3, s[28:31], 0 offen
    buffer_store_dwordx4 v[12:15], v5, s[28:31], 0 offen
    buffer_store_dwordx4 v[16:19], v6, s[28:31], 0 offen
    buffer_store_dwordx4 v[20:23], v7, s[28:31], 0 offen
    ''')
    a.label('lnz_done')
    a('s_endpgm')
    a.kernels.append((k, 80, 56, 80))

def gen_gemm(k, WM, WN, BK, K, M, N, A_src, B_src, epi, D=4):
    BM, BN = 2*WM, 2*WN
    TM, TN = WM//32, WN//32
    nmt, nnt = M//BM, -(-N//BN)
    rowb = 128
    nsteps = K//BK
    Abytes, Bbytes = BM*rowb, BN*rowb
    stage = Abytes + Bbytes
    nla, nlb = Abytes//4096, Bbytes//4096
    nl = nla + nlb
    done = k + '_done'
    a.begin(k)
    a(f"""
    s_cmp_ge_u32 s2, {nmt*nnt}
    s_cbranch_scc1 {done}
    s_load_dwordx2 s[4:5], s[0:1], {A_src[0]}
    s_load_dwordx2 s[6:7], s[0:1], {B_src[0]}
    s_load_dwordx2 s[14:15], s[0:1], {WS}
    s_load_dwordx2 s[10:11], s[0:1], {B_BSP}
    s_load_dwordx2 s[12:13], s[0:1], {OUT}
    s_and_b32 s16, s2, {nmt-1}
    s_lshr_b32 s17, s2, {nmt.bit_length()-1}
    s_mul_i32 s18, s16, {BM}
    s_mul_i32 s19, s17, {BN}
    v_lshrrev_b32 v1, 6, v0
    v_lshlrev_b32 v1, 10, v1
    s_nop 0
    v_readfirstlane_b32 s22, v1
    s_waitcnt lgkmcnt(0)
    """)
    a.srd(24, 4, M*K*2, A_src[1])
    a.srd(28, 6, N*K*2, B_src[1])
    a(f"""
    v_lshrrev_b32 v1, 3, v0
    v_and_b32 v2, 7, v0
    v_lshrrev_b32 v3, 1, v1
    v_and_b32 v3, 7, v3
    v_xor_b32 v2, v2, v3
    v_lshlrev_b32 v2, 4, v2
    v_add_u32 v3, s18, v1
    v_mul_u32_u24 v3, {K*2}, v3
    v_add_u32 v4, v3, v2
    v_add_u32 v3, s19, v1
    v_mul_u32_u24 v3, {K*2}, v3
    v_add_u32 v8, v3, v2
    """)
    for i in range(1, nla):
        a(f'v_add_u32 v{4+i}, {32*i*K*2}, v4')
    for i in range(1, nlb):
        a(f'v_add_u32 v{8+i}, {32*i*K*2}, v8')
    a("""
    v_lshrrev_b32 v1, 6, v0
    v_and_b32 v2, 63, v0
    v_and_b32 v3, 31, v2
    v_lshrrev_b32 v20, 5, v2
    v_and_b32 v21, 1, v1
    v_lshrrev_b32 v22, 1, v1
    """)
    nkk = 4
    AB, AR = 12, 24
    for (isB, wsel, W, R) in ((0, 21, WM, AB), (1, 22, WN, AB+4)):
        a(f"""
        v_mul_u32_u24 v23, {W}, v{wsel}
        v_add_u32 v23, v23, v3
        v_lshrrev_b32 v{R}, 1, v23
        v_and_b32 v{R}, 7, v{R}
        v_xor_b32 v{R}, v{R}, v20
        v_mul_u32_u24 v23, {rowb}, v23
        """)
        if isB:
            a(f'v_add_u32 v23, {Abytes}, v23')
        for kk in range(3, -1, -1):
            a(f"""
            v_xor_b32 v{R+kk}, {2*kk}, v{R}
            v_lshl_add_u32 v{R+kk}, v{R+kk}, 4, v23
            """)
    FA = 32
    FB = FA + 4*TM*2
    ACC = 64
    nacc = TM*TN*16
    EPR = ACC + nacc
    global G_EPR
    G_EPR = EPR
    assert FB + 4*TN*2 <= ACC
    for i in range(nacc):
        a(f'v_mov_b32 v{ACC+i}, 0')
    a(f"""
    v_mul_u32_u24 v23, {WM}, v21
    v_add_u32 v23, v23, v3
    v_add_u32 v{EPR}, s18, v23
    v_mul_u32_u24 v23, {WN}, v22
    v_lshlrev_b32 v{EPR+1}, 2, v20
    v_add_u32 v23, v23, v{EPR+1}
    v_add_u32 v{EPR+1}, s19, v23
    """)
    epi(TM, TN, ACC, True)
    def gload():
        for i in range(nl):
            a(f's_add_u32 m0, s55, {i*4096}')
            a('s_nop 0')
            if i < nla:
                a(f'buffer_load_dwordx4 v{4+i}, s[24:27], s20 offen lds')
            else:
                a(f'buffer_load_dwordx4 v{8+i-nla}, s[28:31], s20 offen lds')
        a(f"""
        s_add_u32 s20, s20, {rowb}
        s_add_u32 s55, s55, {stage}
        s_cmp_lt_u32 s55, {D*stage}
        s_cselect_b32 s55, s55, s22
        """)
    lp, lm, lw, lnl = [a.newlabel(x) for x in ('gp', 'gm', 'gw', 'gn')]
    a(f"""
    s_mov_b32 s20, 0
    s_mov_b32 s55, s22
    s_mov_b32 s48, 0
    s_mov_b32 s49, 0
    """)
    a.label(lp)
    gload()
    a(f"""
    s_add_u32 s48, s48, 1
    s_cmp_lt_u32 s48, {D-1}
    s_cbranch_scc1 {lp}
    s_mov_b32 s48, 0
    """)
    a.label(lm)
    a(f"""
    s_cmp_lt_u32 s48, {nsteps-(D-2)}
    s_cbranch_scc1 {lw}
    s_waitcnt vmcnt(0)
    """)
    a.label(lw)
    a(f"""
    s_waitcnt vmcnt({nl*(D-2)})
    s_barrier
    """)
    for i in range(8):
        a(f'v_add_u32 v{AR+i}, s49, v{AB+i}')
    def rd(kk, s):
        for i in range(TM):
            f = FA + 4*(s*TM + i)
            a(f'ds_read_b128 v[{f}:{f+3}], v{AR+kk} offset:{i*32*rowb}')
        for i in range(TN):
            f = FB + 4*(s*TN + i)
            a(f'ds_read_b128 v[{f}:{f+3}], v{AR+4+kk} offset:{i*32*rowb}')
    rd(0, 0)
    a(f"""
    s_cmp_lt_u32 s48, {nsteps-(D-1)}
    s_cbranch_scc0 {lnl}
    """)
    gload()
    a.label(lnl)
    for kk in range(nkk):
        s_ = kk & 1
        if kk + 1 < nkk:
            rd(kk+1, s_ ^ 1)
            a(f's_waitcnt lgkmcnt({TM+TN})')
        else:
            a('s_waitcnt lgkmcnt(0)')
        for i in range(TM):
            for j in range(TN):
                fa = FA + 4*(s_*TM + i)
                fb = FB + 4*(s_*TN + j)
                c = ACC + 16*(i*TN + j)
                a(f'v_mfma_f32_32x32x16_bf16 v[{c}:{c+15}], v[{fb}:{fb+3}], v[{fa}:{fa+3}], v[{c}:{c+15}]')
    a(f"""
    s_add_u32 s49, s49, {stage}
    s_cmp_lt_u32 s49, {D*stage}
    s_cselect_b32 s49, s49, 0
    s_add_u32 s48, s48, 1
    s_cmp_lt_u32 s48, {nsteps}
    s_cbranch_scc1 {lm}
    s_nop 7
    s_nop 7
    """)
    le = a.newlabel('ge')
    lg = TN.bit_length() - 1
    epi(TM, TN, ACC, 'setup')
    a('s_mov_b32 s48, 0')
    a.label(le)
    a(f"""
    s_lshl_b32 s56, s48, 2
    s_lshr_b32 s49, s48, {2+lg}
    s_lshl_b32 s49, s49, 5
    s_lshr_b32 s55, s48, 2
    s_and_b32 s55, s55, {TN-1}
    s_lshl_b32 s55, s55, 5
    s_and_b32 s20, s48, 3
    s_lshl_b32 s20, s20, 3
    s_add_u32 s55, s55, s20
    s_set_gpr_idx_on s56, gpr_idx(SRC0)
    v_mov_b32 v40, v{ACC}
    v_mov_b32 v41, v{ACC+1}
    v_mov_b32 v42, v{ACC+2}
    v_mov_b32 v43, v{ACC+3}
    s_set_gpr_idx_off
    v_add_u32 v4, s49, v{EPR}
    v_add_u32 v5, s55, v{EPR+1}
    """)
    epi(TM, TN, ACC, 'body')
    a(f"""
    s_add_u32 s48, s48, 1
    s_cmp_lt_u32 s48, {nacc//4}
    s_cbranch_scc1 {le}
    """)
    a.label(done)
    a('s_endpgm')
    lds = D*stage
    a.kernels.append((k, EPR + 2 + 24, 64, EPR + 2 + 24))
    return nmt*nnt, lds

def gelu_regs(x, t0, t1):
    a(f'''
    v_mul_f32 v{t0}, v{x}, v{x}
    v_mul_f32 v{t0}, v{t0}, v{x}
    v_fma_f32 v{t0}, v{t0}, s46, v{x}
    v_mul_f32 v{t0}, s47, v{t0}
    v_exp_f32 v{t0}, v{t0}
    s_nop 0
    v_add_f32 v{t0}, 1.0, v{t0}
    v_rcp_f32 v{t0}, v{t0}
    s_nop 0
    v_fma_f32 v{t0}, v{t0}, -2.0, 2.0
    v_mul_f32 v{t1}, 0.5, v{x}
    v_mul_f32 v{x}, v{t1}, v{t0}
    ''')

def epi_gemm1(TM, TN, ACC, pre):
    if pre is True:
        return
    if pre == 'setup':
        a.srd(32, 14, 7077888, ZZ)
        a("""
        s_mov_b32 s46, 0x3d372713
        s_mov_b32 s47, 0x40135761
        """)
        return
    a.rnd2(40, 41, 8)
    a.rnd2(42, 43, 8)
    for e in range(4):
        gelu_regs(40+e, 8, 9)
    a("""
    v_cvt_pk_bf16_f32 v10, v40, v41
    v_cvt_pk_bf16_f32 v11, v42, v43
    v_mul_u32_u24 v6, 3456, v4
    v_cmp_gt_u32 vcc, 1728, v5
    v_lshl_add_u32 v7, v5, 1, v6
    s_and_saveexec_b64 s[40:41], vcc
    buffer_store_dwordx2 v[10:11], v7, s[32:35], 0 offen
    s_mov_b64 exec, s[40:41]
    """)

def epi_gemm2(TM, TN, ACC, pre):
    E = G_EPR
    R, C = E, E+1
    Z = E + 2
    nq = TM*TN*4
    BS = Z + 2*nq
    if pre is True:
        a.srd(32, 14, 7077888, ZZ)
        a.srd(44, 10, 4096)
        for i in range(TM):
            a(f"""
            v_add_u32 v23, {32*i}, v{R}
            v_lshlrev_b32 v{BS+4}, 1, v23
            buffer_load_ushort v{BS+i}, v{BS+4}, s[44:47], 0 offen
            v_mul_u32_u24 v{BS+5}, 3456, v23
            """)
            for j in range(TN):
                for q in range(4):
                    z = Z + 2*((i*TN+j)*4 + q)
                    a(f"""
                    v_add_u32 v23, {32*j+8*q}, v{C}
                    v_cmp_gt_u32 vcc, 864, v23
                    v_lshl_add_u32 v23, v23, 1, v{BS+5}
                    s_nop 0
                    v_cndmask_b32 v23, -1, v23, vcc
                    buffer_load_dwordx2 v[{z}:{z+1}], v23, s[32:35], 0 offen
                    """)
        return
    if pre == 'setup':
        a.srd(36, 14, 3670016, UU)
        for i in range(TM):
            a(f'v_lshlrev_b32 v{BS+i}, 16, v{BS+i}')
        return
    lg = TN.bit_length() - 1
    a(f"""
    s_lshl_b32 s56, s48, 1
    s_set_gpr_idx_on s56, gpr_idx(SRC0)
    v_mov_b32 v16, v{Z}
    v_mov_b32 v17, v{Z+1}
    s_set_gpr_idx_off
    s_lshr_b32 s56, s48, {2+lg}
    s_set_gpr_idx_on s56, gpr_idx(SRC0)
    v_mov_b32 v12, v{BS}
    s_set_gpr_idx_off
    v_mul_u32_u24 v6, 1792, v4
    v_lshl_add_u32 v7, v5, 1, v6
    """)
    a.rnd2(40, 41, 8)
    a.rnd2(42, 43, 8)
    for e in range(4):
        a(f'v_add_f32 v{40+e}, v{40+e}, v12')
    a.rnd2(40, 41, 8)
    a.rnd2(42, 43, 8)
    a.unpack(18, 19, 16)
    a.unpack(8, 9, 17)
    a("""
    v_mul_f32 v18, v18, v40
    v_mul_f32 v19, v19, v41
    v_mul_f32 v8, v8, v42
    v_mul_f32 v9, v9, v43
    v_cvt_pk_bf16_f32 v10, v18, v19
    v_cvt_pk_bf16_f32 v11, v8, v9
    buffer_store_dwordx2 v[10:11], v7, s[36:39], 0 offen
    """)

def make_epi_gemm3(xin_off, out_ws_off):
    def epi(TM, TN, ACC, pre):
        E = G_EPR
        R, C = E, E+1
        Z = E + 2
        if pre is True:
            a.srd(32, 14, 2621440, xin_off)
            for i in range(TM):
                a(f"""
                v_add_u32 v23, {32*i}, v{R}
                v_mul_u32_u24 v{Z+20}, 1280, v23
                """)
                for j in range(TN):
                    for q in range(4):
                        z = Z + 2*((i*TN+j)*4 + q)
                        a(f"""
                        v_add_u32 v23, {32*j+8*q}, v{C}
                        v_lshl_add_u32 v23, v23, 1, v{Z+20}
                        buffer_load_dwordx2 v[{z}:{z+1}], v23, s[32:35], 0 offen
                        """)
            return
        if pre == 'setup':
            if out_ws_off is None:
                a.srd(36, 12, 2621440)
            else:
                a.srd(36, 14, 2621440, out_ws_off)
            return
        a(f"""
        s_lshl_b32 s56, s48, 1
        s_set_gpr_idx_on s56, gpr_idx(SRC0)
        v_mov_b32 v16, v{Z}
        v_mov_b32 v17, v{Z+1}
        s_set_gpr_idx_off
        v_mul_u32_u24 v6, 1280, v4
        v_lshl_add_u32 v7, v5, 1, v6
        """)
        a.rnd2(40, 41, 8)
        a.rnd2(42, 43, 8)
        a.unpack(18, 19, 16)
        a.unpack(8, 9, 17)
        a("""
        v_add_f32 v18, v18, v40
        v_add_f32 v19, v19, v41
        v_add_f32 v8, v8, v42
        v_add_f32 v9, v9, v43
        v_cvt_pk_bf16_f32 v10, v18, v19
        v_cvt_pk_bf16_f32 v11, v8, v9
        buffer_store_dwordx2 v[10:11], v7, s[36:39], 0 offen
        """)
    return epi

gen_prep()
gen_conv()
gen_row('rowa_kernel', A_Q, 0, X1)
gen_row('rowb_kernel', WS, X2, X3)
gen_lnz()
g1, l1 = gen_gemm('gemm1_kernel', 64, 64, 64, 640, 2048, 1728, (WS, HH), (WS, WINT), epi_gemm1, D=4)
g2, l2 = gen_gemm('gemm2_kernel', 64, 32, 64, 2048, 2048, 864, (B_WSP, 0), (WS, Z2T), epi_gemm2)
g3, l3 = gen_gemm('gemm3a_kernel', 32, 32, 64, 896, 2048, 640, (WS, UU), (WS, WOUTT), make_epi_gemm3(X1, X2))
g3, l3 = gen_gemm('gemm3b_kernel', 32, 32, 64, 896, 2048, 640, (WS, UU), (WS, WOUTT), make_epi_gemm3(X3, None))

launches = [
    ('prep_kernel', 1460, 5120),
    ('conv_kernel', 640, KVL + 9216),
    ('rowa_kernel', 256, 12288),
    ('gemm1_kernel', g1, l1),
    ('lnz_kernel', 256, 16384),
    ('gemm2_kernel', g2, l2),
    ('gemm3a_kernel', g3, l3),
    ('rowb_kernel', 256, 12288),
    ('gemm1_kernel', g1, l1),
    ('lnz_kernel', 256, 16384),
    ('gemm2_kernel', g2, l2),
    ('gemm3b_kernel', g3, l3),
]

ref = open('cdna_kernels/' + NAME + '.s.ref').read().split('\n')
head = [l for l in ref if l.startswith(';') and '@launch' not in l]
out = head[:]
for (k, g, lds) in launches:
    out.append(f'; @launch kernel={k} grid=({g},1,1) block=(256,1,1) lds={lds}')
out.append('.amdgcn_target "amdgcn-amd-amdhsa--gfx950"')
out.append('.text')
out += a.L
out.append('.section .rodata,"a"')
for (k, v, s, acc) in a.kernels:
    out.append('.p2align 6')
    out.append(f'.amdhsa_kernel {k}')
    out.append(f'  .amdhsa_next_free_vgpr {v}')
    out.append(f'  .amdhsa_next_free_sgpr {s}')
    out.append(f'  .amdhsa_accum_offset {((acc+3)//4)*4}')
    out.append('  .amdhsa_group_segment_fixed_size 0')
    out.append('  .amdhsa_kernarg_size 112')
    out.append('  .amdhsa_user_sgpr_count 2')
    out.append('  .amdhsa_user_sgpr_kernarg_segment_ptr 1')
    out.append('  .amdhsa_system_sgpr_workgroup_id_x 1')
    out.append('.end_amdhsa_kernel')
open('cdna_kernels/' + NAME + '.s', 'w').write('\n'.join(out) + '\n')
print('ok', len(out), 'lines', g1, l1, g2, l2, g3, l3)
```

```python
NAME = "interleave_layers__ssm_conv_h3__mixer_gmlp__prompt"

KVR = 0x0
YYT = 0x300000
WINT = 0x600000
WOUTT = 0x900000
X1 = 0xB00000
X2 = 0xE00000
X3 = 0x1100000
HH = 0x1400000
ZZ = 0x1700000
Z2T = 0x1E00000
UU = 0x2200000

A_Q, A_K, A_V, A_SK, A_SSMK, A_D, B_X, B_WIN, B_WSP, B_BSP, B_WOUT, OUT, DBG, WS = [8*i for i in range(14)]

class Asm:
    def __init__(self):
        self.L = []
        self.kernels = []
        self.launches = []
        self.uid = 0
    def __call__(self, s):
        for line in s.strip().split('\n'):
            self.L.append('    ' + line.strip())
    def label(self, l):
        self.L.append(l + ':')
    def newlabel(self, p='L'):
        self.uid += 1
        return f'{p}_{self.uid}'
    def begin(self, label):
        self.L.append('.globl ' + label)
        self.L.append('.p2align 8')
        self.L.append(f'.type {label},@function')
        self.label(label)
    def srd(self, d, p, nbytes, off=0):
        if off:
            self(f's_add_u32 s{d}, s{p}, {off}')
            self(f's_addc_u32 s{d+1}, s{p+1}, 0')
        else:
            self(f's_mov_b32 s{d}, s{p}')
            self(f's_mov_b32 s{d+1}, s{p+1}')
        self(f's_mov_b32 s{d+2}, {nbytes}')
        self(f's_mov_b32 s{d+3}, 0x00020000')
    def rnd2(self, a, b, t):
        self(f'v_cvt_pk_bf16_f32 v{t}, v{a}, v{b}')
        self(f'v_lshlrev_b32 v{a}, 16, v{t}')
        self(f'v_and_b32 v{b}, 0xffff0000, v{t}')
    def unpack(self, lo, hi, src):
        self(f'v_lshlrev_b32 v{lo}, 16, v{src}')
        self(f'v_and_b32 v{hi}, 0xffff0000, v{src}')
    def wave_sum(self, v, t, sdst):
        self('s_nop 1')
        self(f'v_add_f32_dpp v{t}, v{v}, v{v} quad_perm:[1,0,3,2] row_mask:0xf bank_mask:0xf')
        self('s_nop 1')
        self(f'v_add_f32_dpp v{v}, v{t}, v{t} quad_perm:[2,3,0,1] row_mask:0xf bank_mask:0xf')
        self('s_nop 1')
        self(f'v_add_f32_dpp v{t}, v{v}, v{v} row_half_mirror row_mask:0xf bank_mask:0xf')
        self('s_nop 1')
        self(f'v_add_f32_dpp v{v}, v{t}, v{t} row_mirror row_mask:0xf bank_mask:0xf')
        self('s_nop 0')
        self(f'v_readlane_b32 s52, v{v}, 16')
        self(f'v_readlane_b32 s53, v{v}, 32')
        self(f'v_readlane_b32 s54, v{v}, 48')
        self('s_nop 1')
        self(f'v_add_f32 v{v}, s52, v{v}')
        self(f'v_add_f32 v{v}, s53, v{v}')
        self(f'v_add_f32 v{v}, s54, v{v}')
        self('s_nop 0')
        self(f'v_readlane_b32 s{sdst}, v{v}, 0')
        self('s_nop 1')

a = Asm()
import os
STAMP = os.environ.get('STAMP') == '1'
def stamp(i):
    if STAMP:
        a(f's_memtime s[{60+2*i}:{61+2*i}]')
def stamp_out(n):
    if STAMP:
        a(f"""
        s_load_dwordx2 s[4:5], s[0:1], {DBG}
        s_waitcnt lgkmcnt(0)
        s_cmp_lg_u32 s2, 5
        s_cbranch_scc1 skipst_{a.uid}
        """)
        a.srd(8, 4, 256)
        for i in range(n):
            a(f"""
            v_mov_b32 v1, s{60+2*i}
            v_mov_b32 v2, {4*i}
            buffer_store_dword v1, v2, s[8:11], 0 offen
            """)
        a.label(f'skipst_{a.uid}')
        a.uid += 1


def gen_prep():
    k = 'prep_kernel'
    a.begin(k)
    a(f'''
    s_cmp_ge_u32 s2, 1460
    s_cbranch_scc1 prep_done
    s_load_dwordx2 s[4:5], s[0:1], {A_K}
    s_load_dwordx2 s[6:7], s[0:1], {A_V}
    s_load_dwordx2 s[8:9], s[0:1], {A_SK}
    s_load_dwordx2 s[10:11], s[0:1], {B_WIN}
    s_load_dwordx2 s[12:13], s[0:1], {B_WOUT}
    s_load_dwordx2 s[14:15], s[0:1], {WS}
    v_lshrrev_b32 v1, 3, v0
    v_and_b32 v2, 7, v0
    s_waitcnt lgkmcnt(0)
    s_cmp_ge_u32 s2, 640
    s_cbranch_scc1 prep_tr
    ''')
    a(f'''
    s_mov_b32 s16, 429496730
    s_mul_hi_u32 s17, s2, s16
    s_mul_i32 s18, s17, 10
    s_sub_u32 s18, s2, s18
    s_lshl_b32 s19, s17, 5
    s_lshl_b32 s20, s18, 6
    ''')
    a.srd(24, 4, 2621440)
    a.srd(28, 6, 2621440)
    a.srd(32, 8, 5120)
    a.srd(36, 14, 2621440, KVR)
    a(f'''
    v_add_u32 v3, s19, v1
    v_mul_u32_u24 v3, 1280, v3
    v_lshlrev_b32 v4, 4, v2
    v_add_u32 v3, v3, v4
    s_lshl_b32 s21, s20, 1
    v_add_u32 v3, s21, v3
    v_subrev_u32 v5, 1280, v3
    v_subrev_u32 v6, 2560, v3
    v_subrev_u32 v7, 3840, v3
    buffer_load_dwordx4 v[8:11], v3, s[24:27], 0 offen
    buffer_load_dwordx4 v[12:15], v5, s[24:27], 0 offen
    buffer_load_dwordx4 v[16:19], v6, s[24:27], 0 offen
    buffer_load_dwordx4 v[20:23], v7, s[24:27], 0 offen
    buffer_load_dwordx4 v[24:27], v3, s[28:31], 0 offen
    v_lshlrev_b32 v4, 6, v2
    s_lshl_b32 s21, s20, 3
    v_add_u32 v4, s21, v4
    buffer_load_dwordx4 v[28:31], v4, s[32:35], 0 offen
    buffer_load_dwordx4 v[32:35], v4, s[32:35], 0 offen offset:16
    buffer_load_dwordx4 v[36:39], v4, s[32:35], 0 offen offset:32
    buffer_load_dwordx4 v[40:43], v4, s[32:35], 0 offen offset:48
    ''')
    a('''
    v_mul_u32_u24 v44, 640, v2
    v_sub_u32 v45, 31, v1
    v_lshlrev_b32 v45, 1, v45
    v_add_u32 v44, v44, v45
    s_waitcnt vmcnt(0)
    ''')
    for e in range(8):
        w = e // 2
        def g(dst, base):
            if e % 2 == 0:
                a(f'v_lshlrev_b32 v{dst}, 16, v{base+w}')
            else:
                a(f'v_and_b32 v{dst}, 0xffff0000, v{base+w}')
        g(50, 8); g(51, 12); g(52, 16); g(53, 20); g(54, 24)
        a.unpack(55, 56, 28 + 2*e)
        a.unpack(57, 58, 29 + 2*e)
        a(f'''
        v_mul_f32 v60, v53, v58
        v_mul_f32 v61, v52, v57
        ''')
        a.rnd2(60, 61, 62)
        a(f'''
        v_add_f32 v60, v60, v61
        v_mul_f32 v61, v51, v56
        ''')
        a.rnd2(60, 61, 62)
        a(f'''
        v_add_f32 v60, v60, v61
        v_mul_f32 v61, v50, v55
        ''')
        a.rnd2(60, 61, 62)
        a(f'''
        v_add_f32 v60, v60, v61
        v_cvt_pk_bf16_f32 v62, v60, v60
        v_lshlrev_b32 v60, 16, v62
        v_mul_f32 v60, v60, v54
        v_cvt_pk_bf16_f32 v62, v60, v60
        ds_write_b16 v44, v62 offset:{80*e}
        ''')
    a(f'''
    s_waitcnt lgkmcnt(0)
    s_barrier
    v_lshrrev_b32 v45, 2, v0
    v_and_b32 v46, 3, v0
    v_mul_u32_u24 v47, 80, v45
    v_lshlrev_b32 v48, 4, v46
    v_add_u32 v47, v47, v48
    ds_read_b128 v[8:11], v47
    v_add_u32 v45, s20, v45
    v_lshlrev_b32 v45, 12, v45
    s_sub_u32 s21, 2016, s19
    s_lshl_b32 s21, s21, 1
    v_add_u32 v45, s21, v45
    v_add_u32 v45, v45, v48
    s_waitcnt lgkmcnt(0)
    buffer_store_dwordx4 v[8:11], v45, s[36:39], 0 offen
    s_branch prep_done
    ''')
    a.label('prep_tr')
    a('''
    s_sub_u32 s16, s2, 640
    s_cmp_ge_u32 s16, 540
    s_cbranch_scc1 prep_tr2
    ''')
    a(f'''
    s_mov_b32 s17, 159072863
    s_mul_hi_u32 s18, s16, s17
    s_mul_i32 s19, s18, 27
    s_sub_u32 s19, s16, s19
    s_mov_b32 s20, 640
    s_mov_b32 s21, 1728
    ''')
    a.srd(24, 10, 2211840)
    a.srd(28, 14, 2211840, WINT)
    a('s_branch prep_tr3')
    a.label('prep_tr2')
    a(f'''
    s_sub_u32 s16, s16, 540
    s_mov_b32 s17, 429496730
    s_mul_hi_u32 s18, s16, s17
    s_mul_i32 s19, s18, 10
    s_sub_u32 s19, s16, s19
    s_mov_b32 s20, 896
    s_mov_b32 s21, 640
    ''')
    a.srd(24, 12, 1105920)
    a.srd(28, 14, 1146880, WOUTT)
    a.label('prep_tr3')
    a('''
    s_lshl_b32 s22, s18, 5
    s_lshl_b32 s23, s19, 6
    v_add_u32 v3, s22, v1
    v_mul_lo_u32 v3, v3, s21
    v_lshlrev_b32 v4, 3, v2
    v_add_u32 v3, v3, v4
    v_add_u32 v3, s23, v3
    v_lshlrev_b32 v3, 1, v3
    buffer_load_dwordx4 v[8:11], v3, s[24:27], 0 offen
    v_mul_u32_u24 v44, 640, v2
    v_lshlrev_b32 v45, 1, v1
    v_add_u32 v44, v44, v45
    s_waitcnt vmcnt(0)
    ''')
    for e in range(8):
        if e % 2 == 0:
            a(f'ds_write_b16 v44, v{8+e//2} offset:{80*e}')
        else:
            a(f'ds_write_b16_d16_hi v44, v{8+e//2} offset:{80*e}')
    a('''
    s_waitcnt lgkmcnt(0)
    s_barrier
    v_lshrrev_b32 v45, 2, v0
    v_and_b32 v46, 3, v0
    v_mul_u32_u24 v47, 80, v45
    v_lshlrev_b32 v48, 4, v46
    v_add_u32 v47, v47, v48
    ds_read_b128 v[8:11], v47
    v_add_u32 v45, s23, v45
    v_mul_lo_u32 v45, v45, s20
    v_add_u32 v45, s22, v45
    v_lshlrev_b32 v45, 1, v45
    v_add_u32 v45, v45, v48
    s_waitcnt lgkmcnt(0)
    buffer_store_dwordx4 v[8:11], v45, s[28:31], 0 offen
    ''')
    a.label('prep_done')
    a('s_endpgm')
    a.kernels.append((k, 64, 48, 64))

HP = 4256
KVL = 8 * HP
def gen_conv():
    k = 'conv_kernel'
    a.begin(k)
    a(f'''
    s_cmp_ge_u32 s2, 640
    s_cbranch_scc1 conv_done
    s_load_dwordx2 s[4:5], s[0:1], {A_SSMK}
    s_load_dwordx2 s[6:7], s[0:1], {A_D}
    s_load_dwordx2 s[14:15], s[0:1], {WS}
    s_lshl_b32 s16, s2, 12
    s_waitcnt lgkmcnt(0)
    s_add_u32 s4, s4, s16
    s_addc_u32 s5, s5, 0
    s_add_u32 s8, s14, s16
    s_addc_u32 s9, s15, 0
    ''')
    a.srd(24, 4, 4096)
    a.srd(28, 8, 4096, KVR)
    a.srd(32, 8, 4096, YYT)
    a.srd(36, 6, 1280)
    def fill(ci_reg):
        a(f'''
        v_lshlrev_b32 v3, 4, v{ci_reg}
        v_subrev_u32 v4, 128, v3
        v_subrev_u32 v5, 112, v3
        buffer_load_dwordx4 v[8:11], v4, s[24:27], 0 offen
        buffer_load_dwordx4 v[12:15], v5, s[24:27], 0 offen
        s_waitcnt vmcnt(0)
        ''')
        for c in range(8):
            if c % 2 == 0:
                j = c // 2
                if j == 0:
                    a(f'ds_write_b128 v3, v[8:11] offset:{c*HP}')
                else:
                    for i in range(4):
                        a(f'v_mov_b32 v{16+i}, v{8+j+i}')
                    a(f'ds_write_b128 v3, v[16:19] offset:{c*HP}')
            else:
                j = (c - 1) // 2
                base = 20 if (c % 4 == 1) else 24
                for i in range(4):
                    a(f'v_alignbit_b32 v{base+i}, v{8+j+i+1}, v{8+j+i}, 16')
                a(f'ds_write_b128 v3, v[{base}:{base+3}] offset:{c*HP}')
    fill(0)
    a('''
    v_add_u32 v2, 256, v0
    v_cmp_gt_u32 vcc, 265, v2
    s_and_saveexec_b64 s[40:41], vcc
    s_cbranch_execz conv_f2
    ''')
    fill(2)
    a.label('conv_f2')
    a('s_mov_b64 exec, s[40:41]')
    a(f'''
    v_lshlrev_b32 v3, 4, v0
    buffer_load_dwordx4 v[8:11], v3, s[28:31], 0 offen
    s_lshl_b32 s17, s2, 1
    v_mov_b32 v4, s17
    buffer_load_ushort v30, v4, s[36:39], 0 offen
    v_mov_b32 v12, 0
    v_mov_b32 v13, 0
    v_mov_b32 v14, 0
    v_mov_b32 v15, 0
    v_lshrrev_b32 v5, 3, v0
    v_lshlrev_b32 v5, 4, v5
    v_add_u32 v3, v3, v5
    ds_write_b128 v3, v[12:15] offset:{KVL+4608}
    s_waitcnt vmcnt(0)
    ds_write_b128 v3, v[8:11] offset:{KVL}
    v_lshlrev_b32 v30, 16, v30
    ''')
    a('''
    v_lshrrev_b32 v1, 6, v0
    v_and_b32 v2, 63, v0
    v_and_b32 v3, 31, v2
    v_lshrrev_b32 v4, 5, v2
    ''')
    for r in range(2):
        a(f'''
        v_lshlrev_b32 v5, 1, v3
        v_add_u32 v5, {r+1}, v5
        v_and_b32 v6, 7, v5
        v_mul_u32_u24 v6, {HP}, v6
        v_and_b32 v5, 0x78, v5
        v_lshlrev_b32 v7, 9, v1
        v_add_u32 v5, v5, v7
        v_lshlrev_b32 v7, 3, v4
        v_add_u32 v5, v5, v7
        v_lshlrev_b32 v5, 1, v5
        v_add_u32 v{32+r}, v5, v6
        ''')
    a(f'''
    v_lshlrev_b32 v5, 6, v3
    v_sub_u32 v5, 1984, v5
    v_lshlrev_b32 v7, 9, v1
    v_add_u32 v5, v5, v7
    v_lshlrev_b32 v7, 3, v4
    v_add_u32 v5, v5, v7
    v_lshrrev_b32 v6, 6, v5
    v_lshlrev_b32 v6, 4, v6
    v_lshlrev_b32 v5, 1, v5
    v_add_u32 v5, v5, v6
    v_add_u32 v34, {KVL}, v5
    ''')
    for i in range(32):
        a(f'v_mov_b32 v{64+i}, 0')
    a('''
    s_waitcnt lgkmcnt(0)
    s_barrier
    ''')
    def rd(step, s):
        b = 40 + 12*s
        a(f'''
        ds_read_b128 v[{b}:{b+3}], v32 offset:{32*step}
        ds_read_b128 v[{b+4}:{b+7}], v33 offset:{32*step}
        ds_read_b128 v[{b+8}:{b+11}], v34 offset:{32*step + 16*(step>>2)}
        ''')
    rd(0, 0)
    for step in range(32):
        s = step & 1
        if step + 1 < 32:
            rd(step + 1, s ^ 1)
            a('s_waitcnt lgkmcnt(3)')
        else:
            a('s_waitcnt lgkmcnt(0)')
        b = 40 + 12*s
        a(f'''
        v_mfma_f32_32x32x16_bf16 v[64:79], v[{b}:{b+3}], v[{b+8}:{b+11}], v[64:79]
        v_mfma_f32_32x32x16_bf16 v[80:95], v[{b+4}:{b+7}], v[{b+8}:{b+11}], v[80:95]
        ''')
    a('''
    s_barrier
    s_nop 7
    s_nop 7
    v_lshlrev_b32 v5, 13, v1
    v_lshlrev_b32 v6, 2, v2
    v_add_u32 v5, v5, v6
    ''')
    for r in range(2):
        for j in range(16):
            a(f'ds_write_b32 v5, v{64+16*r+j} offset:{r*4096+j*256}')
    a(f'''
    v_and_b32 v5, 7, v0
    v_lshrrev_b32 v5, 1, v5
    v_lshlrev_b32 v5, 10, v5
    v_lshrrev_b32 v6, 3, v0
    v_and_b32 v7, 1, v0
    v_lshlrev_b32 v7, 5, v7
    v_add_u32 v6, v6, v7
    v_lshlrev_b32 v6, 2, v6
    v_add_u32 v5, v5, v6
    v_sub_u32 v6, 255, v0
    v_lshrrev_b32 v7, 3, v6
    v_add_u32 v6, v6, v7
    v_lshlrev_b32 v6, 4, v6
    v_add_u32 v6, {KVL}, v6
    s_waitcnt lgkmcnt(0)
    s_barrier
    ds_read_b128 v[8:11], v6
    ''')
    for e in range(8):
        for w in range(4):
            a(f'ds_read_b32 v{40+4*e+w}, v5 offset:{w*8192 + (e&1)*4096 + (e>>1)*256}')
    a('s_waitcnt lgkmcnt(0)')
    for e in range(8):
        b = 40 + 4*e
        a(f'''
        v_add_f32 v{b}, v{b}, v{b+1}
        v_add_f32 v{b+2}, v{b+2}, v{b+3}
        v_add_f32 v{b}, v{b}, v{b+2}
        ''')
    for e in range(0, 8, 2):
        b0, b1 = 40 + 4*e, 40 + 4*(e+1)
        a.rnd2(b0, b1, 12)
        p0, p1 = 7 - e, 7 - (e+1)
        a(f'''
        v_and_b32 v13, 0xffff0000, v{8 + p0//2}
        v_lshlrev_b32 v14, 16, v{8 + p1//2}
        v_mul_f32 v13, v13, v30
        v_mul_f32 v14, v14, v30
        ''')
        a.rnd2(13, 14, 12)
        a(f'''
        v_add_f32 v13, v13, v{b0}
        v_add_f32 v14, v14, v{b1}
        v_cvt_pk_bf16_f32 v{16+e//2}, v13, v14
        ''')
    a('''
    v_lshlrev_b32 v3, 4, v0
    buffer_store_dwordx4 v[16:19], v3, s[32:35], 0 offen
    ''')
    a.label('conv_done')
    a('s_endpgm')
    a.kernels.append((k, 96, 48, 96))

def ln_rows(vals, n_elems, outs, tmp, neps_s):
    t0, t1, t2, t3 = tmp, tmp+1, tmp+2, tmp+3
    a(f'v_mov_b32 v{t0}, v{vals[0]}')
    for v in vals[1:]:
        a(f'v_add_f32 v{t0}, v{t0}, v{v}')
    a.wave_sum(t0, t1, 50)
    a(f'''
    v_mov_b32 v{t0}, {1.0/n_elems!r}
    v_mul_f32 v{t2}, s50, v{t0}
    ''')
    a(f'v_sub_f32 v{t1}, v{vals[0]}, v{t2}')
    a(f'v_mul_f32 v{t0}, v{t1}, v{t1}')
    for v in vals[1:]:
        a(f'v_sub_f32 v{t1}, v{v}, v{t2}')
        a(f'v_fmac_f32 v{t0}, v{t1}, v{t1}')
    a.wave_sum(t0, t1, 51)
    a(f'''
    v_mov_b32 v{t0}, {1.0/n_elems!r}
    v_mul_f32 v{t3}, s51, v{t0}
    ''')
    a.rnd2(t2, t3, t0)
    a(f'''
    v_add_f32 v{t3}, 0x3727c5ac, v{t3}
    v_cvt_pk_bf16_f32 v{t0}, v{t3}, v{t3}
    v_lshlrev_b32 v{t3}, 16, v{t0}
    v_sqrt_f32 v{t3}, v{t3}
    s_nop 0
    v_cvt_pk_bf16_f32 v{t0}, v{t3}, v{t3}
    v_lshlrev_b32 v{t3}, 16, v{t0}
    v_rcp_f32 v{t1}, v{t3}
    s_nop 0
    ''')
    a(f'''
    v_fma_f32 v{t0}, -v{t3}, v{t1}, 2.0
    v_mul_f32 v{t1}, v{t1}, v{t0}
    ''')
    for i in range(0, len(vals), 2):
        o0, o1 = outs[i], outs[i+1]
        a(f'''
        v_sub_f32 v{o0}, v{vals[i]}, v{t2}
        v_sub_f32 v{o1}, v{vals[i+1]}, v{t2}
        ''')
        a.rnd2(o0, o1, t0)
        a(f'''
        v_mul_f32 v{tmp+4}, v{o0}, v{t1}
        v_mul_f32 v{tmp+5}, v{o1}, v{t1}
        v_fma_f32 v{t0}, -v{tmp+4}, v{t3}, v{o0}
        v_fma_f32 v{o0}, v{t0}, v{t1}, v{tmp+4}
        v_fma_f32 v{t0}, -v{tmp+5}, v{t3}, v{o1}
        v_fma_f32 v{o1}, v{t0}, v{t1}, v{tmp+5}
        ''')
        a.rnd2(o0, o1, t0)

def gen_row(k, xin_arg, xin_off, xout_off):
    a.begin(k)
    done = k + '_done'
    a(f'''
    s_cmp_ge_u32 s2, 256
    s_cbranch_scc1 {done}
    s_load_dwordx2 s[4:5], s[0:1], {xin_arg}
    s_load_dwordx2 s[14:15], s[0:1], {WS}
    s_waitcnt lgkmcnt(0)
    ''')
    a.srd(24, 4, 2621440, xin_off)
    a.srd(28, 14, 2621440, YYT)
    a.srd(32, 14, 2621440, xout_off)
    a.srd(36, 14, 2621440, HH)
    a('''
    v_lshrrev_b32 v1, 6, v0
    v_and_b32 v2, 63, v0
    ''')
    for rr in range(2):
        a(f'''
        s_lshl_b32 s17, s2, 3
        s_add_u32 s17, s17, {rr}
        v_lshlrev_b32 v3, 1, v1
        v_add_u32 v3, s17, v3
        v_mul_u32_u24 v3, 1280, v3
        v_lshlrev_b32 v4, 2, v2
        v_add_u32 v{74+rr}, v3, v4
        ''')
        for j in range(5):
            a(f'buffer_load_dword v{64+5*rr+j}, v{74+rr}, s[24:27], 0 offen offset:{256*j}')
    a('''
    s_lshl_b32 s16, s2, 4
    v_lshlrev_b32 v3, 12, v0
    v_add_u32 v3, s16, v3
    v_add_u32 v4, 0x100000, v3
    v_add_u32 v5, 0x200000, v3
    buffer_load_dwordx4 v[8:11], v3, s[28:31], 0 offen
    buffer_load_dwordx4 v[12:15], v4, s[28:31], 0 offen
    buffer_load_dwordx4 v[16:19], v5, s[28:31], 0 offen
    v_lshlrev_b32 v6, 4, v0
    s_waitcnt vmcnt(0)
    ds_write_b128 v6, v[8:11]
    ds_write_b128 v6, v[12:15] offset:4096
    ds_write_b128 v6, v[16:19] offset:8192
    s_waitcnt lgkmcnt(0)
    s_barrier
    ''')
    for rr in range(2):
        a(f'v_mov_b32 v3, v{74+rr}')
        for j in range(5):
            a(f'v_mov_b32 v{8+j}, v{64+5*rr+j}')
        a(f'''
        v_lshlrev_b32 v4, 5, v2
        v_lshlrev_b32 v5, 2, v1
        v_add_u32 v4, v4, v5
        ''')
        for j in range(5):
            a(f'ds_read_u16 v{40+2*j}, v4 offset:{2048*j + 2*rr}')
            a(f'ds_read_u16 v{41+2*j}, v4 offset:{2048*j + 16 + 2*rr}')
        a('s_waitcnt lgkmcnt(0)')
        xs = list(range(16, 26))
        for j in range(5):
            a.unpack(16+2*j, 17+2*j, 8+j)
        for j in range(10):
            a(f'v_lshlrev_b32 v{40+j}, 16, v{40+j}')
        qs = list(range(28, 38))
        ln_rows(xs, 640, qs, 56, None)
        for i in range(0, 10, 2):
            a(f'''
            v_mul_f32 v{qs[i]}, v{qs[i]}, v{40+i}
            v_mul_f32 v{qs[i+1]}, v{qs[i+1]}, v{41+i}
            ''')
            a.rnd2(qs[i], qs[i+1], 56)
            a(f'''
            v_add_f32 v{xs[i]}, v{xs[i]}, v{qs[i]}
            v_add_f32 v{xs[i+1]}, v{xs[i+1]}, v{qs[i+1]}
            ''')
            a.rnd2(xs[i], xs[i+1], 56)
            a(f'buffer_store_dword v56, v3, s[32:35], 0 offen offset:{256*(i//2)}')
            a('s_nop 1')
        ln_rows(xs, 640, qs, 56, None)
        for i in range(0, 10, 2):
            a(f'v_cvt_pk_bf16_f32 v{8+i//2}, v{qs[i]}, v{qs[i+1]}')
            a(f'buffer_store_dword v{8+i//2}, v3, s[36:39], 0 offen offset:{256*(i//2)}')
        a('s_nop 2')
    a.label(done)
    a('s_endpgm')
    a.kernels.append((k, 80, 56, 80))

def gen_lnz():
    k = 'lnz_kernel'
    a.begin(k)
    a(f'''
    s_cmp_ge_u32 s2, 256
    s_cbranch_scc1 lnz_done
    s_load_dwordx2 s[14:15], s[0:1], {WS}
    s_waitcnt lgkmcnt(0)
    ''')
    a.srd(24, 14, 7077888, ZZ)
    a.srd(28, 14, 3538944, Z2T)
    a('''
    v_lshrrev_b32 v1, 6, v0
    v_and_b32 v2, 63, v0
    ''')
    for rr in range(2):
        a(f'''
        s_lshl_b32 s17, s2, 3
        s_add_u32 s17, s17, {rr}
        v_lshlrev_b32 v3, 1, v1
        v_add_u32 v3, s17, v3
        v_mul_u32_u24 v3, 3456, v3
        v_lshlrev_b32 v4, 2, v2
        v_add_u32 v3, v3, v4
        v_mov_b32 v{64+7*rr+6}, 0
        ''')
        for j in range(6):
            a(f'buffer_load_dword v{64+7*rr+j}, v3, s[24:27], 0 offen offset:{1728 + 256*j}')
        a(f'''
        v_cmp_gt_u32 vcc, 48, v2
        s_and_saveexec_b64 s[40:41], vcc
        buffer_load_dword v{64+7*rr+6}, v3, s[24:27], 0 offen offset:{1728 + 256*6}
        s_mov_b64 exec, s[40:41]
        ''')
    a('s_waitcnt vmcnt(0)')
    for rr in range(2):
        for j in range(7):
            a(f'v_mov_b32 v{8+j}, v{64+7*rr+j}')
        xs = list(range(16, 30))
        for j in range(7):
            a.unpack(16+2*j, 17+2*j, 8+j)
        t0, t1, t2, t3 = 56, 57, 58, 59
        a(f'v_mov_b32 v{t0}, v16')
        for v in xs[1:]:
            a(f'v_add_f32 v{t0}, v{t0}, v{v}')
        a.wave_sum(t0, t1, 50)
        a(f'''
        v_mov_b32 v{t0}, {1.0/864!r}
        v_mul_f32 v{t2}, s50, v{t0}
        v_mov_b32 v{t0}, 0
        ''')
        for v in xs[:12]:
            a(f'v_sub_f32 v{t1}, v{v}, v{t2}')
            a(f'v_fmac_f32 v{t0}, v{t1}, v{t1}')
        a(f'''
        v_cmp_gt_u32 vcc, 48, v2
        v_sub_f32 v{t1}, v28, v{t2}
        v_mul_f32 v{t1}, v{t1}, v{t1}
        v_sub_f32 v{t3}, v29, v{t2}
        v_fmac_f32 v{t1}, v{t3}, v{t3}
        v_cndmask_b32 v{t1}, 0, v{t1}, vcc
        v_add_f32 v{t0}, v{t0}, v{t1}
        ''')
        a.wave_sum(t0, t1, 51)
        a(f'''
        v_mov_b32 v{t0}, {1.0/864!r}
        v_mul_f32 v{t3}, s51, v{t0}
        ''')
        a.rnd2(t2, t3, t0)
        a(f'''
        v_add_f32 v{t3}, 0x3727c5ac, v{t3}
        v_cvt_pk_bf16_f32 v{t0}, v{t3}, v{t3}
        v_lshlrev_b32 v{t3}, 16, v{t0}
        v_sqrt_f32 v{t3}, v{t3}
        s_nop 0
        v_cvt_pk_bf16_f32 v{t0}, v{t3}, v{t3}
        v_lshlrev_b32 v{t3}, 16, v{t0}
        v_rcp_f32 v{t1}, v{t3}
        s_nop 0
        v_fma_f32 v{t0}, -v{t3}, v{t1}, 2.0
        v_mul_f32 v{t1}, v{t1}, v{t0}
        ''')
        a(f'''
        v_lshlrev_b32 v4, 5, v2
        v_lshlrev_b32 v5, 2, v1
        v_add_u32 v4, v4, v5
        ''')
        for j in range(7):
            o0, o1 = 40, 41
            a(f'''
            v_sub_f32 v{o0}, v{xs[2*j]}, v{t2}
            v_sub_f32 v{o1}, v{xs[2*j+1]}, v{t2}
            ''')
            a.rnd2(o0, o1, t0)
            a(f'''
            v_mul_f32 v60, v{o0}, v{t1}
            v_mul_f32 v61, v{o1}, v{t1}
            v_fma_f32 v{t0}, -v60, v{t3}, v{o0}
            v_fma_f32 v{o0}, v{t0}, v{t1}, v60
            v_fma_f32 v{t0}, -v61, v{t3}, v{o1}
            v_fma_f32 v{o1}, v{t0}, v{t1}, v61
            v_cvt_pk_bf16_f32 v{42+j}, v{o0}, v{o1}
            ds_write_b16 v4, v{42+j} offset:{2048*j + 2*rr}
            ds_write_b16_d16_hi v4, v{42+j} offset:{2048*j + 16 + 2*rr}
            ''')
    a('''
    s_waitcnt lgkmcnt(0)
    s_barrier
    v_lshlrev_b32 v4, 4, v0
    ds_read_b128 v[8:11], v4
    ds_read_b128 v[12:15], v4 offset:4096
    ds_read_b128 v[16:19], v4 offset:8192
    ds_read_b128 v[20:23], v4 offset:12288
    s_lshl_b32 s16, s2, 4
    v_lshlrev_b32 v3, 12, v0
    v_add_u32 v3, s16, v3
    v_add_u32 v5, 0x100000, v3
    v_add_u32 v6, 0x200000, v3
    v_add_u32 v7, 0x300000, v3
    s_waitcnt lgkmcnt(0)
    buffer_store_dwordx4 v[8:11], v3, s[28:31], 0 offen
    buffer_store_dwordx4 v[12:15], v5, s[28:31], 0 offen
    buffer_store_dwordx4 v[16:19], v6, s[28:31], 0 offen
    buffer_store_dwordx4 v[20:23], v7, s[28:31], 0 offen
    ''')
    a.label('lnz_done')
    a('s_endpgm')
    a.kernels.append((k, 80, 56, 80))

def gen_gemm(k, WM, WN, BK, K, M, N, A_src, B_src, epi, D=4):
    BM, BN = 2*WM, 2*WN
    TM, TN = WM//32, WN//32
    nmt, nnt = M//BM, -(-N//BN)
    rowb = 128
    nsteps = K//BK
    Abytes, Bbytes = BM*rowb, BN*rowb
    stage = Abytes + Bbytes
    nla, nlb = Abytes//4096, Bbytes//4096
    nl = nla + nlb
    done = k + '_done'
    a.begin(k)
    a(f"""
    s_cmp_ge_u32 s2, {nmt*nnt}
    s_cbranch_scc1 {done}
    """)
    stamp(0)
    a(f"""
    s_load_dwordx2 s[4:5], s[0:1], {A_src[0]}
    s_load_dwordx2 s[6:7], s[0:1], {B_src[0]}
    s_load_dwordx2 s[14:15], s[0:1], {WS}
    s_load_dwordx2 s[10:11], s[0:1], {B_BSP}
    s_load_dwordx2 s[12:13], s[0:1], {OUT}
    s_and_b32 s16, s2, {nmt-1}
    s_lshr_b32 s17, s2, {nmt.bit_length()-1}
    s_mul_i32 s18, s16, {BM}
    s_mul_i32 s19, s17, {BN}
    v_lshrrev_b32 v1, 6, v0
    v_lshlrev_b32 v1, 10, v1
    s_nop 0
    v_readfirstlane_b32 s22, v1
    s_waitcnt lgkmcnt(0)
    """)
    a.srd(24, 4, M*K*2, A_src[1])
    a.srd(28, 6, N*K*2, B_src[1])
    a(f"""
    v_lshrrev_b32 v1, 3, v0
    v_and_b32 v2, 7, v0
    v_lshrrev_b32 v3, 1, v1
    v_and_b32 v3, 7, v3
    v_xor_b32 v2, v2, v3
    v_lshlrev_b32 v2, 4, v2
    v_add_u32 v3, s18, v1
    v_mul_u32_u24 v3, {K*2}, v3
    v_add_u32 v4, v3, v2
    v_add_u32 v3, s19, v1
    v_mul_u32_u24 v3, {K*2}, v3
    v_add_u32 v8, v3, v2
    """)
    for i in range(1, nla):
        a(f'v_add_u32 v{4+i}, {32*i*K*2}, v4')
    for i in range(1, nlb):
        a(f'v_add_u32 v{8+i}, {32*i*K*2}, v8')
    a("""
    v_lshrrev_b32 v1, 6, v0
    v_and_b32 v2, 63, v0
    v_and_b32 v3, 31, v2
    v_lshrrev_b32 v20, 5, v2
    v_and_b32 v21, 1, v1
    v_lshrrev_b32 v22, 1, v1
    """)
    nkk = 4
    AB, AR = 12, 24
    for (isB, wsel, W, R) in ((0, 21, WM, AB), (1, 22, WN, AB+4)):
        a(f"""
        v_mul_u32_u24 v23, {W}, v{wsel}
        v_add_u32 v23, v23, v3
        v_lshrrev_b32 v{R}, 1, v23
        v_and_b32 v{R}, 7, v{R}
        v_xor_b32 v{R}, v{R}, v20
        v_mul_u32_u24 v23, {rowb}, v23
        """)
        if isB:
            a(f'v_add_u32 v23, {Abytes}, v23')
        for kk in range(3, -1, -1):
            a(f"""
            v_xor_b32 v{R+kk}, {2*kk}, v{R}
            v_lshl_add_u32 v{R+kk}, v{R+kk}, 4, v23
            """)
    FA = 32
    FB = FA + 4*TM*2
    ACC = 64
    nacc = TM*TN*16
    EPR = ACC + nacc
    global G_EPR
    G_EPR = EPR
    assert FB + 4*TN*2 <= ACC
    for i in range(nacc):
        a(f'v_mov_b32 v{ACC+i}, 0')
    a(f"""
    v_mul_u32_u24 v23, {WM}, v21
    v_add_u32 v23, v23, v3
    v_add_u32 v{EPR}, s18, v23
    v_mul_u32_u24 v23, {WN}, v22
    v_lshlrev_b32 v{EPR+1}, 2, v20
    v_add_u32 v23, v23, v{EPR+1}
    v_add_u32 v{EPR+1}, s19, v23
    """)
    epi(TM, TN, ACC, True)
    def gload():
        for i in range(nl):
            a(f's_add_u32 m0, s55, {i*4096}')
            a('s_nop 0')
            if i < nla:
                a(f'buffer_load_dwordx4 v{4+i}, s[24:27], s20 offen lds')
            else:
                a(f'buffer_load_dwordx4 v{8+i-nla}, s[28:31], s20 offen lds')
        a(f"""
        s_add_u32 s20, s20, {rowb}
        s_add_u32 s55, s55, {stage}
        s_cmp_lt_u32 s55, {D*stage}
        s_cselect_b32 s55, s55, s22
        """)
    lp, lm, lw, lnl = [a.newlabel(x) for x in ('gp', 'gm', 'gw', 'gn')]
    a(f"""
    s_mov_b32 s20, 0
    s_mov_b32 s55, s22
    s_mov_b32 s48, 0
    s_mov_b32 s49, 0
    """)
    stamp(1)
    a.label(lp)
    gload()
    a(f"""
    s_add_u32 s48, s48, 1
    s_cmp_lt_u32 s48, {D-1}
    s_cbranch_scc1 {lp}
    s_mov_b32 s48, 0
    """)
    stamp(2)
    a.label(lm)
    a(f"""
    s_cmp_lt_u32 s48, {nsteps-(D-2)}
    s_cbranch_scc1 {lw}
    s_waitcnt vmcnt(0)
    """)
    a.label(lw)
    a(f"""
    s_waitcnt vmcnt({nl*(D-2)})
    s_barrier
    """)
    for i in range(8):
        a(f'v_add_u32 v{AR+i}, s49, v{AB+i}')
    def rd(kk, s):
        for i in range(TM):
            f = FA + 4*(s*TM + i)
            a(f'ds_read_b128 v[{f}:{f+3}], v{AR+kk} offset:{i*32*rowb}')
        for i in range(TN):
            f = FB + 4*(s*TN + i)
            a(f'ds_read_b128 v[{f}:{f+3}], v{AR+4+kk} offset:{i*32*rowb}')
    rd(0, 0)
    a(f"""
    s_cmp_lt_u32 s48, {nsteps-(D-1)}
    s_cbranch_scc0 {lnl}
    """)
    lend = a.newlabel('gx')
    for withload in (True, False):
        if not withload:
            a.label(lnl)
        nm = 0
        li = 0
        tot = nkk*TM*TN
        for kk in range(nkk):
            s_ = kk & 1
            if kk + 1 < nkk:
                rd(kk+1, s_ ^ 1)
                a(f's_waitcnt lgkmcnt({TM+TN})')
            else:
                a('s_waitcnt lgkmcnt(0)')
            for i in range(TM):
                for j in range(TN):
                    fa = FA + 4*(s_*TM + i)
                    fb = FB + 4*(s_*TN + j)
                    c = ACC + 16*(i*TN + j)
                    a(f'v_mfma_f32_32x32x16_bf16 v[{c}:{c+15}], v[{fb}:{fb+3}], v[{fa}:{fa+3}], v[{c}:{c+15}]')
                    nm += 1
                    if withload:
                        while li < nl and li * tot < nm * nl:
                            a(f's_add_u32 m0, s55, {li*4096}')
                            a('s_nop 0')
                            if li < nla:
                                a(f'buffer_load_dwordx4 v{4+li}, s[24:27], s20 offen lds')
                            else:
                                a(f'buffer_load_dwordx4 v{8+li-nla}, s[28:31], s20 offen lds')
                            li += 1
        if withload:
            a(f"""
            s_add_u32 s20, s20, {rowb}
            s_add_u32 s55, s55, {stage}
            s_cmp_lt_u32 s55, {D*stage}
            s_cselect_b32 s55, s55, s22
            s_branch {lend}
            """)
    a.label(lend)
    a(f"""
    s_add_u32 s49, s49, {stage}
    s_cmp_lt_u32 s49, {D*stage}
    s_cselect_b32 s49, s49, 0
    s_add_u32 s48, s48, 1
    s_cmp_lt_u32 s48, {nsteps}
    s_cbranch_scc1 {lm}
    s_nop 7
    s_nop 7
    """)
    stamp(3)
    le = a.newlabel('ge')
    lg = TN.bit_length() - 1
    epi(TM, TN, ACC, 'setup')
    a('s_mov_b32 s48, 0')
    a.label(le)
    a(f"""
    s_lshl_b32 s56, s48, 2
    s_lshr_b32 s49, s48, {2+lg}
    s_lshl_b32 s49, s49, 5
    s_lshr_b32 s55, s48, 2
    s_and_b32 s55, s55, {TN-1}
    s_lshl_b32 s55, s55, 5
    s_and_b32 s20, s48, 3
    s_lshl_b32 s20, s20, 3
    s_add_u32 s55, s55, s20
    s_set_gpr_idx_on s56, gpr_idx(SRC0)
    v_mov_b32 v40, v{ACC}
    v_mov_b32 v41, v{ACC+1}
    v_mov_b32 v42, v{ACC+2}
    v_mov_b32 v43, v{ACC+3}
    s_set_gpr_idx_off
    v_add_u32 v4, s49, v{EPR}
    v_add_u32 v5, s55, v{EPR+1}
    """)
    epi(TM, TN, ACC, 'body')
    a(f"""
    s_add_u32 s48, s48, 1
    s_cmp_lt_u32 s48, {nacc//4}
    s_cbranch_scc1 {le}
    s_waitcnt vmcnt(0)
    """)
    stamp(4)
    stamp_out(5)
    a.label(done)
    a('s_endpgm')
    lds = D*stage
    a.kernels.append((k, EPR + 2 + 24, 80, EPR + 2 + 24))
    return nmt*nnt, lds

def gelu_regs(x, t0, t1):
    a(f'''
    v_mul_f32 v{t0}, v{x}, v{x}
    v_mul_f32 v{t0}, v{t0}, v{x}
    v_fma_f32 v{t0}, v{t0}, s46, v{x}
    v_mul_f32 v{t0}, s47, v{t0}
    v_exp_f32 v{t0}, v{t0}
    s_nop 0
    v_add_f32 v{t0}, 1.0, v{t0}
    v_rcp_f32 v{t0}, v{t0}
    s_nop 0
    v_fma_f32 v{t0}, v{t0}, -2.0, 2.0
    v_mul_f32 v{t1}, 0.5, v{x}
    v_mul_f32 v{x}, v{t1}, v{t0}
    ''')

def epi_gemm1(TM, TN, ACC, pre):
    if pre is True:
        return
    if pre == 'setup':
        a.srd(32, 14, 7077888, ZZ)
        a("""
        v_mov_b32 v48, 0x3dd2d3e8
        v_mov_b32 v49, 0x3dd2d3e8
        v_mov_b32 v50, 0x40135761
        v_mov_b32 v51, 0x40135761
        v_mov_b32 v52, 1.0
        v_mov_b32 v53, 1.0
        """)
        return
    a.rnd2(40, 41, 8)
    a.rnd2(42, 43, 9)
    a("""
    v_pk_mul_f32 v[44:45], v[40:41], v[40:41]
    v_pk_mul_f32 v[46:47], v[42:43], v[42:43]
    v_pk_fma_f32 v[44:45], v[44:45], v[48:49], v[50:51]
    v_pk_fma_f32 v[46:47], v[46:47], v[48:49], v[50:51]
    v_pk_mul_f32 v[44:45], v[44:45], v[40:41]
    v_pk_mul_f32 v[46:47], v[46:47], v[42:43]
    v_exp_f32 v44, v44
    v_exp_f32 v45, v45
    v_exp_f32 v46, v46
    v_exp_f32 v47, v47
    v_pk_add_f32 v[44:45], v[44:45], v[52:53]
    v_pk_add_f32 v[46:47], v[46:47], v[52:53]
    v_rcp_f32 v44, v44
    v_rcp_f32 v45, v45
    v_rcp_f32 v46, v46
    v_rcp_f32 v47, v47
    s_nop 0
    v_pk_fma_f32 v[40:41], v[40:41], v[44:45], v[40:41] neg_lo:[1,0,0] neg_hi:[1,0,0]
    v_pk_fma_f32 v[42:43], v[42:43], v[46:47], v[42:43] neg_lo:[1,0,0] neg_hi:[1,0,0]
    """)
    a("""
    v_cvt_pk_bf16_f32 v10, v40, v41
    v_cvt_pk_bf16_f32 v11, v42, v43
    v_mul_u32_u24 v6, 3456, v4
    v_cmp_gt_u32 vcc, 1728, v5
    v_lshl_add_u32 v7, v5, 1, v6
    s_and_saveexec_b64 s[40:41], vcc
    buffer_store_dwordx2 v[10:11], v7, s[32:35], 0 offen
    s_mov_b64 exec, s[40:41]
    """)

def epi_gemm2(TM, TN, ACC, pre):
    E = G_EPR
    R, C = E, E+1
    Z = E + 2
    nq = TM*TN*4
    BS = Z + 2*nq
    if pre is True:
        a.srd(32, 14, 7077888, ZZ)
        a.srd(44, 10, 4096)
        for i in range(TM):
            a(f"""
            v_add_u32 v23, {32*i}, v{R}
            v_lshlrev_b32 v{BS+4}, 1, v23
            buffer_load_ushort v{BS+i}, v{BS+4}, s[44:47], 0 offen
            v_mul_u32_u24 v{BS+5}, 3456, v23
            """)
            for j in range(TN):
                for q in range(4):
                    z = Z + 2*((i*TN+j)*4 + q)
                    a(f"""
                    v_add_u32 v23, {32*j+8*q}, v{C}
                    v_cmp_gt_u32 vcc, 864, v23
                    v_lshl_add_u32 v23, v23, 1, v{BS+5}
                    s_nop 0
                    v_cndmask_b32 v23, -1, v23, vcc
                    buffer_load_dwordx2 v[{z}:{z+1}], v23, s[32:35], 0 offen
                    """)
        return
    if pre == 'setup':
        a.srd(36, 14, 3670016, UU)
        for i in range(TM):
            a(f'v_lshlrev_b32 v{BS+i}, 16, v{BS+i}')
        return
    lg = TN.bit_length() - 1
    a(f"""
    s_lshl_b32 s56, s48, 1
    s_set_gpr_idx_on s56, gpr_idx(SRC0)
    v_mov_b32 v16, v{Z}
    v_mov_b32 v17, v{Z+1}
    s_set_gpr_idx_off
    s_lshr_b32 s56, s48, {2+lg}
    s_set_gpr_idx_on s56, gpr_idx(SRC0)
    v_mov_b32 v12, v{BS}
    s_set_gpr_idx_off
    v_mul_u32_u24 v6, 1792, v4
    v_lshl_add_u32 v7, v5, 1, v6
    """)
    a.rnd2(40, 41, 8)
    a.rnd2(42, 43, 8)
    for e in range(4):
        a(f'v_add_f32 v{40+e}, v{40+e}, v12')
    a.rnd2(40, 41, 8)
    a.rnd2(42, 43, 8)
    a.unpack(18, 19, 16)
    a.unpack(8, 9, 17)
    a("""
    v_mul_f32 v18, v18, v40
    v_mul_f32 v19, v19, v41
    v_mul_f32 v8, v8, v42
    v_mul_f32 v9, v9, v43
    v_cvt_pk_bf16_f32 v10, v18, v19
    v_cvt_pk_bf16_f32 v11, v8, v9
    buffer_store_dwordx2 v[10:11], v7, s[36:39], 0 offen
    """)

def make_epi_gemm3(xin_off, out_ws_off):
    def epi(TM, TN, ACC, pre):
        E = G_EPR
        R, C = E, E+1
        Z = E + 2
        if pre is True:
            a.srd(32, 14, 2621440, xin_off)
            for i in range(TM):
                a(f"""
                v_add_u32 v23, {32*i}, v{R}
                v_mul_u32_u24 v{Z+20}, 1280, v23
                """)
                for j in range(TN):
                    for q in range(4):
                        z = Z + 2*((i*TN+j)*4 + q)
                        a(f"""
                        v_add_u32 v23, {32*j+8*q}, v{C}
                        v_lshl_add_u32 v23, v23, 1, v{Z+20}
                        buffer_load_dwordx2 v[{z}:{z+1}], v23, s[32:35], 0 offen
                        """)
            return
        if pre == 'setup':
            if out_ws_off is None:
                a.srd(36, 12, 2621440)
            else:
                a.srd(36, 14, 2621440, out_ws_off)
            return
        a(f"""
        s_lshl_b32 s56, s48, 1
        s_set_gpr_idx_on s56, gpr_idx(SRC0)
        v_mov_b32 v16, v{Z}
        v_mov_b32 v17, v{Z+1}
        s_set_gpr_idx_off
        v_mul_u32_u24 v6, 1280, v4
        v_lshl_add_u32 v7, v5, 1, v6
        """)
        a.rnd2(40, 41, 8)
        a.rnd2(42, 43, 8)
        a.unpack(18, 19, 16)
        a.unpack(8, 9, 17)
        a("""
        v_add_f32 v18, v18, v40
        v_add_f32 v19, v19, v41
        v_add_f32 v8, v8, v42
        v_add_f32 v9, v9, v43
        v_cvt_pk_bf16_f32 v10, v18, v19
        v_cvt_pk_bf16_f32 v11, v8, v9
        buffer_store_dwordx2 v[10:11], v7, s[36:39], 0 offen
        """)
    return epi

gen_prep()
gen_conv()
gen_row('rowa_kernel', A_Q, 0, X1)
gen_row('rowb_kernel', WS, X2, X3)
gen_lnz()
g1, l1 = gen_gemm('gemm1_kernel', 64, 64, 64, 640, 2048, 1728, (WS, HH), (WS, WINT), epi_gemm1, D=4)
g2, l2 = gen_gemm('gemm2_kernel', 64, 32, 64, 2048, 2048, 864, (B_WSP, 0), (WS, Z2T), epi_gemm2)
g3, l3 = gen_gemm('gemm3a_kernel', 32, 32, 64, 896, 2048, 640, (WS, UU), (WS, WOUTT), make_epi_gemm3(X1, X2))
g3, l3 = gen_gemm('gemm3b_kernel', 32, 32, 64, 896, 2048, 640, (WS, UU), (WS, WOUTT), make_epi_gemm3(X3, None))

launches = [
    ('prep_kernel', 1460, 5120),
    ('conv_kernel', 640, KVL + 9216),
    ('rowa_kernel', 256, 12288),
    ('gemm1_kernel', g1, l1),
    ('lnz_kernel', 256, 16384),
    ('gemm2_kernel', g2, l2),
    ('gemm3a_kernel', g3, l3),
    ('rowb_kernel', 256, 12288),
    ('gemm1_kernel', g1, l1),
    ('lnz_kernel', 256, 16384),
    ('gemm2_kernel', g2, l2),
    ('gemm3b_kernel', g3, l3),
]

ref = open('cdna_kernels/' + NAME + '.s.ref').read().split('\n')
head = [l for l in ref if l.startswith(';') and '@launch' not in l]
out = head[:]
for (k, g, lds) in launches:
    out.append(f'; @launch kernel={k} grid=({g},1,1) block=(256,1,1) lds={lds}')
out.append('.amdgcn_target "amdgcn-amd-amdhsa--gfx950"')
out.append('.text')
out += a.L
out.append('.section .rodata,"a"')
for (k, v, s, acc) in a.kernels:
    out.append('.p2align 6')
    out.append(f'.amdhsa_kernel {k}')
    out.append(f'  .amdhsa_next_free_vgpr {v}')
    out.append(f'  .amdhsa_next_free_sgpr {s}')
    out.append(f'  .amdhsa_accum_offset {((acc+3)//4)*4}')
    out.append('  .amdhsa_group_segment_fixed_size 0')
    out.append('  .amdhsa_kernarg_size 112')
    out.append('  .amdhsa_user_sgpr_count 2')
    out.append('  .amdhsa_user_sgpr_kernarg_segment_ptr 1')
    out.append('  .amdhsa_system_sgpr_workgroup_id_x 1')
    out.append('.end_amdhsa_kernel')
open('stamp.s' if STAMP else 'cdna_kernels/' + NAME + '.s', 'w').write('\n'.join(out) + '\n')
print('ok', len(out), 'lines', g1, l1, g2, l2, g3, l3)
```

```python
NAME = "interleave_layers__ssm_conv_h3__mixer_gmlp__prompt"

KVR = 0x0
YYT = 0x300000
WINT = 0x600000
WOUTT = 0x900000
X1 = 0xB00000
X2 = 0xE00000
X3 = 0x1100000
HH = 0x1400000
ZZ = 0x1700000
Z2T = 0x1E00000
UU = 0x2200000

A_Q, A_K, A_V, A_SK, A_SSMK, A_D, B_X, B_WIN, B_WSP, B_BSP, B_WOUT, OUT, DBG, WS = [8*i for i in range(14)]

class Asm:
    def __init__(self):
        self.L = []
        self.kernels = []
        self.launches = []
        self.uid = 0
    def __call__(self, s):
        for line in s.strip().split('\n'):
            self.L.append('    ' + line.strip())
    def label(self, l):
        self.L.append(l + ':')
    def newlabel(self, p='L'):
        self.uid += 1
        return f'{p}_{self.uid}'
    def begin(self, label):
        self.L.append('.globl ' + label)
        self.L.append('.p2align 8')
        self.L.append(f'.type {label},@function')
        self.label(label)
    def srd(self, d, p, nbytes, off=0):
        if off:
            self(f's_add_u32 s{d}, s{p}, {off}')
            self(f's_addc_u32 s{d+1}, s{p+1}, 0')
        else:
            self(f's_mov_b32 s{d}, s{p}')
            self(f's_mov_b32 s{d+1}, s{p+1}')
        self(f's_mov_b32 s{d+2}, {nbytes}')
        self(f's_mov_b32 s{d+3}, 0x00020000')
    def rnd2(self, a, b, t):
        self(f'v_cvt_pk_bf16_f32 v{t}, v{a}, v{b}')
        self(f'v_lshlrev_b32 v{a}, 16, v{t}')
        self(f'v_and_b32 v{b}, 0xffff0000, v{t}')
    def unpack(self, lo, hi, src):
        self(f'v_lshlrev_b32 v{lo}, 16, v{src}')
        self(f'v_and_b32 v{hi}, 0xffff0000, v{src}')
    def wave_sum(self, v, t, sdst):
        self('s_nop 1')
        self(f'v_add_f32_dpp v{t}, v{v}, v{v} quad_perm:[1,0,3,2] row_mask:0xf bank_mask:0xf')
        self('s_nop 1')
        self(f'v_add_f32_dpp v{v}, v{t}, v{t} quad_perm:[2,3,0,1] row_mask:0xf bank_mask:0xf')
        self('s_nop 1')
        self(f'v_add_f32_dpp v{t}, v{v}, v{v} row_half_mirror row_mask:0xf bank_mask:0xf')
        self('s_nop 1')
        self(f'v_add_f32_dpp v{v}, v{t}, v{t} row_mirror row_mask:0xf bank_mask:0xf')
        self('s_nop 0')
        self(f'v_readlane_b32 s52, v{v}, 16')
        self(f'v_readlane_b32 s53, v{v}, 32')
        self(f'v_readlane_b32 s54, v{v}, 48')
        self('s_nop 1')
        self(f'v_add_f32 v{v}, s52, v{v}')
        self(f'v_add_f32 v{v}, s53, v{v}')
        self(f'v_add_f32 v{v}, s54, v{v}')
        self('s_nop 0')
        self(f'v_readlane_b32 s{sdst}, v{v}, 0')
        self('s_nop 1')

a = Asm()
import os
STAMP = os.environ.get('STAMP') == '1'
def stamp(i):
    if STAMP:
        a(f's_memtime s[{60+2*i}:{61+2*i}]')
def stamp_out(n):
    if STAMP:
        a(f"""
        s_load_dwordx2 s[4:5], s[0:1], {DBG}
        s_waitcnt lgkmcnt(0)
        s_cmp_lg_u32 s2, 5
        s_cbranch_scc1 skipst_{a.uid}
        """)
        a.srd(8, 4, 256)
        for i in range(n):
            a(f"""
            v_mov_b32 v1, s{60+2*i}
            v_mov_b32 v2, {4*i}
            buffer_store_dword v1, v2, s[8:11], 0 offen
            """)
        a.label(f'skipst_{a.uid}')
        a.uid += 1


def gen_prep():
    k = 'prep_kernel'
    a.begin(k)
    a(f'''
    s_cmp_ge_u32 s2, 1460
    s_cbranch_scc1 prep_done
    s_load_dwordx2 s[4:5], s[0:1], {A_K}
    s_load_dwordx2 s[6:7], s[0:1], {A_V}
    s_load_dwordx2 s[8:9], s[0:1], {A_SK}
    s_load_dwordx2 s[10:11], s[0:1], {B_WIN}
    s_load_dwordx2 s[12:13], s[0:1], {B_WOUT}
    s_load_dwordx2 s[14:15], s[0:1], {WS}
    v_lshrrev_b32 v1, 3, v0
    v_and_b32 v2, 7, v0
    s_waitcnt lgkmcnt(0)
    s_cmp_ge_u32 s2, 640
    s_cbranch_scc1 prep_tr
    ''')
    a(f'''
    s_mov_b32 s16, 429496730
    s_mul_hi_u32 s17, s2, s16
    s_mul_i32 s18, s17, 10
    s_sub_u32 s18, s2, s18
    s_lshl_b32 s19, s17, 5
    s_lshl_b32 s20, s18, 6
    ''')
    a.srd(24, 4, 2621440)
    a.srd(28, 6, 2621440)
    a.srd(32, 8, 5120)
    a.srd(36, 14, 2621440, KVR)
    a(f'''
    v_add_u32 v3, s19, v1
    v_mul_u32_u24 v3, 1280, v3
    v_lshlrev_b32 v4, 4, v2
    v_add_u32 v3, v3, v4
    s_lshl_b32 s21, s20, 1
    v_add_u32 v3, s21, v3
    v_subrev_u32 v5, 1280, v3
    v_subrev_u32 v6, 2560, v3
    v_subrev_u32 v7, 3840, v3
    buffer_load_dwordx4 v[8:11], v3, s[24:27], 0 offen
    buffer_load_dwordx4 v[12:15], v5, s[24:27], 0 offen
    buffer_load_dwordx4 v[16:19], v6, s[24:27], 0 offen
    buffer_load_dwordx4 v[20:23], v7, s[24:27], 0 offen
    buffer_load_dwordx4 v[24:27], v3, s[28:31], 0 offen
    v_lshlrev_b32 v4, 6, v2
    s_lshl_b32 s21, s20, 3
    v_add_u32 v4, s21, v4
    buffer_load_dwordx4 v[28:31], v4, s[32:35], 0 offen
    buffer_load_dwordx4 v[32:35], v4, s[32:35], 0 offen offset:16
    buffer_load_dwordx4 v[36:39], v4, s[32:35], 0 offen offset:32
    buffer_load_dwordx4 v[40:43], v4, s[32:35], 0 offen offset:48
    ''')
    a('''
    v_mul_u32_u24 v44, 640, v2
    v_sub_u32 v45, 31, v1
    v_lshlrev_b32 v45, 1, v45
    v_add_u32 v44, v44, v45
    s_waitcnt vmcnt(0)
    ''')
    for e in range(8):
        w = e // 2
        def g(dst, base):
            if e % 2 == 0:
                a(f'v_lshlrev_b32 v{dst}, 16, v{base+w}')
            else:
                a(f'v_and_b32 v{dst}, 0xffff0000, v{base+w}')
        g(50, 8); g(51, 12); g(52, 16); g(53, 20); g(54, 24)
        a.unpack(55, 56, 28 + 2*e)
        a.unpack(57, 58, 29 + 2*e)
        a(f'''
        v_mul_f32 v60, v53, v58
        v_mul_f32 v61, v52, v57
        ''')
        a.rnd2(60, 61, 62)
        a(f'''
        v_add_f32 v60, v60, v61
        v_mul_f32 v61, v51, v56
        ''')
        a.rnd2(60, 61, 62)
        a(f'''
        v_add_f32 v60, v60, v61
        v_mul_f32 v61, v50, v55
        ''')
        a.rnd2(60, 61, 62)
        a(f'''
        v_add_f32 v60, v60, v61
        v_cvt_pk_bf16_f32 v62, v60, v60
        v_lshlrev_b32 v60, 16, v62
        v_mul_f32 v60, v60, v54
        v_cvt_pk_bf16_f32 v62, v60, v60
        ds_write_b16 v44, v62 offset:{80*e}
        ''')
    a(f'''
    s_waitcnt lgkmcnt(0)
    s_barrier
    v_lshrrev_b32 v45, 2, v0
    v_and_b32 v46, 3, v0
    v_mul_u32_u24 v47, 80, v45
    v_lshlrev_b32 v48, 4, v46
    v_add_u32 v47, v47, v48
    ds_read_b128 v[8:11], v47
    v_add_u32 v45, s20, v45
    v_lshlrev_b32 v45, 12, v45
    s_sub_u32 s21, 2016, s19
    s_lshl_b32 s21, s21, 1
    v_add_u32 v45, s21, v45
    v_add_u32 v45, v45, v48
    s_waitcnt lgkmcnt(0)
    buffer_store_dwordx4 v[8:11], v45, s[36:39], 0 offen
    s_branch prep_done
    ''')
    a.label('prep_tr')
    a('''
    s_sub_u32 s16, s2, 640
    s_cmp_ge_u32 s16, 540
    s_cbranch_scc1 prep_tr2
    ''')
    a(f'''
    s_mov_b32 s17, 159072863
    s_mul_hi_u32 s18, s16, s17
    s_mul_i32 s19, s18, 27
    s_sub_u32 s19, s16, s19
    s_mov_b32 s20, 640
    s_mov_b32 s21, 1728
    ''')
    a.srd(24, 10, 2211840)
    a.srd(28, 14, 2211840, WINT)
    a('s_branch prep_tr3')
    a.label('prep_tr2')
    a(f'''
    s_sub_u32 s16, s16, 540
    s_mov_b32 s17, 429496730
    s_mul_hi_u32 s18, s16, s17
    s_mul_i32 s19, s18, 10
    s_sub_u32 s19, s16, s19
    s_mov_b32 s20, 896
    s_mov_b32 s21, 640
    ''')
    a.srd(24, 12, 1105920)
    a.srd(28, 14, 1146880, WOUTT)
    a.label('prep_tr3')
    a('''
    s_lshl_b32 s22, s18, 5
    s_lshl_b32 s23, s19, 6
    v_add_u32 v3, s22, v1
    v_mul_lo_u32 v3, v3, s21
    v_lshlrev_b32 v4, 3, v2
    v_add_u32 v3, v3, v4
    v_add_u32 v3, s23, v3
    v_lshlrev_b32 v3, 1, v3
    buffer_load_dwordx4 v[8:11], v3, s[24:27], 0 offen
    v_mul_u32_u24 v44, 640, v2
    v_lshlrev_b32 v45, 1, v1
    v_add_u32 v44, v44, v45
    s_waitcnt vmcnt(0)
    ''')
    for e in range(8):
        if e % 2 == 0:
            a(f'ds_write_b16 v44, v{8+e//2} offset:{80*e}')
        else:
            a(f'ds_write_b16_d16_hi v44, v{8+e//2} offset:{80*e}')
    a('''
    s_waitcnt lgkmcnt(0)
    s_barrier
    v_lshrrev_b32 v45, 2, v0
    v_and_b32 v46, 3, v0
    v_mul_u32_u24 v47, 80, v45
    v_lshlrev_b32 v48, 4, v46
    v_add_u32 v47, v47, v48
    ds_read_b128 v[8:11], v47
    v_add_u32 v45, s23, v45
    v_mul_lo_u32 v45, v45, s20
    v_add_u32 v45, s22, v45
    v_lshlrev_b32 v45, 1, v45
    v_add_u32 v45, v45, v48
    s_waitcnt lgkmcnt(0)
    buffer_store_dwordx4 v[8:11], v45, s[28:31], 0 offen
    ''')
    a.label('prep_done')
    a('s_endpgm')
    a.kernels.append((k, 64, 48, 64))

HP = 4256
KVL = 8 * HP
def gen_conv():
    k = 'conv_kernel'
    a.begin(k)
    a(f'''
    s_cmp_ge_u32 s2, 640
    s_cbranch_scc1 conv_done
    s_load_dwordx2 s[4:5], s[0:1], {A_SSMK}
    s_load_dwordx2 s[6:7], s[0:1], {A_D}
    s_load_dwordx2 s[14:15], s[0:1], {WS}
    s_lshl_b32 s16, s2, 12
    s_waitcnt lgkmcnt(0)
    s_add_u32 s4, s4, s16
    s_addc_u32 s5, s5, 0
    s_add_u32 s8, s14, s16
    s_addc_u32 s9, s15, 0
    ''')
    a.srd(24, 4, 4096)
    a.srd(28, 8, 4096, KVR)
    a.srd(32, 8, 4096, YYT)
    a.srd(36, 6, 1280)
    def fill(ci_reg):
        a(f'''
        v_lshlrev_b32 v3, 4, v{ci_reg}
        v_subrev_u32 v4, 128, v3
        v_subrev_u32 v5, 112, v3
        buffer_load_dwordx4 v[8:11], v4, s[24:27], 0 offen
        buffer_load_dwordx4 v[12:15], v5, s[24:27], 0 offen
        s_waitcnt vmcnt(0)
        ''')
        for c in range(8):
            if c % 2 == 0:
                j = c // 2
                if j == 0:
                    a(f'ds_write_b128 v3, v[8:11] offset:{c*HP}')
                else:
                    for i in range(4):
                        a(f'v_mov_b32 v{16+i}, v{8+j+i}')
                    a(f'ds_write_b128 v3, v[16:19] offset:{c*HP}')
            else:
                j = (c - 1) // 2
                base = 20 if (c % 4 == 1) else 24
                for i in range(4):
                    a(f'v_alignbit_b32 v{base+i}, v{8+j+i+1}, v{8+j+i}, 16')
                a(f'ds_write_b128 v3, v[{base}:{base+3}] offset:{c*HP}')
    fill(0)
    a('''
    v_add_u32 v2, 256, v0
    v_cmp_gt_u32 vcc, 265, v2
    s_and_saveexec_b64 s[40:41], vcc
    s_cbranch_execz conv_f2
    ''')
    fill(2)
    a.label('conv_f2')
    a('s_mov_b64 exec, s[40:41]')
    a(f'''
    v_lshlrev_b32 v3, 4, v0
    buffer_load_dwordx4 v[8:11], v3, s[28:31], 0 offen
    s_lshl_b32 s17, s2, 1
    v_mov_b32 v4, s17
    buffer_load_ushort v30, v4, s[36:39], 0 offen
    v_mov_b32 v12, 0
    v_mov_b32 v13, 0
    v_mov_b32 v14, 0
    v_mov_b32 v15, 0
    v_lshrrev_b32 v5, 3, v0
    v_lshlrev_b32 v5, 4, v5
    v_add_u32 v3, v3, v5
    ds_write_b128 v3, v[12:15] offset:{KVL+4608}
    s_waitcnt vmcnt(0)
    ds_write_b128 v3, v[8:11] offset:{KVL}
    v_lshlrev_b32 v30, 16, v30
    ''')
    a('''
    v_lshrrev_b32 v1, 6, v0
    v_and_b32 v2, 63, v0
    v_and_b32 v3, 31, v2
    v_lshrrev_b32 v4, 5, v2
    ''')
    for r in range(2):
        a(f'''
        v_lshlrev_b32 v5, 1, v3
        v_add_u32 v5, {r+1}, v5
        v_and_b32 v6, 7, v5
        v_mul_u32_u24 v6, {HP}, v6
        v_and_b32 v5, 0x78, v5
        v_lshlrev_b32 v7, 9, v1
        v_add_u32 v5, v5, v7
        v_lshlrev_b32 v7, 3, v4
        v_add_u32 v5, v5, v7
        v_lshlrev_b32 v5, 1, v5
        v_add_u32 v{32+r}, v5, v6
        ''')
    a(f'''
    v_lshlrev_b32 v5, 6, v3
    v_sub_u32 v5, 1984, v5
    v_lshlrev_b32 v7, 9, v1
    v_add_u32 v5, v5, v7
    v_lshlrev_b32 v7, 3, v4
    v_add_u32 v5, v5, v7
    v_lshrrev_b32 v6, 6, v5
    v_lshlrev_b32 v6, 4, v6
    v_lshlrev_b32 v5, 1, v5
    v_add_u32 v5, v5, v6
    v_add_u32 v34, {KVL}, v5
    ''')
    for i in range(32):
        a(f'v_mov_b32 v{64+i}, 0')
    a('''
    s_waitcnt lgkmcnt(0)
    s_barrier
    ''')
    def rd(step, s):
        b = 40 + 12*s
        a(f'''
        ds_read_b128 v[{b}:{b+3}], v32 offset:{32*step}
        ds_read_b128 v[{b+4}:{b+7}], v33 offset:{32*step}
        ds_read_b128 v[{b+8}:{b+11}], v34 offset:{32*step + 16*(step>>2)}
        ''')
    rd(0, 0)
    for step in range(32):
        s = step & 1
        if step + 1 < 32:
            rd(step + 1, s ^ 1)
            a('s_waitcnt lgkmcnt(3)')
        else:
            a('s_waitcnt lgkmcnt(0)')
        b = 40 + 12*s
        a(f'''
        v_mfma_f32_32x32x16_bf16 v[64:79], v[{b}:{b+3}], v[{b+8}:{b+11}], v[64:79]
        v_mfma_f32_32x32x16_bf16 v[80:95], v[{b+4}:{b+7}], v[{b+8}:{b+11}], v[80:95]
        ''')
    a('''
    s_barrier
    s_nop 7
    s_nop 7
    v_lshlrev_b32 v5, 13, v1
    v_lshlrev_b32 v6, 2, v2
    v_add_u32 v5, v5, v6
    ''')
    for r in range(2):
        for j in range(16):
            a(f'ds_write_b32 v5, v{64+16*r+j} offset:{r*4096+j*256}')
    a(f'''
    v_and_b32 v5, 7, v0
    v_lshrrev_b32 v5, 1, v5
    v_lshlrev_b32 v5, 10, v5
    v_lshrrev_b32 v6, 3, v0
    v_and_b32 v7, 1, v0
    v_lshlrev_b32 v7, 5, v7
    v_add_u32 v6, v6, v7
    v_lshlrev_b32 v6, 2, v6
    v_add_u32 v5, v5, v6
    v_sub_u32 v6, 255, v0
    v_lshrrev_b32 v7, 3, v6
    v_add_u32 v6, v6, v7
    v_lshlrev_b32 v6, 4, v6
    v_add_u32 v6, {KVL}, v6
    s_waitcnt lgkmcnt(0)
    s_barrier
    ds_read_b128 v[8:11], v6
    ''')
    for e in range(8):
        for w in range(4):
            a(f'ds_read_b32 v{40+4*e+w}, v5 offset:{w*8192 + (e&1)*4096 + (e>>1)*256}')
    a('s_waitcnt lgkmcnt(0)')
    for e in range(8):
        b = 40 + 4*e
        a(f'''
        v_add_f32 v{b}, v{b}, v{b+1}
        v_add_f32 v{b+2}, v{b+2}, v{b+3}
        v_add_f32 v{b}, v{b}, v{b+2}
        ''')
    for e in range(0, 8, 2):
        b0, b1 = 40 + 4*e, 40 + 4*(e+1)
        a.rnd2(b0, b1, 12)
        p0, p1 = 7 - e, 7 - (e+1)
        a(f'''
        v_and_b32 v13, 0xffff0000, v{8 + p0//2}
        v_lshlrev_b32 v14, 16, v{8 + p1//2}
        v_mul_f32 v13, v13, v30
        v_mul_f32 v14, v14, v30
        ''')
        a.rnd2(13, 14, 12)
        a(f'''
        v_add_f32 v13, v13, v{b0}
        v_add_f32 v14, v14, v{b1}
        v_cvt_pk_bf16_f32 v{16+e//2}, v13, v14
        ''')
    a('''
    v_lshlrev_b32 v3, 4, v0
    buffer_store_dwordx4 v[16:19], v3, s[32:35], 0 offen
    ''')
    a.label('conv_done')
    a('s_endpgm')
    a.kernels.append((k, 96, 48, 96))

def ln_rows(vals, n_elems, outs, tmp, neps_s):
    t0, t1, t2, t3 = tmp, tmp+1, tmp+2, tmp+3
    a(f'v_mov_b32 v{t0}, v{vals[0]}')
    for v in vals[1:]:
        a(f'v_add_f32 v{t0}, v{t0}, v{v}')
    a.wave_sum(t0, t1, 50)
    a(f'''
    v_mov_b32 v{t0}, {1.0/n_elems!r}
    v_mul_f32 v{t2}, s50, v{t0}
    ''')
    a(f'v_sub_f32 v{t1}, v{vals[0]}, v{t2}')
    a(f'v_mul_f32 v{t0}, v{t1}, v{t1}')
    for v in vals[1:]:
        a(f'v_sub_f32 v{t1}, v{v}, v{t2}')
        a(f'v_fmac_f32 v{t0}, v{t1}, v{t1}')
    a.wave_sum(t0, t1, 51)
    a(f'''
    v_mov_b32 v{t0}, {1.0/n_elems!r}
    v_mul_f32 v{t3}, s51, v{t0}
    ''')
    a.rnd2(t2, t3, t0)
    a(f'''
    v_add_f32 v{t3}, 0x3727c5ac, v{t3}
    v_cvt_pk_bf16_f32 v{t0}, v{t3}, v{t3}
    v_lshlrev_b32 v{t3}, 16, v{t0}
    v_sqrt_f32 v{t3}, v{t3}
    s_nop 0
    v_cvt_pk_bf16_f32 v{t0}, v{t3}, v{t3}
    v_lshlrev_b32 v{t3}, 16, v{t0}
    v_rcp_f32 v{t1}, v{t3}
    s_nop 0
    ''')
    a(f'''
    v_fma_f32 v{t0}, -v{t3}, v{t1}, 2.0
    v_mul_f32 v{t1}, v{t1}, v{t0}
    ''')
    for i in range(0, len(vals), 2):
        o0, o1 = outs[i], outs[i+1]
        a(f'''
        v_sub_f32 v{o0}, v{vals[i]}, v{t2}
        v_sub_f32 v{o1}, v{vals[i+1]}, v{t2}
        ''')
        a.rnd2(o0, o1, t0)
        a(f'''
        v_mul_f32 v{tmp+4}, v{o0}, v{t1}
        v_mul_f32 v{tmp+5}, v{o1}, v{t1}
        v_fma_f32 v{t0}, -v{tmp+4}, v{t3}, v{o0}
        v_fma_f32 v{o0}, v{t0}, v{t1}, v{tmp+4}
        v_fma_f32 v{t0}, -v{tmp+5}, v{t3}, v{o1}
        v_fma_f32 v{o1}, v{t0}, v{t1}, v{tmp+5}
        ''')
        a.rnd2(o0, o1, t0)

def gen_row(k, xin_arg, xin_off, xout_off):
    a.begin(k)
    done = k + '_done'
    a(f'''
    s_cmp_ge_u32 s2, 256
    s_cbranch_scc1 {done}
    s_load_dwordx2 s[4:5], s[0:1], {xin_arg}
    s_load_dwordx2 s[14:15], s[0:1], {WS}
    s_waitcnt lgkmcnt(0)
    ''')
    a.srd(24, 4, 2621440, xin_off)
    a.srd(28, 14, 2621440, YYT)
    a.srd(32, 14, 2621440, xout_off)
    a.srd(36, 14, 2621440, HH)
    a('''
    v_lshrrev_b32 v1, 6, v0
    v_and_b32 v2, 63, v0
    ''')
    for rr in range(2):
        a(f'''
        s_lshl_b32 s17, s2, 3
        s_add_u32 s17, s17, {rr}
        v_lshlrev_b32 v3, 1, v1
        v_add_u32 v3, s17, v3
        v_mul_u32_u24 v3, 1280, v3
        v_lshlrev_b32 v4, 2, v2
        v_add_u32 v{74+rr}, v3, v4
        ''')
        for j in range(5):
            a(f'buffer_load_dword v{64+5*rr+j}, v{74+rr}, s[24:27], 0 offen offset:{256*j}')
    a('''
    s_lshl_b32 s16, s2, 4
    v_lshlrev_b32 v3, 12, v0
    v_add_u32 v3, s16, v3
    v_add_u32 v4, 0x100000, v3
    v_add_u32 v5, 0x200000, v3
    buffer_load_dwordx4 v[8:11], v3, s[28:31], 0 offen
    buffer_load_dwordx4 v[12:15], v4, s[28:31], 0 offen
    buffer_load_dwordx4 v[16:19], v5, s[28:31], 0 offen
    v_lshlrev_b32 v6, 4, v0
    s_waitcnt vmcnt(0)
    ds_write_b128 v6, v[8:11]
    ds_write_b128 v6, v[12:15] offset:4096
    ds_write_b128 v6, v[16:19] offset:8192
    s_waitcnt lgkmcnt(0)
    s_barrier
    ''')
    for rr in range(2):
        a(f'v_mov_b32 v3, v{74+rr}')
        for j in range(5):
            a(f'v_mov_b32 v{8+j}, v{64+5*rr+j}')
        a(f'''
        v_lshlrev_b32 v4, 5, v2
        v_lshlrev_b32 v5, 2, v1
        v_add_u32 v4, v4, v5
        ''')
        for j in range(5):
            a(f'ds_read_u16 v{40+2*j}, v4 offset:{2048*j + 2*rr}')
            a(f'ds_read_u16 v{41+2*j}, v4 offset:{2048*j + 16 + 2*rr}')
        a('s_waitcnt lgkmcnt(0)')
        xs = list(range(16, 26))
        for j in range(5):
            a.unpack(16+2*j, 17+2*j, 8+j)
        for j in range(10):
            a(f'v_lshlrev_b32 v{40+j}, 16, v{40+j}')
        qs = list(range(28, 38))
        ln_rows(xs, 640, qs, 56, None)
        for i in range(0, 10, 2):
            a(f'''
            v_mul_f32 v{qs[i]}, v{qs[i]}, v{40+i}
            v_mul_f32 v{qs[i+1]}, v{qs[i+1]}, v{41+i}
            ''')
            a.rnd2(qs[i], qs[i+1], 56)
            a(f'''
            v_add_f32 v{xs[i]}, v{xs[i]}, v{qs[i]}
            v_add_f32 v{xs[i+1]}, v{xs[i+1]}, v{qs[i+1]}
            ''')
            a.rnd2(xs[i], xs[i+1], 56)
            a(f'buffer_store_dword v56, v3, s[32:35], 0 offen offset:{256*(i//2)}')
            a('s_nop 1')
        ln_rows(xs, 640, qs, 56, None)
        for i in range(0, 10, 2):
            a(f'v_cvt_pk_bf16_f32 v{8+i//2}, v{qs[i]}, v{qs[i+1]}')
            a(f'buffer_store_dword v{8+i//2}, v3, s[36:39], 0 offen offset:{256*(i//2)}')
        a('s_nop 2')
    a.label(done)
    a('s_endpgm')
    a.kernels.append((k, 80, 56, 80))

def gen_lnz():
    k = 'lnz_kernel'
    a.begin(k)
    a(f'''
    s_cmp_ge_u32 s2, 256
    s_cbranch_scc1 lnz_done
    s_load_dwordx2 s[14:15], s[0:1], {WS}
    s_waitcnt lgkmcnt(0)
    ''')
    a.srd(24, 14, 7077888, ZZ)
    a.srd(28, 14, 3538944, Z2T)
    a('''
    v_lshrrev_b32 v1, 6, v0
    v_and_b32 v2, 63, v0
    ''')
    for rr in range(2):
        a(f'''
        s_lshl_b32 s17, s2, 3
        s_add_u32 s17, s17, {rr}
        v_lshlrev_b32 v3, 1, v1
        v_add_u32 v3, s17, v3
        v_mul_u32_u24 v3, 3456, v3
        v_lshlrev_b32 v4, 2, v2
        v_add_u32 v3, v3, v4
        v_mov_b32 v{64+7*rr+6}, 0
        ''')
        for j in range(6):
            a(f'buffer_load_dword v{64+7*rr+j}, v3, s[24:27], 0 offen offset:{1728 + 256*j}')
        a(f'''
        v_cmp_gt_u32 vcc, 48, v2
        s_and_saveexec_b64 s[40:41], vcc
        buffer_load_dword v{64+7*rr+6}, v3, s[24:27], 0 offen offset:{1728 + 256*6}
        s_mov_b64 exec, s[40:41]
        ''')
    a('s_waitcnt vmcnt(0)')
    for rr in range(2):
        for j in range(7):
            a(f'v_mov_b32 v{8+j}, v{64+7*rr+j}')
        xs = list(range(16, 30))
        for j in range(7):
            a.unpack(16+2*j, 17+2*j, 8+j)
        t0, t1, t2, t3 = 56, 57, 58, 59
        a(f'v_mov_b32 v{t0}, v16')
        for v in xs[1:]:
            a(f'v_add_f32 v{t0}, v{t0}, v{v}')
        a.wave_sum(t0, t1, 50)
        a(f'''
        v_mov_b32 v{t0}, {1.0/864!r}
        v_mul_f32 v{t2}, s50, v{t0}
        v_mov_b32 v{t0}, 0
        ''')
        for v in xs[:12]:
            a(f'v_sub_f32 v{t1}, v{v}, v{t2}')
            a(f'v_fmac_f32 v{t0}, v{t1}, v{t1}')
        a(f'''
        v_cmp_gt_u32 vcc, 48, v2
        v_sub_f32 v{t1}, v28, v{t2}
        v_mul_f32 v{t1}, v{t1}, v{t1}
        v_sub_f32 v{t3}, v29, v{t2}
        v_fmac_f32 v{t1}, v{t3}, v{t3}
        v_cndmask_b32 v{t1}, 0, v{t1}, vcc
        v_add_f32 v{t0}, v{t0}, v{t1}
        ''')
        a.wave_sum(t0, t1, 51)
        a(f'''
        v_mov_b32 v{t0}, {1.0/864!r}
        v_mul_f32 v{t3}, s51, v{t0}
        ''')
        a.rnd2(t2, t3, t0)
        a(f'''
        v_add_f32 v{t3}, 0x3727c5ac, v{t3}
        v_cvt_pk_bf16_f32 v{t0}, v{t3}, v{t3}
        v_lshlrev_b32 v{t3}, 16, v{t0}
        v_sqrt_f32 v{t3}, v{t3}
        s_nop 0
        v_cvt_pk_bf16_f32 v{t0}, v{t3}, v{t3}
        v_lshlrev_b32 v{t3}, 16, v{t0}
        v_rcp_f32 v{t1}, v{t3}
        s_nop 0
        v_fma_f32 v{t0}, -v{t3}, v{t1}, 2.0
        v_mul_f32 v{t1}, v{t1}, v{t0}
        ''')
        a(f'''
        v_lshlrev_b32 v4, 5, v2
        v_lshlrev_b32 v5, 2, v1
        v_add_u32 v4, v4, v5
        ''')
        for j in range(7):
            o0, o1 = 40, 41
            a(f'''
            v_sub_f32 v{o0}, v{xs[2*j]}, v{t2}
            v_sub_f32 v{o1}, v{xs[2*j+1]}, v{t2}
            ''')
            a.rnd2(o0, o1, t0)
            a(f'''
            v_mul_f32 v60, v{o0}, v{t1}
            v_mul_f32 v61, v{o1}, v{t1}
            v_fma_f32 v{t0}, -v60, v{t3}, v{o0}
            v_fma_f32 v{o0}, v{t0}, v{t1}, v60
            v_fma_f32 v{t0}, -v61, v{t3}, v{o1}
            v_fma_f32 v{o1}, v{t0}, v{t1}, v61
            v_cvt_pk_bf16_f32 v{42+j}, v{o0}, v{o1}
            ds_write_b16 v4, v{42+j} offset:{2048*j + 2*rr}
            ds_write_b16_d16_hi v4, v{42+j} offset:{2048*j + 16 + 2*rr}
            ''')
    a('''
    s_waitcnt lgkmcnt(0)
    s_barrier
    v_lshlrev_b32 v4, 4, v0
    ds_read_b128 v[8:11], v4
    ds_read_b128 v[12:15], v4 offset:4096
    ds_read_b128 v[16:19], v4 offset:8192
    ds_read_b128 v[20:23], v4 offset:12288
    s_lshl_b32 s16, s2, 4
    v_lshlrev_b32 v3, 12, v0
    v_add_u32 v3, s16, v3
    v_add_u32 v5, 0x100000, v3
    v_add_u32 v6, 0x200000, v3
    v_add_u32 v7, 0x300000, v3
    s_waitcnt lgkmcnt(0)
    buffer_store_dwordx4 v[8:11], v3, s[28:31], 0 offen
    buffer_store_dwordx4 v[12:15], v5, s[28:31], 0 offen
    buffer_store_dwordx4 v[16:19], v6, s[28:31], 0 offen
    buffer_store_dwordx4 v[20:23], v7, s[28:31], 0 offen
    ''')
    a.label('lnz_done')
    a('s_endpgm')
    a.kernels.append((k, 80, 56, 80))

def gen_gemm(k, WM, WN, BK, K, M, N, A_src, B_src, epi, D=4):
    BM, BN = 2*WM, 2*WN
    TM, TN = WM//32, WN//32
    nmt, nnt = M//BM, -(-N//BN)
    rowb = 128
    nsteps = K//BK
    Abytes, Bbytes = BM*rowb, BN*rowb
    stage = Abytes + Bbytes
    nla, nlb = Abytes//4096, Bbytes//4096
    nl = nla + nlb
    done = k + '_done'
    a.begin(k)
    a(f"""
    s_cmp_ge_u32 s2, {nmt*nnt}
    s_cbranch_scc1 {done}
    """)
    stamp(0)
    a(f"""
    s_load_dwordx2 s[4:5], s[0:1], {A_src[0]}
    s_load_dwordx2 s[6:7], s[0:1], {B_src[0]}
    s_load_dwordx2 s[14:15], s[0:1], {WS}
    s_load_dwordx2 s[10:11], s[0:1], {B_BSP}
    s_load_dwordx2 s[12:13], s[0:1], {OUT}
    s_and_b32 s16, s2, {nmt-1}
    s_lshr_b32 s17, s2, {nmt.bit_length()-1}
    s_mul_i32 s18, s16, {BM}
    s_mul_i32 s19, s17, {BN}
    v_lshrrev_b32 v1, 6, v0
    v_lshlrev_b32 v1, 10, v1
    s_nop 0
    v_readfirstlane_b32 s22, v1
    s_waitcnt lgkmcnt(0)
    """)
    a.srd(24, 4, M*K*2, A_src[1])
    a.srd(28, 6, N*K*2, B_src[1])
    a(f"""
    v_lshrrev_b32 v1, 3, v0
    v_and_b32 v2, 7, v0
    v_lshrrev_b32 v3, 1, v1
    v_and_b32 v3, 7, v3
    v_xor_b32 v2, v2, v3
    v_lshlrev_b32 v2, 4, v2
    v_add_u32 v3, s18, v1
    v_mul_u32_u24 v3, {K*2}, v3
    v_add_u32 v4, v3, v2
    v_add_u32 v3, s19, v1
    v_mul_u32_u24 v3, {K*2}, v3
    v_add_u32 v8, v3, v2
    """)
    for i in range(1, nla):
        a(f'v_add_u32 v{4+i}, {32*i*K*2}, v4')
    for i in range(1, nlb):
        a(f'v_add_u32 v{8+i}, {32*i*K*2}, v8')
    a("""
    v_lshrrev_b32 v1, 6, v0
    v_and_b32 v2, 63, v0
    v_and_b32 v3, 31, v2
    v_lshrrev_b32 v20, 5, v2
    v_and_b32 v21, 1, v1
    v_lshrrev_b32 v22, 1, v1
    """)
    nkk = 4
    AB, AR = 12, 24
    for (isB, wsel, W, R) in ((0, 21, WM, AB), (1, 22, WN, AB+4)):
        a(f"""
        v_mul_u32_u24 v23, {W}, v{wsel}
        v_add_u32 v23, v23, v3
        v_lshrrev_b32 v{R}, 1, v23
        v_and_b32 v{R}, 7, v{R}
        v_xor_b32 v{R}, v{R}, v20
        v_mul_u32_u24 v23, {rowb}, v23
        """)
        if isB:
            a(f'v_add_u32 v23, {Abytes}, v23')
        for kk in range(3, -1, -1):
            a(f"""
            v_xor_b32 v{R+kk}, {2*kk}, v{R}
            v_lshl_add_u32 v{R+kk}, v{R+kk}, 4, v23
            """)
    FA = 32
    FB = FA + 4*TM*2
    ACC = 64
    nacc = TM*TN*16
    EPR = ACC + nacc
    global G_EPR, G_BM, G_BN
    G_EPR = EPR
    G_BM, G_BN = BM, BN
    assert FB + 4*TN*2 <= ACC
    for i in range(nacc):
        a(f'v_mov_b32 v{ACC+i}, 0')
    a(f"""
    v_mul_u32_u24 v23, {WM}, v21
    v_add_u32 v23, v23, v3
    v_add_u32 v{EPR}, s18, v23
    v_mul_u32_u24 v23, {WN}, v22
    v_lshlrev_b32 v{EPR+1}, 2, v20
    v_add_u32 v23, v23, v{EPR+1}
    v_add_u32 v{EPR+1}, s19, v23
    """)
    epi(TM, TN, ACC, True)
    def gload():
        for i in range(nl):
            a(f's_add_u32 m0, s55, {i*4096}')
            a('s_nop 0')
            if i < nla:
                a(f'buffer_load_dwordx4 v{4+i}, s[24:27], s20 offen lds')
            else:
                a(f'buffer_load_dwordx4 v{8+i-nla}, s[28:31], s20 offen lds')
        a(f"""
        s_add_u32 s20, s20, {rowb}
        s_add_u32 s55, s55, {stage}
        s_cmp_lt_u32 s55, {D*stage}
        s_cselect_b32 s55, s55, s22
        """)
    lp, lm, lw, lnl = [a.newlabel(x) for x in ('gp', 'gm', 'gw', 'gn')]
    a(f"""
    s_mov_b32 s20, 0
    s_mov_b32 s55, s22
    s_mov_b32 s48, 0
    s_mov_b32 s49, 0
    """)
    stamp(1)
    a.label(lp)
    gload()
    a(f"""
    s_add_u32 s48, s48, 1
    s_cmp_lt_u32 s48, {D-1}
    s_cbranch_scc1 {lp}
    s_mov_b32 s48, 0
    """)
    stamp(2)
    a.label(lm)
    a(f"""
    s_cmp_lt_u32 s48, {nsteps-(D-2)}
    s_cbranch_scc1 {lw}
    s_waitcnt vmcnt(0)
    """)
    a.label(lw)
    a(f"""
    s_waitcnt vmcnt({nl*(D-2)})
    s_barrier
    """)
    for i in range(8):
        a(f'v_add_u32 v{AR+i}, s49, v{AB+i}')
    def rd(kk, s):
        for i in range(TM):
            f = FA + 4*(s*TM + i)
            a(f'ds_read_b128 v[{f}:{f+3}], v{AR+kk} offset:{i*32*rowb}')
        for i in range(TN):
            f = FB + 4*(s*TN + i)
            a(f'ds_read_b128 v[{f}:{f+3}], v{AR+4+kk} offset:{i*32*rowb}')
    rd(0, 0)
    a(f"""
    s_cmp_lt_u32 s48, {nsteps-(D-1)}
    s_cbranch_scc0 {lnl}
    """)
    lend = a.newlabel('gx')
    for withload in (True, False):
        if not withload:
            a.label(lnl)
        nm = 0
        li = 0
        tot = nkk*TM*TN
        for kk in range(nkk):
            s_ = kk & 1
            if kk + 1 < nkk:
                rd(kk+1, s_ ^ 1)
                a(f's_waitcnt lgkmcnt({TM+TN})')
            else:
                a('s_waitcnt lgkmcnt(0)')
            for i in range(TM):
                for j in range(TN):
                    fa = FA + 4*(s_*TM + i)
                    fb = FB + 4*(s_*TN + j)
                    c = ACC + 16*(i*TN + j)
                    a(f'v_mfma_f32_32x32x16_bf16 v[{c}:{c+15}], v[{fb}:{fb+3}], v[{fa}:{fa+3}], v[{c}:{c+15}]')
                    nm += 1
                    if withload:
                        while li < nl and li * tot < nm * nl:
                            a(f's_add_u32 m0, s55, {li*4096}')
                            a('s_nop 0')
                            if li < nla:
                                a(f'buffer_load_dwordx4 v{4+li}, s[24:27], s20 offen lds')
                            else:
                                a(f'buffer_load_dwordx4 v{8+li-nla}, s[28:31], s20 offen lds')
                            li += 1
        if withload:
            a(f"""
            s_add_u32 s20, s20, {rowb}
            s_add_u32 s55, s55, {stage}
            s_cmp_lt_u32 s55, {D*stage}
            s_cselect_b32 s55, s55, s22
            s_branch {lend}
            """)
    a.label(lend)
    a(f"""
    s_add_u32 s49, s49, {stage}
    s_cmp_lt_u32 s49, {D*stage}
    s_cselect_b32 s49, s49, 0
    s_add_u32 s48, s48, 1
    s_cmp_lt_u32 s48, {nsteps}
    s_cbranch_scc1 {lm}
    s_nop 7
    s_nop 7
    """)
    stamp(3)
    a('s_barrier')
    le = a.newlabel('ge')
    lg = TN.bit_length() - 1
    epi(TM, TN, ACC, 'setup')
    a('s_mov_b32 s48, 0')
    a.label(le)
    a(f"""
    s_lshl_b32 s56, s48, 2
    s_lshr_b32 s49, s48, {2+lg}
    s_lshl_b32 s49, s49, 5
    s_lshr_b32 s55, s48, 2
    s_and_b32 s55, s55, {TN-1}
    s_lshl_b32 s55, s55, 5
    s_and_b32 s20, s48, 3
    s_lshl_b32 s20, s20, 3
    s_add_u32 s55, s55, s20
    s_set_gpr_idx_on s56, gpr_idx(SRC0)
    v_mov_b32 v40, v{ACC}
    v_mov_b32 v41, v{ACC+1}
    v_mov_b32 v42, v{ACC+2}
    v_mov_b32 v43, v{ACC+3}
    s_set_gpr_idx_off
    v_add_u32 v4, s49, v{EPR}
    v_add_u32 v5, s55, v{EPR+1}
    """)
    epi(TM, TN, ACC, 'body')
    a(f"""
    s_add_u32 s48, s48, 1
    s_cmp_lt_u32 s48, {nacc//4}
    s_cbranch_scc1 {le}
    s_waitcnt lgkmcnt(0)
    s_barrier
    """)
    epi(TM, TN, ACC, 'out')
    a('s_waitcnt vmcnt(0)')
    stamp(4)
    stamp_out(5)
    a.label(done)
    a('s_endpgm')
    lds = D*stage
    a.kernels.append((k, EPR + 4 + 24, 80, EPR + 4 + 24))
    return nmt*nnt, lds

def gelu_regs(x, t0, t1):
    a(f'''
    v_mul_f32 v{t0}, v{x}, v{x}
    v_mul_f32 v{t0}, v{t0}, v{x}
    v_fma_f32 v{t0}, v{t0}, s46, v{x}
    v_mul_f32 v{t0}, s47, v{t0}
    v_exp_f32 v{t0}, v{t0}
    s_nop 0
    v_add_f32 v{t0}, 1.0, v{t0}
    v_rcp_f32 v{t0}, v{t0}
    s_nop 0
    v_fma_f32 v{t0}, v{t0}, -2.0, 2.0
    v_mul_f32 v{t1}, 0.5, v{x}
    v_mul_f32 v{x}, v{t1}, v{t0}
    ''')

def tile_addr():
    pitch = G_BN*2 + 16
    a(f"""
    v_subrev_u32 v6, s18, v4
    v_mul_u32_u24 v6, {pitch}, v6
    v_subrev_u32 v7, s19, v5
    v_lshl_add_u32 v7, v7, 1, v6
    """)

def out_chunks(t=4):
    cpr = G_BN // 8
    n = G_BM*G_BN*2//16//256
    pitch = G_BN*2 + 16
    sh = cpr.bit_length()-1
    for i in range(n):
        a(f"""
        v_add_u32 v{t+2}, {256*i}, v0
        v_lshrrev_b32 v{t}, {sh}, v{t+2}
        v_and_b32 v{t+1}, {cpr-1}, v{t+2}
        v_lshlrev_b32 v{t+1}, 3, v{t+1}
        v_mul_u32_u24 v{t+3}, {pitch}, v{t}
        v_lshl_add_u32 v{t+3}, v{t+1}, 1, v{t+3}
        v_add_u32 v{t}, s18, v{t}
        v_add_u32 v{t+1}, s19, v{t+1}
        """)
        yield i

def epi_gemm1(TM, TN, ACC, pre):
    if pre is True:
        return
    if pre == 'setup':
        a.srd(32, 14, 7077888, ZZ)
        a("""
        v_mov_b32 v48, 0x3dd2d3e8
        v_mov_b32 v49, 0x3dd2d3e8
        v_mov_b32 v50, 0x40135761
        v_mov_b32 v51, 0x40135761
        v_mov_b32 v52, 1.0
        v_mov_b32 v53, 1.0
        """)
        return
    if pre == 'out':
        for i in out_chunks():
            r = 32 + 4*(i % 8)
            a(f"""
            ds_read_b128 v[{r}:{r+3}], v7
            v_mul_u32_u24 v6, 3456, v4
            v_cmp_gt_u32 vcc, 1728, v5
            v_lshl_add_u32 v6, v5, 1, v6
            s_nop 0
            v_cndmask_b32 v6, -1, v6, vcc
            s_waitcnt lgkmcnt(0)
            buffer_store_dwordx4 v[{r}:{r+3}], v6, s[32:35], 0 offen
            """)
        return
    a.rnd2(40, 41, 8)
    a.rnd2(42, 43, 9)
    a("""
    v_pk_mul_f32 v[44:45], v[40:41], v[40:41]
    v_pk_mul_f32 v[46:47], v[42:43], v[42:43]
    v_pk_fma_f32 v[44:45], v[44:45], v[48:49], v[50:51]
    v_pk_fma_f32 v[46:47], v[46:47], v[48:49], v[50:51]
    v_pk_mul_f32 v[44:45], v[44:45], v[40:41]
    v_pk_mul_f32 v[46:47], v[46:47], v[42:43]
    v_exp_f32 v44, v44
    v_exp_f32 v45, v45
    v_exp_f32 v46, v46
    v_exp_f32 v47, v47
    v_pk_add_f32 v[44:45], v[44:45], v[52:53]
    v_pk_add_f32 v[46:47], v[46:47], v[52:53]
    v_rcp_f32 v44, v44
    v_rcp_f32 v45, v45
    v_rcp_f32 v46, v46
    v_rcp_f32 v47, v47
    """)
    tile_addr()
    a("""
    v_pk_fma_f32 v[40:41], v[40:41], v[44:45], v[40:41] neg_lo:[1,0,0] neg_hi:[1,0,0]
    v_pk_fma_f32 v[42:43], v[42:43], v[46:47], v[42:43] neg_lo:[1,0,0] neg_hi:[1,0,0]
    v_cvt_pk_bf16_f32 v10, v40, v41
    v_cvt_pk_bf16_f32 v11, v42, v43
    ds_write_b64 v7, v[10:11]
    """)

def epi_gemm2(TM, TN, ACC, pre):
    E = G_EPR
    R, C = E, E+1
    Z = E + 2 + (E+2) % 4
    Z = ((E + 2 + 3)//4)*4
    BS = Z + 16
    if pre is True:
        a.srd(32, 14, 7077888, ZZ)
        a.srd(44, 10, 4096)
        for i in range(TM):
            a(f"""
            v_add_u32 v23, {32*i}, v{R}
            v_lshlrev_b32 v{BS+4}, 1, v23
            buffer_load_ushort v{BS+i}, v{BS+4}, s[44:47], 0 offen
            """)
        for i in out_chunks(40):
            a(f"""
            v_mul_u32_u24 v42, 3456, v40
            v_cmp_gt_u32 vcc, 864, v41
            v_lshl_add_u32 v42, v41, 1, v42
            s_nop 0
            v_cndmask_b32 v42, -1, v42, vcc
            buffer_load_dwordx4 v[{Z+4*i}:{Z+4*i+3}], v42, s[32:35], 0 offen
            """)
        return
    if pre == 'setup':
        a.srd(36, 14, 3670016, UU)
        for i in range(TM):
            a(f'v_lshlrev_b32 v{BS+i}, 16, v{BS+i}')
        return
    if pre == 'out':
        for i in out_chunks():
            a(f"""
            ds_read_b128 v[32:35], v7
            v_mul_u32_u24 v6, 1792, v4
            v_lshl_add_u32 v6, v5, 1, v6
            s_waitcnt lgkmcnt(0)
            """)
            for w in range(4):
                a.unpack(36, 37, 32+w)
                a.unpack(38, 39, Z+4*i+w)
                a(f"""
                v_mul_f32 v36, v36, v38
                v_mul_f32 v37, v37, v39
                v_cvt_pk_bf16_f32 v{Z+4*i+w}, v36, v37
                """)
            a(f'buffer_store_dwordx4 v[{Z+4*i}:{Z+4*i+3}], v6, s[36:39], 0 offen')
        return
    lg = TN.bit_length() - 1
    a(f"""
    s_lshr_b32 s56, s48, {2+lg}
    s_set_gpr_idx_on s56, gpr_idx(SRC0)
    v_mov_b32 v12, v{BS}
    s_set_gpr_idx_off
    """)
    tile_addr()
    a.rnd2(40, 41, 8)
    a.rnd2(42, 43, 9)
    for e in range(4):
        a(f'v_add_f32 v{40+e}, v{40+e}, v12')
    a("""
    v_cvt_pk_bf16_f32 v10, v40, v41
    v_cvt_pk_bf16_f32 v11, v42, v43
    ds_write_b64 v7, v[10:11]
    """)

def make_epi_gemm3(xin_off, out_ws_off):
    def epi(TM, TN, ACC, pre):
        E = G_EPR
        Z = ((E + 2 + 3)//4)*4
        if pre is True:
            a.srd(32, 14, 2621440, xin_off)
            for i in out_chunks(40):
                a(f"""
                v_mul_u32_u24 v42, 1280, v40
                v_lshl_add_u32 v42, v41, 1, v42
                buffer_load_dwordx4 v[{Z+4*i}:{Z+4*i+3}], v42, s[32:35], 0 offen
                """)
            return
        if pre == 'setup':
            if out_ws_off is None:
                a.srd(36, 12, 2621440)
            else:
                a.srd(36, 14, 2621440, out_ws_off)
            return
        if pre == 'out':
            for i in out_chunks():
                a(f"""
                ds_read_b128 v[32:35], v7
                v_mul_u32_u24 v6, 1280, v4
                v_lshl_add_u32 v6, v5, 1, v6
                s_waitcnt lgkmcnt(0)
                """)
                for w in range(4):
                    a.unpack(36, 37, 32+w)
                    a.unpack(38, 39, Z+4*i+w)
                    a(f"""
                    v_add_f32 v36, v36, v38
                    v_add_f32 v37, v37, v39
                    v_cvt_pk_bf16_f32 v{Z+4*i+w}, v36, v37
                    """)
                a(f'buffer_store_dwordx4 v[{Z+4*i}:{Z+4*i+3}], v6, s[36:39], 0 offen')
            return
        tile_addr()
        a("""
        v_cvt_pk_bf16_f32 v10, v40, v41
        v_cvt_pk_bf16_f32 v11, v42, v43
        ds_write_b64 v7, v[10:11]
        """)
    return epi

gen_prep()
gen_conv()
gen_row('rowa_kernel', A_Q, 0, X1)
gen_row('rowb_kernel', WS, X2, X3)
gen_lnz()
g1, l1 = gen_gemm('gemm1_kernel', 64, 64, 64, 640, 2048, 1728, (WS, HH), (WS, WINT), epi_gemm1, D=4)
g2, l2 = gen_gemm('gemm2_kernel', 64, 32, 64, 2048, 2048, 864, (B_WSP, 0), (WS, Z2T), epi_gemm2)
g3, l3 = gen_gemm('gemm3a_kernel', 32, 32, 64, 896, 2048, 640, (WS, UU), (WS, WOUTT), make_epi_gemm3(X1, X2))
g3, l3 = gen_gemm('gemm3b_kernel', 32, 32, 64, 896, 2048, 640, (WS, UU), (WS, WOUTT), make_epi_gemm3(X3, None))

launches = [
    ('prep_kernel', 1460, 5120),
    ('conv_kernel', 640, KVL + 9216),
    ('rowa_kernel', 256, 12288),
    ('gemm1_kernel', g1, l1),
    ('lnz_kernel', 256, 16384),
    ('gemm2_kernel', g2, l2),
    ('gemm3a_kernel', g3, l3),
    ('rowb_kernel', 256, 12288),
    ('gemm1_kernel', g1, l1),
    ('lnz_kernel', 256, 16384),
    ('gemm2_kernel', g2, l2),
    ('gemm3b_kernel', g3, l3),
]

ref = open('cdna_kernels/' + NAME + '.s.ref').read().split('\n')
head = [l for l in ref if l.startswith(';') and '@launch' not in l]
out = head[:]
for (k, g, lds) in launches:
    out.append(f'; @launch kernel={k} grid=({g},1,1) block=(256,1,1) lds={lds}')
out.append('.amdgcn_target "amdgcn-amd-amdhsa--gfx950"')
out.append('.text')
out += a.L
out.append('.section .rodata,"a"')
for (k, v, s, acc) in a.kernels:
    out.append('.p2align 6')
    out.append(f'.amdhsa_kernel {k}')
    out.append(f'  .amdhsa_next_free_vgpr {v}')
    out.append(f'  .amdhsa_next_free_sgpr {s}')
    out.append(f'  .amdhsa_accum_offset {((acc+3)//4)*4}')
    out.append('  .amdhsa_group_segment_fixed_size 0')
    out.append('  .amdhsa_kernarg_size 112')
    out.append('  .amdhsa_user_sgpr_count 2')
    out.append('  .amdhsa_user_sgpr_kernarg_segment_ptr 1')
    out.append('  .amdhsa_system_sgpr_workgroup_id_x 1')
    out.append('.end_amdhsa_kernel')
open('stamp.s' if STAMP else 'cdna_kernels/' + NAME + '.s', 'w').write('\n'.join(out) + '\n')
print('ok', len(out), 'lines', g1, l1, g2, l2, g3, l3)
```

```python
NAME = "interleave_layers__ssm_conv_h3__mixer_gmlp__prompt"

KVR = 0x0
YYT = 0x300000
WINT = 0x600000
WOUTT = 0x900000
X1 = 0xB00000
X2 = 0xE00000
X3 = 0x1100000
HH = 0x1400000
ZZ = 0x1700000
Z2T = 0x1E00000
UU = 0x2200000

A_Q, A_K, A_V, A_SK, A_SSMK, A_D, B_X, B_WIN, B_WSP, B_BSP, B_WOUT, OUT, DBG, WS = [8*i for i in range(14)]

class Asm:
    def __init__(self):
        self.L = []
        self.kernels = []
        self.launches = []
        self.uid = 0
    def __call__(self, s):
        for line in s.strip().split('\n'):
            self.L.append('    ' + line.strip())
    def label(self, l):
        self.L.append(l + ':')
    def newlabel(self, p='L'):
        self.uid += 1
        return f'{p}_{self.uid}'
    def begin(self, label):
        self.L.append('.globl ' + label)
        self.L.append('.p2align 8')
        self.L.append(f'.type {label},@function')
        self.label(label)
    def srd(self, d, p, nbytes, off=0):
        if off:
            self(f's_add_u32 s{d}, s{p}, {off}')
            self(f's_addc_u32 s{d+1}, s{p+1}, 0')
        else:
            self(f's_mov_b32 s{d}, s{p}')
            self(f's_mov_b32 s{d+1}, s{p+1}')
        self(f's_mov_b32 s{d+2}, {nbytes}')
        self(f's_mov_b32 s{d+3}, 0x00020000')
    def rnd2(self, a, b, t):
        self(f'v_cvt_pk_bf16_f32 v{t}, v{a}, v{b}')
        self(f'v_lshlrev_b32 v{a}, 16, v{t}')
        self(f'v_and_b32 v{b}, 0xffff0000, v{t}')
    def unpack(self, lo, hi, src):
        self(f'v_lshlrev_b32 v{lo}, 16, v{src}')
        self(f'v_and_b32 v{hi}, 0xffff0000, v{src}')
    def wave_sum(self, v, t, sdst):
        self('s_nop 1')
        self(f'v_add_f32_dpp v{t}, v{v}, v{v} quad_perm:[1,0,3,2] row_mask:0xf bank_mask:0xf')
        self('s_nop 1')
        self(f'v_add_f32_dpp v{v}, v{t}, v{t} quad_perm:[2,3,0,1] row_mask:0xf bank_mask:0xf')
        self('s_nop 1')
        self(f'v_add_f32_dpp v{t}, v{v}, v{v} row_half_mirror row_mask:0xf bank_mask:0xf')
        self('s_nop 1')
        self(f'v_add_f32_dpp v{v}, v{t}, v{t} row_mirror row_mask:0xf bank_mask:0xf')
        self('s_nop 0')
        self(f'v_readlane_b32 s52, v{v}, 16')
        self(f'v_readlane_b32 s53, v{v}, 32')
        self(f'v_readlane_b32 s54, v{v}, 48')
        self('s_nop 1')
        self(f'v_add_f32 v{v}, s52, v{v}')
        self(f'v_add_f32 v{v}, s53, v{v}')
        self(f'v_add_f32 v{v}, s54, v{v}')
        self('s_nop 0')
        self(f'v_readlane_b32 s{sdst}, v{v}, 0')
        self('s_nop 1')

a = Asm()
import os
STAMP = os.environ.get('STAMP') == '1'
def stamp(i):
    if STAMP:
        a(f's_memtime s[{60+2*i}:{61+2*i}]')
def stamp_out(n):
    if STAMP:
        a(f"""
        s_load_dwordx2 s[4:5], s[0:1], {DBG}
        s_waitcnt lgkmcnt(0)
        s_cmp_lg_u32 s2, 5
        s_cbranch_scc1 skipst_{a.uid}
        """)
        a.srd(8, 4, 256)
        for i in range(n):
            a(f"""
            v_mov_b32 v1, s{60+2*i}
            v_mov_b32 v2, {4*i}
            buffer_store_dword v1, v2, s[8:11], 0 offen
            """)
        a.label(f'skipst_{a.uid}')
        a.uid += 1


def gen_prep():
    k = 'prep_kernel'
    a.begin(k)
    a(f'''
    s_cmp_ge_u32 s2, 1460
    s_cbranch_scc1 prep_done
    s_load_dwordx2 s[4:5], s[0:1], {A_K}
    s_load_dwordx2 s[6:7], s[0:1], {A_V}
    s_load_dwordx2 s[8:9], s[0:1], {A_SK}
    s_load_dwordx2 s[10:11], s[0:1], {B_WIN}
    s_load_dwordx2 s[12:13], s[0:1], {B_WOUT}
    s_load_dwordx2 s[14:15], s[0:1], {WS}
    v_lshrrev_b32 v1, 3, v0
    v_and_b32 v2, 7, v0
    s_waitcnt lgkmcnt(0)
    s_cmp_ge_u32 s2, 640
    s_cbranch_scc1 prep_tr
    ''')
    a(f'''
    s_mov_b32 s16, 429496730
    s_mul_hi_u32 s17, s2, s16
    s_mul_i32 s18, s17, 10
    s_sub_u32 s18, s2, s18
    s_lshl_b32 s19, s17, 5
    s_lshl_b32 s20, s18, 6
    ''')
    a.srd(24, 4, 2621440)
    a.srd(28, 6, 2621440)
    a.srd(32, 8, 5120)
    a.srd(36, 14, 2621440, KVR)
    a(f'''
    v_add_u32 v3, s19, v1
    v_mul_u32_u24 v3, 1280, v3
    v_lshlrev_b32 v4, 4, v2
    v_add_u32 v3, v3, v4
    s_lshl_b32 s21, s20, 1
    v_add_u32 v3, s21, v3
    v_subrev_u32 v5, 1280, v3
    v_subrev_u32 v6, 2560, v3
    v_subrev_u32 v7, 3840, v3
    buffer_load_dwordx4 v[8:11], v3, s[24:27], 0 offen
    buffer_load_dwordx4 v[12:15], v5, s[24:27], 0 offen
    buffer_load_dwordx4 v[16:19], v6, s[24:27], 0 offen
    buffer_load_dwordx4 v[20:23], v7, s[24:27], 0 offen
    buffer_load_dwordx4 v[24:27], v3, s[28:31], 0 offen
    v_lshlrev_b32 v4, 6, v2
    s_lshl_b32 s21, s20, 3
    v_add_u32 v4, s21, v4
    buffer_load_dwordx4 v[28:31], v4, s[32:35], 0 offen
    buffer_load_dwordx4 v[32:35], v4, s[32:35], 0 offen offset:16
    buffer_load_dwordx4 v[36:39], v4, s[32:35], 0 offen offset:32
    buffer_load_dwordx4 v[40:43], v4, s[32:35], 0 offen offset:48
    ''')
    a('''
    v_mul_u32_u24 v44, 640, v2
    v_sub_u32 v45, 31, v1
    v_lshlrev_b32 v45, 1, v45
    v_add_u32 v44, v44, v45
    s_waitcnt vmcnt(0)
    ''')
    for e in range(8):
        w = e // 2
        def g(dst, base):
            if e % 2 == 0:
                a(f'v_lshlrev_b32 v{dst}, 16, v{base+w}')
            else:
                a(f'v_and_b32 v{dst}, 0xffff0000, v{base+w}')
        g(50, 8); g(51, 12); g(52, 16); g(53, 20); g(54, 24)
        a.unpack(55, 56, 28 + 2*e)
        a.unpack(57, 58, 29 + 2*e)
        a(f'''
        v_mul_f32 v60, v53, v58
        v_mul_f32 v61, v52, v57
        ''')
        a.rnd2(60, 61, 62)
        a(f'''
        v_add_f32 v60, v60, v61
        v_mul_f32 v61, v51, v56
        ''')
        a.rnd2(60, 61, 62)
        a(f'''
        v_add_f32 v60, v60, v61
        v_mul_f32 v61, v50, v55
        ''')
        a.rnd2(60, 61, 62)
        a(f'''
        v_add_f32 v60, v60, v61
        v_cvt_pk_bf16_f32 v62, v60, v60
        v_lshlrev_b32 v60, 16, v62
        v_mul_f32 v60, v60, v54
        v_cvt_pk_bf16_f32 v62, v60, v60
        ds_write_b16 v44, v62 offset:{80*e}
        ''')
    a(f'''
    s_waitcnt lgkmcnt(0)
    s_barrier
    v_lshrrev_b32 v45, 2, v0
    v_and_b32 v46, 3, v0
    v_mul_u32_u24 v47, 80, v45
    v_lshlrev_b32 v48, 4, v46
    v_add_u32 v47, v47, v48
    ds_read_b128 v[8:11], v47
    v_add_u32 v45, s20, v45
    v_lshlrev_b32 v45, 12, v45
    s_sub_u32 s21, 2016, s19
    s_lshl_b32 s21, s21, 1
    v_add_u32 v45, s21, v45
    v_add_u32 v45, v45, v48
    s_waitcnt lgkmcnt(0)
    buffer_store_dwordx4 v[8:11], v45, s[36:39], 0 offen
    s_branch prep_done
    ''')
    a.label('prep_tr')
    a('''
    s_sub_u32 s16, s2, 640
    s_cmp_ge_u32 s16, 540
    s_cbranch_scc1 prep_tr2
    ''')
    a(f'''
    s_mov_b32 s17, 159072863
    s_mul_hi_u32 s18, s16, s17
    s_mul_i32 s19, s18, 27
    s_sub_u32 s19, s16, s19
    s_mov_b32 s20, 640
    s_mov_b32 s21, 1728
    ''')
    a.srd(24, 10, 2211840)
    a.srd(28, 14, 2211840, WINT)
    a('s_branch prep_tr3')
    a.label('prep_tr2')
    a(f'''
    s_sub_u32 s16, s16, 540
    s_mov_b32 s17, 429496730
    s_mul_hi_u32 s18, s16, s17
    s_mul_i32 s19, s18, 10
    s_sub_u32 s19, s16, s19
    s_mov_b32 s20, 896
    s_mov_b32 s21, 640
    ''')
    a.srd(24, 12, 1105920)
    a.srd(28, 14, 1146880, WOUTT)
    a.label('prep_tr3')
    a('''
    s_lshl_b32 s22, s18, 5
    s_lshl_b32 s23, s19, 6
    v_add_u32 v3, s22, v1
    v_mul_lo_u32 v3, v3, s21
    v_lshlrev_b32 v4, 3, v2
    v_add_u32 v3, v3, v4
    v_add_u32 v3, s23, v3
    v_lshlrev_b32 v3, 1, v3
    buffer_load_dwordx4 v[8:11], v3, s[24:27], 0 offen
    v_mul_u32_u24 v44, 640, v2
    v_lshlrev_b32 v45, 1, v1
    v_add_u32 v44, v44, v45
    s_waitcnt vmcnt(0)
    ''')
    for e in range(8):
        if e % 2 == 0:
            a(f'ds_write_b16 v44, v{8+e//2} offset:{80*e}')
        else:
            a(f'ds_write_b16_d16_hi v44, v{8+e//2} offset:{80*e}')
    a('''
    s_waitcnt lgkmcnt(0)
    s_barrier
    v_lshrrev_b32 v45, 2, v0
    v_and_b32 v46, 3, v0
    v_mul_u32_u24 v47, 80, v45
    v_lshlrev_b32 v48, 4, v46
    v_add_u32 v47, v47, v48
    ds_read_b128 v[8:11], v47
    v_add_u32 v45, s23, v45
    v_mul_lo_u32 v45, v45, s20
    v_add_u32 v45, s22, v45
    v_lshlrev_b32 v45, 1, v45
    v_add_u32 v45, v45, v48
    s_waitcnt lgkmcnt(0)
    buffer_store_dwordx4 v[8:11], v45, s[28:31], 0 offen
    ''')
    a.label('prep_done')
    a('s_endpgm')
    a.kernels.append((k, 64, 48, 64))

HP = 4256
KVL = 8 * HP
def gen_conv():
    k = 'conv_kernel'
    a.begin(k)
    a(f'''
    s_cmp_ge_u32 s2, 640
    s_cbranch_scc1 conv_done
    s_load_dwordx2 s[4:5], s[0:1], {A_SSMK}
    s_load_dwordx2 s[6:7], s[0:1], {A_D}
    s_load_dwordx2 s[14:15], s[0:1], {WS}
    s_lshl_b32 s16, s2, 12
    s_waitcnt lgkmcnt(0)
    s_add_u32 s4, s4, s16
    s_addc_u32 s5, s5, 0
    s_add_u32 s8, s14, s16
    s_addc_u32 s9, s15, 0
    ''')
    a.srd(24, 4, 4096)
    a.srd(28, 8, 4096, KVR)
    a.srd(32, 8, 4096, YYT)
    a.srd(36, 6, 1280)
    def fill(ci_reg):
        a(f'''
        v_lshlrev_b32 v3, 4, v{ci_reg}
        v_subrev_u32 v4, 128, v3
        v_subrev_u32 v5, 112, v3
        buffer_load_dwordx4 v[8:11], v4, s[24:27], 0 offen
        buffer_load_dwordx4 v[12:15], v5, s[24:27], 0 offen
        s_waitcnt vmcnt(0)
        ''')
        for c in range(8):
            if c % 2 == 0:
                j = c // 2
                if j == 0:
                    a(f'ds_write_b128 v3, v[8:11] offset:{c*HP}')
                else:
                    for i in range(4):
                        a(f'v_mov_b32 v{16+i}, v{8+j+i}')
                    a(f'ds_write_b128 v3, v[16:19] offset:{c*HP}')
            else:
                j = (c - 1) // 2
                base = 20 if (c % 4 == 1) else 24
                for i in range(4):
                    a(f'v_alignbit_b32 v{base+i}, v{8+j+i+1}, v{8+j+i}, 16')
                a(f'ds_write_b128 v3, v[{base}:{base+3}] offset:{c*HP}')
    fill(0)
    a('''
    v_add_u32 v2, 256, v0
    v_cmp_gt_u32 vcc, 265, v2
    s_and_saveexec_b64 s[40:41], vcc
    s_cbranch_execz conv_f2
    ''')
    fill(2)
    a.label('conv_f2')
    a('s_mov_b64 exec, s[40:41]')
    a(f'''
    v_lshlrev_b32 v3, 4, v0
    buffer_load_dwordx4 v[8:11], v3, s[28:31], 0 offen
    s_lshl_b32 s17, s2, 1
    v_mov_b32 v4, s17
    buffer_load_ushort v30, v4, s[36:39], 0 offen
    v_mov_b32 v12, 0
    v_mov_b32 v13, 0
    v_mov_b32 v14, 0
    v_mov_b32 v15, 0
    v_lshrrev_b32 v5, 3, v0
    v_lshlrev_b32 v5, 4, v5
    v_add_u32 v3, v3, v5
    ds_write_b128 v3, v[12:15] offset:{KVL+4608}
    s_waitcnt vmcnt(0)
    ds_write_b128 v3, v[8:11] offset:{KVL}
    v_lshlrev_b32 v30, 16, v30
    ''')
    a('''
    v_lshrrev_b32 v1, 6, v0
    v_and_b32 v2, 63, v0
    v_and_b32 v3, 31, v2
    v_lshrrev_b32 v4, 5, v2
    ''')
    for r in range(2):
        a(f'''
        v_lshlrev_b32 v5, 1, v3
        v_add_u32 v5, {r+1}, v5
        v_and_b32 v6, 7, v5
        v_mul_u32_u24 v6, {HP}, v6
        v_and_b32 v5, 0x78, v5
        v_lshlrev_b32 v7, 9, v1
        v_add_u32 v5, v5, v7
        v_lshlrev_b32 v7, 3, v4
        v_add_u32 v5, v5, v7
        v_lshlrev_b32 v5, 1, v5
        v_add_u32 v{32+r}, v5, v6
        ''')
    a(f'''
    v_lshlrev_b32 v5, 6, v3
    v_sub_u32 v5, 1984, v5
    v_lshlrev_b32 v7, 9, v1
    v_add_u32 v5, v5, v7
    v_lshlrev_b32 v7, 3, v4
    v_add_u32 v5, v5, v7
    v_lshrrev_b32 v6, 6, v5
    v_lshlrev_b32 v6, 4, v6
    v_lshlrev_b32 v5, 1, v5
    v_add_u32 v5, v5, v6
    v_add_u32 v34, {KVL}, v5
    ''')
    for i in range(32):
        a(f'v_mov_b32 v{64+i}, 0')
    a('''
    s_waitcnt lgkmcnt(0)
    s_barrier
    ''')
    def rd(step, s):
        b = 40 + 12*s
        a(f'''
        ds_read_b128 v[{b}:{b+3}], v32 offset:{32*step}
        ds_read_b128 v[{b+4}:{b+7}], v33 offset:{32*step}
        ds_read_b128 v[{b+8}:{b+11}], v34 offset:{32*step + 16*(step>>2)}
        ''')
    rd(0, 0)
    for step in range(32):
        s = step & 1
        if step + 1 < 32:
            rd(step + 1, s ^ 1)
            a('s_waitcnt lgkmcnt(3)')
        else:
            a('s_waitcnt lgkmcnt(0)')
        b = 40 + 12*s
        a(f'''
        v_mfma_f32_32x32x16_bf16 v[64:79], v[{b}:{b+3}], v[{b+8}:{b+11}], v[64:79]
        v_mfma_f32_32x32x16_bf16 v[80:95], v[{b+4}:{b+7}], v[{b+8}:{b+11}], v[80:95]
        ''')
    a('''
    s_barrier
    s_nop 7
    s_nop 7
    v_lshlrev_b32 v5, 13, v1
    v_lshlrev_b32 v6, 2, v2
    v_add_u32 v5, v5, v6
    ''')
    for r in range(2):
        for j in range(16):
            a(f'ds_write_b32 v5, v{64+16*r+j} offset:{r*4096+j*256}')
    a(f'''
    v_and_b32 v5, 7, v0
    v_lshrrev_b32 v5, 1, v5
    v_lshlrev_b32 v5, 10, v5
    v_lshrrev_b32 v6, 3, v0
    v_and_b32 v7, 1, v0
    v_lshlrev_b32 v7, 5, v7
    v_add_u32 v6, v6, v7
    v_lshlrev_b32 v6, 2, v6
    v_add_u32 v5, v5, v6
    v_sub_u32 v6, 255, v0
    v_lshrrev_b32 v7, 3, v6
    v_add_u32 v6, v6, v7
    v_lshlrev_b32 v6, 4, v6
    v_add_u32 v6, {KVL}, v6
    s_waitcnt lgkmcnt(0)
    s_barrier
    ds_read_b128 v[8:11], v6
    ''')
    for e in range(8):
        for w in range(4):
            a(f'ds_read_b32 v{40+4*e+w}, v5 offset:{w*8192 + (e&1)*4096 + (e>>1)*256}')
    a('s_waitcnt lgkmcnt(0)')
    for e in range(8):
        b = 40 + 4*e
        a(f'''
        v_add_f32 v{b}, v{b}, v{b+1}
        v_add_f32 v{b+2}, v{b+2}, v{b+3}
        v_add_f32 v{b}, v{b}, v{b+2}
        ''')
    for e in range(0, 8, 2):
        b0, b1 = 40 + 4*e, 40 + 4*(e+1)
        a.rnd2(b0, b1, 12)
        p0, p1 = 7 - e, 7 - (e+1)
        a(f'''
        v_and_b32 v13, 0xffff0000, v{8 + p0//2}
        v_lshlrev_b32 v14, 16, v{8 + p1//2}
        v_mul_f32 v13, v13, v30
        v_mul_f32 v14, v14, v30
        ''')
        a.rnd2(13, 14, 12)
        a(f'''
        v_add_f32 v13, v13, v{b0}
        v_add_f32 v14, v14, v{b1}
        v_cvt_pk_bf16_f32 v{16+e//2}, v13, v14
        ''')
    a('''
    v_lshlrev_b32 v3, 4, v0
    buffer_store_dwordx4 v[16:19], v3, s[32:35], 0 offen
    ''')
    a.label('conv_done')
    a('s_endpgm')
    a.kernels.append((k, 96, 48, 96))

def ln_rows(vals, n_elems, outs, tmp, neps_s):
    t0, t1, t2, t3 = tmp, tmp+1, tmp+2, tmp+3
    a(f'v_mov_b32 v{t0}, v{vals[0]}')
    for v in vals[1:]:
        a(f'v_add_f32 v{t0}, v{t0}, v{v}')
    a.wave_sum(t0, t1, 50)
    a(f'''
    v_mov_b32 v{t0}, {1.0/n_elems!r}
    v_mul_f32 v{t2}, s50, v{t0}
    ''')
    a(f'v_sub_f32 v{t1}, v{vals[0]}, v{t2}')
    a(f'v_mul_f32 v{t0}, v{t1}, v{t1}')
    for v in vals[1:]:
        a(f'v_sub_f32 v{t1}, v{v}, v{t2}')
        a(f'v_fmac_f32 v{t0}, v{t1}, v{t1}')
    a.wave_sum(t0, t1, 51)
    a(f'''
    v_mov_b32 v{t0}, {1.0/n_elems!r}
    v_mul_f32 v{t3}, s51, v{t0}
    ''')
    a.rnd2(t2, t3, t0)
    a(f'''
    v_add_f32 v{t3}, 0x3727c5ac, v{t3}
    v_cvt_pk_bf16_f32 v{t0}, v{t3}, v{t3}
    v_lshlrev_b32 v{t3}, 16, v{t0}
    v_sqrt_f32 v{t3}, v{t3}
    s_nop 0
    v_cvt_pk_bf16_f32 v{t0}, v{t3}, v{t3}
    v_lshlrev_b32 v{t3}, 16, v{t0}
    v_rcp_f32 v{t1}, v{t3}
    s_nop 0
    ''')
    a(f'''
    v_fma_f32 v{t0}, -v{t3}, v{t1}, 2.0
    v_mul_f32 v{t1}, v{t1}, v{t0}
    ''')
    for i in range(0, len(vals), 2):
        o0, o1 = outs[i], outs[i+1]
        a(f'''
        v_sub_f32 v{o0}, v{vals[i]}, v{t2}
        v_sub_f32 v{o1}, v{vals[i+1]}, v{t2}
        ''')
        a.rnd2(o0, o1, t0)
        a(f'''
        v_mul_f32 v{tmp+4}, v{o0}, v{t1}
        v_mul_f32 v{tmp+5}, v{o1}, v{t1}
        v_fma_f32 v{t0}, -v{tmp+4}, v{t3}, v{o0}
        v_fma_f32 v{o0}, v{t0}, v{t1}, v{tmp+4}
        v_fma_f32 v{t0}, -v{tmp+5}, v{t3}, v{o1}
        v_fma_f32 v{o1}, v{t0}, v{t1}, v{tmp+5}
        ''')
        a.rnd2(o0, o1, t0)

def gen_row(k, xin_arg, xin_off, xout_off):
    a.begin(k)
    done = k + '_done'
    a(f'''
    s_cmp_ge_u32 s2, 256
    s_cbranch_scc1 {done}
    s_load_dwordx2 s[4:5], s[0:1], {xin_arg}
    s_load_dwordx2 s[14:15], s[0:1], {WS}
    s_waitcnt lgkmcnt(0)
    ''')
    a.srd(24, 4, 2621440, xin_off)
    a.srd(28, 14, 2621440, YYT)
    a.srd(32, 14, 2621440, xout_off)
    a.srd(36, 14, 2621440, HH)
    a('''
    v_lshrrev_b32 v1, 6, v0
    v_and_b32 v2, 63, v0
    ''')
    for rr in range(2):
        a(f'''
        s_lshl_b32 s17, s2, 3
        s_add_u32 s17, s17, {rr}
        v_lshlrev_b32 v3, 1, v1
        v_add_u32 v3, s17, v3
        v_mul_u32_u24 v3, 1280, v3
        v_lshlrev_b32 v4, 2, v2
        v_add_u32 v{74+rr}, v3, v4
        ''')
        for j in range(5):
            a(f'buffer_load_dword v{64+5*rr+j}, v{74+rr}, s[24:27], 0 offen offset:{256*j}')
    a('''
    s_lshl_b32 s16, s2, 4
    v_lshlrev_b32 v3, 12, v0
    v_add_u32 v3, s16, v3
    v_add_u32 v4, 0x100000, v3
    v_add_u32 v5, 0x200000, v3
    buffer_load_dwordx4 v[8:11], v3, s[28:31], 0 offen
    buffer_load_dwordx4 v[12:15], v4, s[28:31], 0 offen
    buffer_load_dwordx4 v[16:19], v5, s[28:31], 0 offen
    v_lshlrev_b32 v6, 4, v0
    s_waitcnt vmcnt(0)
    ds_write_b128 v6, v[8:11]
    ds_write_b128 v6, v[12:15] offset:4096
    ds_write_b128 v6, v[16:19] offset:8192
    s_waitcnt lgkmcnt(0)
    s_barrier
    ''')
    for rr in range(2):
        a(f'v_mov_b32 v3, v{74+rr}')
        for j in range(5):
            a(f'v_mov_b32 v{8+j}, v{64+5*rr+j}')
        a(f'''
        v_lshlrev_b32 v4, 5, v2
        v_lshlrev_b32 v5, 2, v1
        v_add_u32 v4, v4, v5
        ''')
        for j in range(5):
            a(f'ds_read_u16 v{40+2*j}, v4 offset:{2048*j + 2*rr}')
            a(f'ds_read_u16 v{41+2*j}, v4 offset:{2048*j + 16 + 2*rr}')
        a('s_waitcnt lgkmcnt(0)')
        xs = list(range(16, 26))
        for j in range(5):
            a.unpack(16+2*j, 17+2*j, 8+j)
        for j in range(10):
            a(f'v_lshlrev_b32 v{40+j}, 16, v{40+j}')
        qs = list(range(28, 38))
        ln_rows(xs, 640, qs, 56, None)
        for i in range(0, 10, 2):
            a(f'''
            v_mul_f32 v{qs[i]}, v{qs[i]}, v{40+i}
            v_mul_f32 v{qs[i+1]}, v{qs[i+1]}, v{41+i}
            ''')
            a.rnd2(qs[i], qs[i+1], 56)
            a(f'''
            v_add_f32 v{xs[i]}, v{xs[i]}, v{qs[i]}
            v_add_f32 v{xs[i+1]}, v{xs[i+1]}, v{qs[i+1]}
            ''')
            a.rnd2(xs[i], xs[i+1], 56)
            a(f'buffer_store_dword v56, v3, s[32:35], 0 offen offset:{256*(i//2)}')
            a('s_nop 1')
        ln_rows(xs, 640, qs, 56, None)
        for i in range(0, 10, 2):
            a(f'v_cvt_pk_bf16_f32 v{8+i//2}, v{qs[i]}, v{qs[i+1]}')
            a(f'buffer_store_dword v{8+i//2}, v3, s[36:39], 0 offen offset:{256*(i//2)}')
        a('s_nop 2')
    a.label(done)
    a('s_endpgm')
    a.kernels.append((k, 80, 56, 80))

def gen_lnz():
    k = 'lnz_kernel'
    a.begin(k)
    a(f'''
    s_cmp_ge_u32 s2, 256
    s_cbranch_scc1 lnz_done
    s_load_dwordx2 s[14:15], s[0:1], {WS}
    s_waitcnt lgkmcnt(0)
    ''')
    a.srd(24, 14, 7077888, ZZ)
    a.srd(28, 14, 3538944, Z2T)
    a('''
    v_lshrrev_b32 v1, 6, v0
    v_and_b32 v2, 63, v0
    ''')
    for rr in range(2):
        a(f'''
        s_lshl_b32 s17, s2, 3
        s_add_u32 s17, s17, {rr}
        v_lshlrev_b32 v3, 1, v1
        v_add_u32 v3, s17, v3
        v_mul_u32_u24 v3, 3456, v3
        v_lshlrev_b32 v4, 2, v2
        v_add_u32 v3, v3, v4
        v_mov_b32 v{64+7*rr+6}, 0
        ''')
        for j in range(6):
            a(f'buffer_load_dword v{64+7*rr+j}, v3, s[24:27], 0 offen offset:{1728 + 256*j}')
        a(f'''
        v_cmp_gt_u32 vcc, 48, v2
        s_and_saveexec_b64 s[40:41], vcc
        buffer_load_dword v{64+7*rr+6}, v3, s[24:27], 0 offen offset:{1728 + 256*6}
        s_mov_b64 exec, s[40:41]
        ''')
    a('s_waitcnt vmcnt(0)')
    for rr in range(2):
        for j in range(7):
            a(f'v_mov_b32 v{8+j}, v{64+7*rr+j}')
        xs = list(range(16, 30))
        for j in range(7):
            a.unpack(16+2*j, 17+2*j, 8+j)
        t0, t1, t2, t3 = 56, 57, 58, 59
        a(f'v_mov_b32 v{t0}, v16')
        for v in xs[1:]:
            a(f'v_add_f32 v{t0}, v{t0}, v{v}')
        a.wave_sum(t0, t1, 50)
        a(f'''
        v_mov_b32 v{t0}, {1.0/864!r}
        v_mul_f32 v{t2}, s50, v{t0}
        v_mov_b32 v{t0}, 0
        ''')
        for v in xs[:12]:
            a(f'v_sub_f32 v{t1}, v{v}, v{t2}')
            a(f'v_fmac_f32 v{t0}, v{t1}, v{t1}')
        a(f'''
        v_cmp_gt_u32 vcc, 48, v2
        v_sub_f32 v{t1}, v28, v{t2}
        v_mul_f32 v{t1}, v{t1}, v{t1}
        v_sub_f32 v{t3}, v29, v{t2}
        v_fmac_f32 v{t1}, v{t3}, v{t3}
        v_cndmask_b32 v{t1}, 0, v{t1}, vcc
        v_add_f32 v{t0}, v{t0}, v{t1}
        ''')
        a.wave_sum(t0, t1, 51)
        a(f'''
        v_mov_b32 v{t0}, {1.0/864!r}
        v_mul_f32 v{t3}, s51, v{t0}
        ''')
        a.rnd2(t2, t3, t0)
        a(f'''
        v_add_f32 v{t3}, 0x3727c5ac, v{t3}
        v_cvt_pk_bf16_f32 v{t0}, v{t3}, v{t3}
        v_lshlrev_b32 v{t3}, 16, v{t0}
        v_sqrt_f32 v{t3}, v{t3}
        s_nop 0
        v_cvt_pk_bf16_f32 v{t0}, v{t3}, v{t3}
        v_lshlrev_b32 v{t3}, 16, v{t0}
        v_rcp_f32 v{t1}, v{t3}
        s_nop 0
        v_fma_f32 v{t0}, -v{t3}, v{t1}, 2.0
        v_mul_f32 v{t1}, v{t1}, v{t0}
        ''')
        a(f'''
        v_lshlrev_b32 v4, 5, v2
        v_lshlrev_b32 v5, 2, v1
        v_add_u32 v4, v4, v5
        ''')
        for j in range(7):
            o0, o1 = 40, 41
            a(f'''
            v_sub_f32 v{o0}, v{xs[2*j]}, v{t2}
            v_sub_f32 v{o1}, v{xs[2*j+1]}, v{t2}
            ''')
            a.rnd2(o0, o1, t0)
            a(f'''
            v_mul_f32 v60, v{o0}, v{t1}
            v_mul_f32 v61, v{o1}, v{t1}
            v_fma_f32 v{t0}, -v60, v{t3}, v{o0}
            v_fma_f32 v{o0}, v{t0}, v{t1}, v60
            v_fma_f32 v{t0}, -v61, v{t3}, v{o1}
            v_fma_f32 v{o1}, v{t0}, v{t1}, v61
            v_cvt_pk_bf16_f32 v{42+j}, v{o0}, v{o1}
            ds_write_b16 v4, v{42+j} offset:{2048*j + 2*rr}
            ds_write_b16_d16_hi v4, v{42+j} offset:{2048*j + 16 + 2*rr}
            ''')
    a('''
    s_waitcnt lgkmcnt(0)
    s_barrier
    v_lshlrev_b32 v4, 4, v0
    ds_read_b128 v[8:11], v4
    ds_read_b128 v[12:15], v4 offset:4096
    ds_read_b128 v[16:19], v4 offset:8192
    ds_read_b128 v[20:23], v4 offset:12288
    s_lshl_b32 s16, s2, 4
    v_lshlrev_b32 v3, 12, v0
    v_add_u32 v3, s16, v3
    v_add_u32 v5, 0x100000, v3
    v_add_u32 v6, 0x200000, v3
    v_add_u32 v7, 0x300000, v3
    s_waitcnt lgkmcnt(0)
    buffer_store_dwordx4 v[8:11], v3, s[28:31], 0 offen
    buffer_store_dwordx4 v[12:15], v5, s[28:31], 0 offen
    buffer_store_dwordx4 v[16:19], v6, s[28:31], 0 offen
    buffer_store_dwordx4 v[20:23], v7, s[28:31], 0 offen
    ''')
    a.label('lnz_done')
    a('s_endpgm')
    a.kernels.append((k, 80, 56, 80))

def gen_gemm(k, WM, WN, BK, K, M, N, A_src, B_src, epi, D=4, GM=2, GN=4):
    BM, BN = GM*WM, GN*WN
    NT = 64*GM*GN
    TM, TN = WM//32, WN//32
    nmt, nnt = M//BM, -(-N//BN)
    rowb = 128
    nsteps = K//BK
    Abytes, Bbytes = BM*rowb, BN*rowb
    stage = Abytes + Bbytes
    PB = NT*16
    nla, nlb = Abytes//PB, Bbytes//PB
    nl = nla + nlb
    RPL = NT//8
    done = k + '_done'
    a.begin(k)
    a(f"""
    s_cmp_ge_u32 s2, {nmt*nnt}
    s_cbranch_scc1 {done}
    """)
    stamp(0)
    a(f"""
    s_load_dwordx2 s[4:5], s[0:1], {A_src[0]}
    s_load_dwordx2 s[6:7], s[0:1], {B_src[0]}
    s_load_dwordx2 s[14:15], s[0:1], {WS}
    s_load_dwordx2 s[10:11], s[0:1], {B_BSP}
    s_load_dwordx2 s[12:13], s[0:1], {OUT}
    s_and_b32 s16, s2, {nmt-1}
    s_lshr_b32 s17, s2, {nmt.bit_length()-1}
    s_mul_i32 s18, s16, {BM}
    s_mul_i32 s19, s17, {BN}
    v_lshrrev_b32 v1, 6, v0
    v_lshlrev_b32 v1, 10, v1
    s_nop 0
    v_readfirstlane_b32 s22, v1
    s_waitcnt lgkmcnt(0)
    """)
    a.srd(24, 4, M*K*2, A_src[1])
    a.srd(28, 6, N*K*2, B_src[1])
    a(f"""
    v_lshrrev_b32 v1, 3, v0
    v_and_b32 v2, 7, v0
    v_lshrrev_b32 v3, 1, v1
    v_and_b32 v3, 7, v3
    v_xor_b32 v2, v2, v3
    v_lshlrev_b32 v2, 4, v2
    v_add_u32 v3, s18, v1
    v_mul_u32_u24 v3, {K*2}, v3
    v_add_u32 v4, v3, v2
    v_add_u32 v3, s19, v1
    v_mul_u32_u24 v3, {K*2}, v3
    v_add_u32 v8, v3, v2
    """)
    for i in range(1, nla):
        a(f'v_add_u32 v{4+i}, {RPL*i*K*2}, v4')
    for i in range(1, nlb):
        a(f'v_add_u32 v{8+i}, {RPL*i*K*2}, v8')
    a(f"""
    v_lshrrev_b32 v1, 6, v0
    v_and_b32 v2, 63, v0
    v_and_b32 v3, 31, v2
    v_lshrrev_b32 v20, 5, v2
    v_and_b32 v21, {GM-1}, v1
    v_lshrrev_b32 v22, {GM.bit_length()-1}, v1
    """)
    nkk = 4
    AB, AR = 12, 24
    for (isB, wsel, W, R) in ((0, 21, WM, AB), (1, 22, WN, AB+4)):
        a(f"""
        v_mul_u32_u24 v23, {W}, v{wsel}
        v_add_u32 v23, v23, v3
        v_lshrrev_b32 v{R}, 1, v23
        v_and_b32 v{R}, 7, v{R}
        v_xor_b32 v{R}, v{R}, v20
        v_mul_u32_u24 v23, {rowb}, v23
        """)
        if isB:
            a(f'v_add_u32 v23, {Abytes}, v23')
        for kk in range(3, -1, -1):
            a(f"""
            v_xor_b32 v{R+kk}, {2*kk}, v{R}
            v_lshl_add_u32 v{R+kk}, v{R+kk}, 4, v23
            """)
    FA = 32
    FB = FA + 4*TM*2
    ACC = 64
    nacc = TM*TN*16
    EPR = ACC + nacc
    global G_EPR, G_BM, G_BN
    G_EPR = EPR
    global G_NT
    G_BM, G_BN = BM, BN
    G_NT = NT
    assert FB + 4*TN*2 <= ACC
    for i in range(nacc):
        a(f'v_mov_b32 v{ACC+i}, 0')
    a(f"""
    v_mul_u32_u24 v23, {WM}, v21
    v_add_u32 v23, v23, v3
    v_add_u32 v{EPR}, s18, v23
    v_mul_u32_u24 v23, {WN}, v22
    v_lshlrev_b32 v{EPR+1}, 2, v20
    v_add_u32 v23, v23, v{EPR+1}
    v_add_u32 v{EPR+1}, s19, v23
    """)
    epi(TM, TN, ACC, True)
    def gload():
        for i in range(nl):
            a(f's_add_u32 m0, s55, {i*PB}')
            a('s_nop 0')
            if i < nla:
                a(f'buffer_load_dwordx4 v{4+i}, s[24:27], s20 offen lds')
            else:
                a(f'buffer_load_dwordx4 v{8+i-nla}, s[28:31], s20 offen lds')
        a(f"""
        s_add_u32 s20, s20, {rowb}
        s_add_u32 s55, s55, {stage}
        s_cmp_lt_u32 s55, {D*stage}
        s_cselect_b32 s55, s55, s22
        """)
    lp, lm, lw, lnl = [a.newlabel(x) for x in ('gp', 'gm', 'gw', 'gn')]
    a(f"""
    s_mov_b32 s20, 0
    s_mov_b32 s55, s22
    s_mov_b32 s48, 0
    s_mov_b32 s49, 0
    """)
    stamp(1)
    a.label(lp)
    gload()
    a(f"""
    s_add_u32 s48, s48, 1
    s_cmp_lt_u32 s48, {D-1}
    s_cbranch_scc1 {lp}
    s_mov_b32 s48, 0
    """)
    stamp(2)
    a.label(lm)
    a(f"""
    s_cmp_lt_u32 s48, {nsteps-(D-2)}
    s_cbranch_scc1 {lw}
    s_waitcnt vmcnt(0)
    """)
    a.label(lw)
    a(f"""
    s_waitcnt vmcnt({nl*(D-2)})
    s_barrier
    """)
    for i in range(8):
        a(f'v_add_u32 v{AR+i}, s49, v{AB+i}')
    def rd(kk, s):
        for i in range(TM):
            f = FA + 4*(s*TM + i)
            a(f'ds_read_b128 v[{f}:{f+3}], v{AR+kk} offset:{i*32*rowb}')
        for i in range(TN):
            f = FB + 4*(s*TN + i)
            a(f'ds_read_b128 v[{f}:{f+3}], v{AR+4+kk} offset:{i*32*rowb}')
    rd(0, 0)
    a(f"""
    s_cmp_lt_u32 s48, {nsteps-(D-1)}
    s_cbranch_scc0 {lnl}
    """)
    lend = a.newlabel('gx')
    for withload in (True, False):
        if not withload:
            a.label(lnl)
        nm = 0
        li = 0
        tot = nkk*TM*TN
        for kk in range(nkk):
            s_ = kk & 1
            if kk + 1 < nkk:
                rd(kk+1, s_ ^ 1)
                a(f's_waitcnt lgkmcnt({TM+TN})')
            else:
                a('s_waitcnt lgkmcnt(0)')
            for i in range(TM):
                for j in range(TN):
                    fa = FA + 4*(s_*TM + i)
                    fb = FB + 4*(s_*TN + j)
                    c = ACC + 16*(i*TN + j)
                    a(f'v_mfma_f32_32x32x16_bf16 v[{c}:{c+15}], v[{fb}:{fb+3}], v[{fa}:{fa+3}], v[{c}:{c+15}]')
                    nm += 1
                    if withload:
                        while li < nl and li * tot < nm * nl:
                            a(f's_add_u32 m0, s55, {li*PB}')
                            a('s_nop 0')
                            if li < nla:
                                a(f'buffer_load_dwordx4 v{4+li}, s[24:27], s20 offen lds')
                            else:
                                a(f'buffer_load_dwordx4 v{8+li-nla}, s[28:31], s20 offen lds')
                            li += 1
        if withload:
            a(f"""
            s_add_u32 s20, s20, {rowb}
            s_add_u32 s55, s55, {stage}
            s_cmp_lt_u32 s55, {D*stage}
            s_cselect_b32 s55, s55, s22
            s_branch {lend}
            """)
    a.label(lend)
    a(f"""
    s_add_u32 s49, s49, {stage}
    s_cmp_lt_u32 s49, {D*stage}
    s_cselect_b32 s49, s49, 0
    s_add_u32 s48, s48, 1
    s_cmp_lt_u32 s48, {nsteps}
    s_cbranch_scc1 {lm}
    s_nop 7
    s_nop 7
    """)
    stamp(3)
    a('s_barrier')
    le = a.newlabel('ge')
    lg = TN.bit_length() - 1
    epi(TM, TN, ACC, 'setup')
    a('s_mov_b32 s48, 0')
    a.label(le)
    a(f"""
    s_lshl_b32 s56, s48, 2
    s_lshr_b32 s49, s48, {2+lg}
    s_lshl_b32 s49, s49, 5
    s_lshr_b32 s55, s48, 2
    s_and_b32 s55, s55, {TN-1}
    s_lshl_b32 s55, s55, 5
    s_and_b32 s20, s48, 3
    s_lshl_b32 s20, s20, 3
    s_add_u32 s55, s55, s20
    s_set_gpr_idx_on s56, gpr_idx(SRC0)
    v_mov_b32 v40, v{ACC}
    v_mov_b32 v41, v{ACC+1}
    v_mov_b32 v42, v{ACC+2}
    v_mov_b32 v43, v{ACC+3}
    s_set_gpr_idx_off
    v_add_u32 v4, s49, v{EPR}
    v_add_u32 v5, s55, v{EPR+1}
    """)
    epi(TM, TN, ACC, 'body')
    a(f"""
    s_add_u32 s48, s48, 1
    s_cmp_lt_u32 s48, {nacc//4}
    s_cbranch_scc1 {le}
    s_waitcnt lgkmcnt(0)
    s_barrier
    """)
    epi(TM, TN, ACC, 'out')
    a('s_waitcnt vmcnt(0)')
    stamp(4)
    stamp_out(5)
    a.label(done)
    a('s_endpgm')
    lds = D*stage
    a.kernels.append((k, EPR + 4 + 24, 80, EPR + 4 + 24))
    return nmt*nnt, lds, NT

def gelu_regs(x, t0, t1):
    a(f'''
    v_mul_f32 v{t0}, v{x}, v{x}
    v_mul_f32 v{t0}, v{t0}, v{x}
    v_fma_f32 v{t0}, v{t0}, s46, v{x}
    v_mul_f32 v{t0}, s47, v{t0}
    v_exp_f32 v{t0}, v{t0}
    s_nop 0
    v_add_f32 v{t0}, 1.0, v{t0}
    v_rcp_f32 v{t0}, v{t0}
    s_nop 0
    v_fma_f32 v{t0}, v{t0}, -2.0, 2.0
    v_mul_f32 v{t1}, 0.5, v{x}
    v_mul_f32 v{x}, v{t1}, v{t0}
    ''')

def tile_addr():
    pitch = G_BN*2 + 16
    a(f"""
    v_subrev_u32 v6, s18, v4
    v_mul_u32_u24 v6, {pitch}, v6
    v_subrev_u32 v7, s19, v5
    v_lshl_add_u32 v7, v7, 1, v6
    """)

def out_chunks(t=4):
    cpr = G_BN // 8
    n = G_BM*G_BN*2//16//G_NT
    pitch = G_BN*2 + 16
    sh = cpr.bit_length()-1
    for i in range(n):
        a(f"""
        v_add_u32 v{t+2}, {G_NT*i}, v0
        v_lshrrev_b32 v{t}, {sh}, v{t+2}
        v_and_b32 v{t+1}, {cpr-1}, v{t+2}
        v_lshlrev_b32 v{t+1}, 3, v{t+1}
        v_mul_u32_u24 v{t+3}, {pitch}, v{t}
        v_lshl_add_u32 v{t+3}, v{t+1}, 1, v{t+3}
        v_add_u32 v{t}, s18, v{t}
        v_add_u32 v{t+1}, s19, v{t+1}
        """)
        yield i

def epi_gemm1(TM, TN, ACC, pre):
    if pre is True:
        return
    if pre == 'setup':
        a.srd(32, 14, 7077888, ZZ)
        a("""
        v_mov_b32 v48, 0x3dd2d3e8
        v_mov_b32 v49, 0x3dd2d3e8
        v_mov_b32 v50, 0x40135761
        v_mov_b32 v51, 0x40135761
        v_mov_b32 v52, 1.0
        v_mov_b32 v53, 1.0
        """)
        return
    if pre == 'out':
        for i in out_chunks():
            r = 32 + 4*(i % 8)
            a(f"""
            ds_read_b128 v[{r}:{r+3}], v7
            v_mul_u32_u24 v6, 3456, v4
            v_cmp_gt_u32 vcc, 1728, v5
            v_lshl_add_u32 v6, v5, 1, v6
            s_nop 0
            v_cndmask_b32 v6, -1, v6, vcc
            s_waitcnt lgkmcnt(0)
            buffer_store_dwordx4 v[{r}:{r+3}], v6, s[32:35], 0 offen
            """)
        return
    a.rnd2(40, 41, 8)
    a.rnd2(42, 43, 9)
    a("""
    v_pk_mul_f32 v[44:45], v[40:41], v[40:41]
    v_pk_mul_f32 v[46:47], v[42:43], v[42:43]
    v_pk_fma_f32 v[44:45], v[44:45], v[48:49], v[50:51]
    v_pk_fma_f32 v[46:47], v[46:47], v[48:49], v[50:51]
    v_pk_mul_f32 v[44:45], v[44:45], v[40:41]
    v_pk_mul_f32 v[46:47], v[46:47], v[42:43]
    v_exp_f32 v44, v44
    v_exp_f32 v45, v45
    v_exp_f32 v46, v46
    v_exp_f32 v47, v47
    v_pk_add_f32 v[44:45], v[44:45], v[52:53]
    v_pk_add_f32 v[46:47], v[46:47], v[52:53]
    v_rcp_f32 v44, v44
    v_rcp_f32 v45, v45
    v_rcp_f32 v46, v46
    v_rcp_f32 v47, v47
    """)
    tile_addr()
    a("""
    v_pk_fma_f32 v[40:41], v[40:41], v[44:45], v[40:41] neg_lo:[1,0,0] neg_hi:[1,0,0]
    v_pk_fma_f32 v[42:43], v[42:43], v[46:47], v[42:43] neg_lo:[1,0,0] neg_hi:[1,0,0]
    v_cvt_pk_bf16_f32 v10, v40, v41
    v_cvt_pk_bf16_f32 v11, v42, v43
    ds_write_b64 v7, v[10:11]
    """)

def epi_gemm2(TM, TN, ACC, pre):
    E = G_EPR
    R, C = E, E+1
    Z = E + 2 + (E+2) % 4
    Z = ((E + 2 + 3)//4)*4
    BS = Z + 16
    if pre is True:
        a.srd(32, 14, 7077888, ZZ)
        a.srd(44, 10, 4096)
        for i in range(TM):
            a(f"""
            v_add_u32 v23, {32*i}, v{R}
            v_lshlrev_b32 v{BS+4}, 1, v23
            buffer_load_ushort v{BS+i}, v{BS+4}, s[44:47], 0 offen
            """)
        for i in out_chunks(40):
            a(f"""
            v_mul_u32_u24 v42, 3456, v40
            v_cmp_gt_u32 vcc, 864, v41
            v_lshl_add_u32 v42, v41, 1, v42
            s_nop 0
            v_cndmask_b32 v42, -1, v42, vcc
            buffer_load_dwordx4 v[{Z+4*i}:{Z+4*i+3}], v42, s[32:35], 0 offen
            """)
        return
    if pre == 'setup':
        a.srd(36, 14, 3670016, UU)
        for i in range(TM):
            a(f'v_lshlrev_b32 v{BS+i}, 16, v{BS+i}')
        return
    if pre == 'out':
        for i in out_chunks():
            a(f"""
            ds_read_b128 v[32:35], v7
            v_mul_u32_u24 v6, 1792, v4
            v_lshl_add_u32 v6, v5, 1, v6
            s_waitcnt lgkmcnt(0)
            """)
            for w in range(4):
                a.unpack(36, 37, 32+w)
                a.unpack(38, 39, Z+4*i+w)
                a(f"""
                v_mul_f32 v36, v36, v38
                v_mul_f32 v37, v37, v39
                v_cvt_pk_bf16_f32 v{Z+4*i+w}, v36, v37
                """)
            a(f'buffer_store_dwordx4 v[{Z+4*i}:{Z+4*i+3}], v6, s[36:39], 0 offen')
        return
    lg = TN.bit_length() - 1
    a(f"""
    s_lshr_b32 s56, s48, {2+lg}
    s_set_gpr_idx_on s56, gpr_idx(SRC0)
    v_mov_b32 v12, v{BS}
    s_set_gpr_idx_off
    """)
    tile_addr()
    a.rnd2(40, 41, 8)
    a.rnd2(42, 43, 9)
    for e in range(4):
        a(f'v_add_f32 v{40+e}, v{40+e}, v12')
    a("""
    v_cvt_pk_bf16_f32 v10, v40, v41
    v_cvt_pk_bf16_f32 v11, v42, v43
    ds_write_b64 v7, v[10:11]
    """)

def make_epi_gemm3(xin_off, out_ws_off):
    def epi(TM, TN, ACC, pre):
        E = G_EPR
        Z = ((E + 2 + 3)//4)*4
        if pre is True:
            a.srd(32, 14, 2621440, xin_off)
            for i in out_chunks(40):
                a(f"""
                v_mul_u32_u24 v42, 1280, v40
                v_lshl_add_u32 v42, v41, 1, v42
                buffer_load_dwordx4 v[{Z+4*i}:{Z+4*i+3}], v42, s[32:35], 0 offen
                """)
            return
        if pre == 'setup':
            if out_ws_off is None:
                a.srd(36, 12, 2621440)
            else:
                a.srd(36, 14, 2621440, out_ws_off)
            return
        if pre == 'out':
            for i in out_chunks():
                a(f"""
                ds_read_b128 v[32:35], v7
                v_mul_u32_u24 v6, 1280, v4
                v_lshl_add_u32 v6, v5, 1, v6
                s_waitcnt lgkmcnt(0)
                """)
                for w in range(4):
                    a.unpack(36, 37, 32+w)
                    a.unpack(38, 39, Z+4*i+w)
                    a(f"""
                    v_add_f32 v36, v36, v38
                    v_add_f32 v37, v37, v39
                    v_cvt_pk_bf16_f32 v{Z+4*i+w}, v36, v37
                    """)
                a(f'buffer_store_dwordx4 v[{Z+4*i}:{Z+4*i+3}], v6, s[36:39], 0 offen')
            return
        tile_addr()
        a("""
        v_cvt_pk_bf16_f32 v10, v40, v41
        v_cvt_pk_bf16_f32 v11, v42, v43
        ds_write_b64 v7, v[10:11]
        """)
    return epi

gen_prep()
gen_conv()
gen_row('rowa_kernel', A_Q, 0, X1)
gen_row('rowb_kernel', WS, X2, X3)
gen_lnz()
g1, l1, t1 = gen_gemm('gemm1_kernel', 64, 32, 64, 640, 2048, 1728, (WS, HH), (WS, WINT), epi_gemm1, D=4, GM=2, GN=4)
g2, l2, t2 = gen_gemm('gemm2_kernel', 32, 32, 64, 2048, 2048, 864, (B_WSP, 0), (WS, Z2T), epi_gemm2, D=4, GM=4, GN=2)
g3, l3, t3 = gen_gemm('gemm3a_kernel', 32, 32, 64, 896, 2048, 640, (WS, UU), (WS, WOUTT), make_epi_gemm3(X1, X2), D=4, GM=4, GN=2)
g3, l3, t3 = gen_gemm('gemm3b_kernel', 32, 32, 64, 896, 2048, 640, (WS, UU), (WS, WOUTT), make_epi_gemm3(X3, None), D=4, GM=4, GN=2)

launches = [
    ('prep_kernel', 1460, 5120, 256),
    ('conv_kernel', 640, KVL + 9216, 256),
    ('rowa_kernel', 256, 12288, 256),
    ('gemm1_kernel', g1, l1, t1),
    ('lnz_kernel', 256, 16384, 256),
    ('gemm2_kernel', g2, l2, t2),
    ('gemm3a_kernel', g3, l3, t3),
    ('rowb_kernel', 256, 12288, 256),
    ('gemm1_kernel', g1, l1, t1),
    ('lnz_kernel', 256, 16384, 256),
    ('gemm2_kernel', g2, l2, t2),
    ('gemm3b_kernel', g3, l3, t3),
]

ref = open('cdna_kernels/' + NAME + '.s.ref').read().split('\n')
head = [l for l in ref if l.startswith(';') and '@launch' not in l]
out = head[:]
for (k, g, lds, nt) in launches:
    out.append(f'; @launch kernel={k} grid=({g},1,1) block=({nt},1,1) lds={lds}')
out.append('.amdgcn_target "amdgcn-amd-amdhsa--gfx950"')
out.append('.text')
out += a.L
out.append('.section .rodata,"a"')
for (k, v, s, acc) in a.kernels:
    out.append('.p2align 6')
    out.append(f'.amdhsa_kernel {k}')
    out.append(f'  .amdhsa_next_free_vgpr {v}')
    out.append(f'  .amdhsa_next_free_sgpr {s}')
    out.append(f'  .amdhsa_accum_offset {((acc+3)//4)*4}')
    out.append('  .amdhsa_group_segment_fixed_size 0')
    out.append('  .amdhsa_kernarg_size 112')
    out.append('  .amdhsa_user_sgpr_count 2')
    out.append('  .amdhsa_user_sgpr_kernarg_segment_ptr 1')
    out.append('  .amdhsa_system_sgpr_workgroup_id_x 1')
    out.append('.end_amdhsa_kernel')
open('stamp.s' if STAMP else 'cdna_kernels/' + NAME + '.s', 'w').write('\n'.join(out) + '\n')
print('ok', len(out), 'lines', g1, l1, g2, l2, g3, l3)
```

```python
NAME = "interleave_layers__ssm_conv_h3__mixer_gmlp__prompt"

KVR = 0x0
YYT = 0x300000
WINT = 0x600000
WOUTT = 0x900000
X1 = 0xB00000
X2 = 0xE00000
X3 = 0x1100000
HH = 0x1400000
ZZ = 0x1700000
Z2T = 0x1E00000
UU = 0x2200000

A_Q, A_K, A_V, A_SK, A_SSMK, A_D, B_X, B_WIN, B_WSP, B_BSP, B_WOUT, OUT, DBG, WS = [8*i for i in range(14)]

class Asm:
    def __init__(self):
        self.L = []
        self.kernels = []
        self.launches = []
        self.uid = 0
    def __call__(self, s):
        for line in s.strip().split('\n'):
            self.L.append('    ' + line.strip())
    def label(self, l):
        self.L.append(l + ':')
    def newlabel(self, p='L'):
        self.uid += 1
        return f'{p}_{self.uid}'
    def begin(self, label):
        self.L.append('.globl ' + label)
        self.L.append('.p2align 8')
        self.L.append(f'.type {label},@function')
        self.label(label)
    def srd(self, d, p, nbytes, off=0):
        if off:
            self(f's_add_u32 s{d}, s{p}, {off}')
            self(f's_addc_u32 s{d+1}, s{p+1}, 0')
        else:
            self(f's_mov_b32 s{d}, s{p}')
            self(f's_mov_b32 s{d+1}, s{p+1}')
        self(f's_mov_b32 s{d+2}, {nbytes}')
        self(f's_mov_b32 s{d+3}, 0x00020000')
    def rnd2(self, a, b, t):
        self(f'v_cvt_pk_bf16_f32 v{t}, v{a}, v{b}')
        self(f'v_lshlrev_b32 v{a}, 16, v{t}')
        self(f'v_and_b32 v{b}, 0xffff0000, v{t}')
    def unpack(self, lo, hi, src):
        self(f'v_lshlrev_b32 v{lo}, 16, v{src}')
        self(f'v_and_b32 v{hi}, 0xffff0000, v{src}')
    def wave_sum(self, v, t, sdst):
        self('s_nop 1')
        self(f'v_add_f32_dpp v{t}, v{v}, v{v} quad_perm:[1,0,3,2] row_mask:0xf bank_mask:0xf')
        self('s_nop 1')
        self(f'v_add_f32_dpp v{v}, v{t}, v{t} quad_perm:[2,3,0,1] row_mask:0xf bank_mask:0xf')
        self('s_nop 1')
        self(f'v_add_f32_dpp v{t}, v{v}, v{v} row_half_mirror row_mask:0xf bank_mask:0xf')
        self('s_nop 1')
        self(f'v_add_f32_dpp v{v}, v{t}, v{t} row_mirror row_mask:0xf bank_mask:0xf')
        self('s_nop 0')
        self(f'v_readlane_b32 s52, v{v}, 16')
        self(f'v_readlane_b32 s53, v{v}, 32')
        self(f'v_readlane_b32 s54, v{v}, 48')
        self('s_nop 1')
        self(f'v_add_f32 v{v}, s52, v{v}')
        self(f'v_add_f32 v{v}, s53, v{v}')
        self(f'v_add_f32 v{v}, s54, v{v}')
        self('s_nop 0')
        self(f'v_readlane_b32 s{sdst}, v{v}, 0')
        self('s_nop 1')

a = Asm()
import os
STAMP = os.environ.get('STAMP') == '1'
def stamp(i):
    if STAMP:
        a(f's_memtime s[{60+2*i}:{61+2*i}]')
def stamp_out(n):
    if STAMP:
        a(f"""
        s_load_dwordx2 s[4:5], s[0:1], {DBG}
        s_waitcnt lgkmcnt(0)
        s_cmp_lg_u32 s2, 5
        s_cbranch_scc1 skipst_{a.uid}
        """)
        a.srd(8, 4, 256)
        for i in range(n):
            a(f"""
            v_mov_b32 v1, s{60+2*i}
            v_mov_b32 v2, {4*i}
            buffer_store_dword v1, v2, s[8:11], 0 offen
            """)
        a.label(f'skipst_{a.uid}')
        a.uid += 1


def gen_prep():
    k = 'prep_kernel'
    a.begin(k)
    a(f'''
    s_cmp_ge_u32 s2, 1460
    s_cbranch_scc1 prep_done
    s_load_dwordx2 s[4:5], s[0:1], {A_K}
    s_load_dwordx2 s[6:7], s[0:1], {A_V}
    s_load_dwordx2 s[8:9], s[0:1], {A_SK}
    s_load_dwordx2 s[10:11], s[0:1], {B_WIN}
    s_load_dwordx2 s[12:13], s[0:1], {B_WOUT}
    s_load_dwordx2 s[14:15], s[0:1], {WS}
    v_lshrrev_b32 v1, 3, v0
    v_and_b32 v2, 7, v0
    s_waitcnt lgkmcnt(0)
    s_cmp_ge_u32 s2, 640
    s_cbranch_scc1 prep_tr
    ''')
    a(f'''
    s_mov_b32 s16, 429496730
    s_mul_hi_u32 s17, s2, s16
    s_mul_i32 s18, s17, 10
    s_sub_u32 s18, s2, s18
    s_lshl_b32 s19, s17, 5
    s_lshl_b32 s20, s18, 6
    ''')
    a.srd(24, 4, 2621440)
    a.srd(28, 6, 2621440)
    a.srd(32, 8, 5120)
    a.srd(36, 14, 2621440, KVR)
    a(f'''
    v_add_u32 v3, s19, v1
    v_mul_u32_u24 v3, 1280, v3
    v_lshlrev_b32 v4, 4, v2
    v_add_u32 v3, v3, v4
    s_lshl_b32 s21, s20, 1
    v_add_u32 v3, s21, v3
    v_subrev_u32 v5, 1280, v3
    v_subrev_u32 v6, 2560, v3
    v_subrev_u32 v7, 3840, v3
    buffer_load_dwordx4 v[8:11], v3, s[24:27], 0 offen
    buffer_load_dwordx4 v[12:15], v5, s[24:27], 0 offen
    buffer_load_dwordx4 v[16:19], v6, s[24:27], 0 offen
    buffer_load_dwordx4 v[20:23], v7, s[24:27], 0 offen
    buffer_load_dwordx4 v[24:27], v3, s[28:31], 0 offen
    v_lshlrev_b32 v4, 6, v2
    s_lshl_b32 s21, s20, 3
    v_add_u32 v4, s21, v4
    buffer_load_dwordx4 v[28:31], v4, s[32:35], 0 offen
    buffer_load_dwordx4 v[32:35], v4, s[32:35], 0 offen offset:16
    buffer_load_dwordx4 v[36:39], v4, s[32:35], 0 offen offset:32
    buffer_load_dwordx4 v[40:43], v4, s[32:35], 0 offen offset:48
    ''')
    a('''
    v_mul_u32_u24 v44, 640, v2
    v_sub_u32 v45, 31, v1
    v_lshlrev_b32 v45, 1, v45
    v_add_u32 v44, v44, v45
    s_waitcnt vmcnt(0)
    ''')
    for e in range(8):
        w = e // 2
        def g(dst, base):
            if e % 2 == 0:
                a(f'v_lshlrev_b32 v{dst}, 16, v{base+w}')
            else:
                a(f'v_and_b32 v{dst}, 0xffff0000, v{base+w}')
        g(50, 8); g(51, 12); g(52, 16); g(53, 20); g(54, 24)
        a.unpack(55, 56, 28 + 2*e)
        a.unpack(57, 58, 29 + 2*e)
        a(f'''
        v_mul_f32 v60, v53, v58
        v_mul_f32 v61, v52, v57
        ''')
        a.rnd2(60, 61, 62)
        a(f'''
        v_add_f32 v60, v60, v61
        v_mul_f32 v61, v51, v56
        ''')
        a.rnd2(60, 61, 62)
        a(f'''
        v_add_f32 v60, v60, v61
        v_mul_f32 v61, v50, v55
        ''')
        a.rnd2(60, 61, 62)
        a(f'''
        v_add_f32 v60, v60, v61
        v_cvt_pk_bf16_f32 v62, v60, v60
        v_lshlrev_b32 v60, 16, v62
        v_mul_f32 v60, v60, v54
        v_cvt_pk_bf16_f32 v62, v60, v60
        ds_write_b16 v44, v62 offset:{80*e}
        ''')
    a(f'''
    s_waitcnt lgkmcnt(0)
    s_barrier
    v_lshrrev_b32 v45, 2, v0
    v_and_b32 v46, 3, v0
    v_mul_u32_u24 v47, 80, v45
    v_lshlrev_b32 v48, 4, v46
    v_add_u32 v47, v47, v48
    ds_read_b128 v[8:11], v47
    v_add_u32 v45, s20, v45
    v_lshlrev_b32 v45, 12, v45
    s_sub_u32 s21, 2016, s19
    s_lshl_b32 s21, s21, 1
    v_add_u32 v45, s21, v45
    v_add_u32 v45, v45, v48
    s_waitcnt lgkmcnt(0)
    buffer_store_dwordx4 v[8:11], v45, s[36:39], 0 offen
    s_branch prep_done
    ''')
    a.label('prep_tr')
    a('''
    s_sub_u32 s16, s2, 640
    s_cmp_ge_u32 s16, 540
    s_cbranch_scc1 prep_tr2
    ''')
    a(f'''
    s_mov_b32 s17, 159072863
    s_mul_hi_u32 s18, s16, s17
    s_mul_i32 s19, s18, 27
    s_sub_u32 s19, s16, s19
    s_mov_b32 s20, 640
    s_mov_b32 s21, 1728
    ''')
    a.srd(24, 10, 2211840)
    a.srd(28, 14, 2211840, WINT)
    a('s_branch prep_tr3')
    a.label('prep_tr2')
    a(f'''
    s_sub_u32 s16, s16, 540
    s_mov_b32 s17, 429496730
    s_mul_hi_u32 s18, s16, s17
    s_mul_i32 s19, s18, 10
    s_sub_u32 s19, s16, s19
    s_mov_b32 s20, 896
    s_mov_b32 s21, 640
    ''')
    a.srd(24, 12, 1105920)
    a.srd(28, 14, 1146880, WOUTT)
    a.label('prep_tr3')
    a('''
    s_lshl_b32 s22, s18, 5
    s_lshl_b32 s23, s19, 6
    v_add_u32 v3, s22, v1
    v_mul_lo_u32 v3, v3, s21
    v_lshlrev_b32 v4, 3, v2
    v_add_u32 v3, v3, v4
    v_add_u32 v3, s23, v3
    v_lshlrev_b32 v3, 1, v3
    buffer_load_dwordx4 v[8:11], v3, s[24:27], 0 offen
    v_mul_u32_u24 v44, 640, v2
    v_lshlrev_b32 v45, 1, v1
    v_add_u32 v44, v44, v45
    s_waitcnt vmcnt(0)
    ''')
    for e in range(8):
        if e % 2 == 0:
            a(f'ds_write_b16 v44, v{8+e//2} offset:{80*e}')
        else:
            a(f'ds_write_b16_d16_hi v44, v{8+e//2} offset:{80*e}')
    a('''
    s_waitcnt lgkmcnt(0)
    s_barrier
    v_lshrrev_b32 v45, 2, v0
    v_and_b32 v46, 3, v0
    v_mul_u32_u24 v47, 80, v45
    v_lshlrev_b32 v48, 4, v46
    v_add_u32 v47, v47, v48
    ds_read_b128 v[8:11], v47
    v_add_u32 v45, s23, v45
    v_mul_lo_u32 v45, v45, s20
    v_add_u32 v45, s22, v45
    v_lshlrev_b32 v45, 1, v45
    v_add_u32 v45, v45, v48
    s_waitcnt lgkmcnt(0)
    buffer_store_dwordx4 v[8:11], v45, s[28:31], 0 offen
    ''')
    a.label('prep_done')
    a('s_endpgm')
    a.kernels.append((k, 64, 48, 64))

HP = 4384
NHC = 4
KV0 = NHC * HP
KVSZ = 9216 + 64
KV1 = KV0 + KVSZ
CONV_LDS = max(KV1 + KVSZ, 4*64*144)
def gen_conv():
    k = 'conv_kernel'
    a.begin(k)
    a(f"""
    s_cmp_ge_u32 s2, 640
    s_cbranch_scc1 conv_done
    """)
    stamp(0)
    a(f"""
    s_load_dwordx2 s[4:5], s[0:1], {A_SSMK}
    s_load_dwordx2 s[6:7], s[0:1], {A_D}
    s_load_dwordx2 s[14:15], s[0:1], {WS}
    s_lshl_b32 s16, s2, 12
    v_lshrrev_b32 v1, 6, v0
    s_nop 0
    v_readfirstlane_b32 s22, v1
    s_waitcnt lgkmcnt(0)
    s_add_u32 s4, s4, s16
    s_addc_u32 s5, s5, 0
    s_add_u32 s8, s14, s16
    s_addc_u32 s9, s15, 0
    """)
    a.srd(24, 4, 4096)
    a.srd(28, 8, 4096, KVR)
    a.srd(32, 8, 4096, YYT)
    a.srd(36, 6, 1280)
    a(f"""
    v_lshlrev_b32 v3, 4, v0
    v_subrev_u32 v4, 128, v3
    v_subrev_u32 v5, 112, v3
    buffer_load_dwordx4 v[8:11], v4, s[24:27], 0 offen
    buffer_load_dwordx4 v[12:15], v5, s[24:27], 0 offen
    v_add_u32 v6, 4096, v3
    v_subrev_u32 v4, 128, v6
    v_subrev_u32 v5, 112, v6
    buffer_load_dwordx4 v[16:19], v4, s[24:27], 0 offen
    buffer_load_dwordx4 v[20:23], v5, s[24:27], 0 offen
    v_subrev_u32 v4, 16, v3
    buffer_load_dwordx4 v[24:27], v4, s[28:31], 0 offen
    buffer_load_dwordx4 v[28:31], v3, s[28:31], 0 offen
    s_lshl_b32 s17, s2, 1
    v_mov_b32 v4, s17
    buffer_load_ushort v39, v4, s[36:39], 0 offen
    v_lshrrev_b32 v5, 3, v0
    v_lshlrev_b32 v5, 4, v5
    v_add_u32 v7, v3, v5
    v_mov_b32 v32, 0
    v_mov_b32 v33, 0
    v_mov_b32 v34, 0
    v_mov_b32 v35, 0
    ds_write_b128 v7, v[32:35] offset:{KV0+4608}
    v_cmp_ne_u32 vcc, 0, v0
    s_and_saveexec_b64 s[40:41], vcc
    ds_write_b128 v7, v[32:35] offset:{KV1+4608}
    s_mov_b64 exec, s[40:41]
    s_waitcnt vmcnt(5)
    """)
    def hcopies(base, addr):
        for ci, c in enumerate((1, 3, 5, 7)):
            j = (c - 1)//2
            o = 40 + 4*(ci & 1)
            for i in range(4):
                a(f'v_alignbit_b32 v{o+i}, v{base+j+i+1}, v{base+j+i}, 16')
            a(f'ds_write_b128 v{addr}, v[{o}:{o+3}] offset:{ci*HP}')
    hcopies(8, 3)
    a("""
    s_waitcnt vmcnt(3)
    v_cmp_gt_u32 vcc, 16, v0
    s_and_saveexec_b64 s[40:41], vcc
    """)
    hcopies(16, 6)
    a('s_mov_b64 exec, s[40:41]')
    a(f"""
    s_waitcnt vmcnt(0)
    ds_write_b128 v7, v[28:31] offset:{KV0}
    v_alignbit_b32 v40, v28, v27, 16
    v_alignbit_b32 v41, v29, v28, 16
    v_alignbit_b32 v42, v30, v29, 16
    v_alignbit_b32 v43, v31, v30, 16
    ds_write_b128 v7, v[40:43] offset:{KV1}
    v_lshrrev_b32 v44, 16, v31
    v_mov_b32 v45, 0
    v_mov_b32 v46, 0
    v_mov_b32 v47, 0
    v_cmp_eq_u32 vcc, 255, v0
    s_and_saveexec_b64 s[40:41], vcc
    v_mov_b32 v5, {KV1+4608}
    ds_write_b128 v5, v[44:47]
    s_mov_b64 exec, s[40:41]
    v_lshlrev_b32 v39, 16, v39
    """)
    a(f"""
    v_and_b32 v2, 63, v0
    v_and_b32 v3, 31, v2
    v_lshrrev_b32 v4, 5, v2
    s_mul_i32 s42, s22, 24
    s_cmp_eq_u32 s22, 3
    s_cselect_b32 s42, 76, s42
    s_lshl_b32 s43, s42, 5
    v_lshlrev_b32 v5, 1, v3
    v_add_u32 v5, 1, v5
    v_and_b32 v6, 7, v5
    v_lshrrev_b32 v6, 1, v6
    v_mul_u32_u24 v6, {HP}, v6
    v_and_b32 v5, 0x78, v5
    v_lshl_add_u32 v5, v4, 3, v5
    v_lshl_add_u32 v36, v5, 1, v6
    v_add_u32 v36, s43, v36
    """)
    a(f"""
    v_and_b32 v5, 15, v2
    v_bfe_u32 v6, v2, 4, 1
    v_mul_u32_u24 v6, {KVSZ}, v6
    v_mul_u32_u24 v5, 144, v5
    v_sub_u32 v5, {KV0 + 1984*2 + 31*16}, v5
    v_add_u32 v5, v5, v6
    v_lshl_add_u32 v5, v4, 4, v5
    s_lshr_b32 s44, s42, 2
    s_lshl_b32 s44, s44, 4
    s_add_u32 s44, s44, s43
    v_add_u32 v37, s44, v5
    v_subrev_u32 v38, {16*144}, v37
    """)
    for i in range(32):
        a(f'v_mov_b32 v{64+i}, 0')
    stamp(1)
    a("""
    s_waitcnt lgkmcnt(0)
    s_barrier
    """)
    stamp(2)
    a("""
    s_mov_b32 s45, 6
    s_cmp_eq_u32 s22, 2
    s_cselect_b32 s45, 5, s45
    s_cmp_eq_u32 s22, 3
    s_cselect_b32 s45, 0, s45
    s_mov_b32 s46, 0
    s_cmp_eq_u32 s22, 2
    s_cselect_b32 s46, 2, s46
    s_cmp_eq_u32 s22, 3
    s_cselect_b32 s46, 14, s46
    s_cmp_eq_u32 s45, 0
    s_cbranch_scc1 conv_lb
    """)
    a.label('conv_la')
    for st in range(4):
        b = 40 + 12*(st & 1)
        a(f"""
        ds_read_b128 v[{b}:{b+3}], v36 offset:{32*st}
        ds_read_b128 v[{b+4}:{b+7}], v37 offset:{32*st}
        ds_read_b128 v[{b+8}:{b+11}], v38 offset:{32*st}
        """)
        if st > 0:
            pb = 40 + 12*((st-1) & 1)
            a(f"""
            s_waitcnt lgkmcnt(3)
            v_mfma_f32_32x32x16_bf16 v[64:79], v[{pb}:{pb+3}], v[{pb+4}:{pb+7}], v[64:79]
            v_mfma_f32_32x32x16_bf16 v[80:95], v[{pb}:{pb+3}], v[{pb+8}:{pb+11}], v[80:95]
            """)
    a(f"""
    v_add_u32 v36, 128, v36
    v_add_u32 v37, 144, v37
    v_add_u32 v38, 144, v38
    s_waitcnt lgkmcnt(0)
    v_mfma_f32_32x32x16_bf16 v[64:79], v[52:55], v[56:59], v[64:79]
    v_mfma_f32_32x32x16_bf16 v[80:95], v[52:55], v[60:63], v[80:95]
    s_sub_u32 s45, s45, 1
    s_cmp_lg_u32 s45, 0
    s_cbranch_scc1 conv_la
    """)
    a.label('conv_lb')
    a("""
    s_cmp_eq_u32 s46, 0
    s_cbranch_scc1 conv_le
    """)
    a.label('conv_lb2')
    LB = (8, 16, 24, 40)
    for st in range(4):
        b = LB[st]
        a(f"""
        ds_read_b128 v[{b}:{b+3}], v36 offset:{32*st}
        ds_read_b128 v[{b+4}:{b+7}], v38 offset:{32*st}
        """)
    a("""
    v_add_u32 v36, 128, v36
    v_add_u32 v38, 144, v38
    """)
    for st in range(4):
        b = LB[st]
        a(f"""
        s_waitcnt lgkmcnt({6-2*st})
        v_mfma_f32_32x32x16_bf16 v[80:95], v[{b}:{b+3}], v[{b+4}:{b+7}], v[80:95]
        """)
    a("""
    s_sub_u32 s46, s46, 1
    s_cmp_lg_u32 s46, 0
    s_cbranch_scc1 conv_lb2
    """)
    a.label('conv_le')
    stamp(3)
    a(f"""
    v_sub_u32 v6, 255, v0
    v_lshrrev_b32 v7, 3, v6
    v_add_u32 v6, v6, v7
    v_lshlrev_b32 v6, 4, v6
    ds_read_b128 v[8:11], v6 offset:{KV0}
    s_waitcnt lgkmcnt(0)
    s_barrier
    s_nop 7
    s_mul_i32 s43, s22, 9216
    v_mul_u32_u24 v5, 144, v3
    v_lshl_add_u32 v5, v4, 4, v5
    v_add_u32 v5, s43, v5
    """)
    for T in range(2):
        for q in range(4):
            r = 64 + 16*T + 4*q
            a(f'ds_write_b128 v5, v[{r}:{r+3}] offset:{T*32*144 + q*32}')
    a(f"""
    v_lshrrev_b32 v5, 3, v0
    v_and_b32 v6, 15, v5
    v_lshrrev_b32 v7, 4, v5
    v_lshl_add_u32 v6, v7, 5, v6
    v_mul_u32_u24 v6, 144, v6
    v_and_b32 v7, 7, v0
    v_lshl_add_u32 v5, v7, 4, v6
    s_waitcnt lgkmcnt(0)
    s_barrier
    """)
    for w in range(4):
        for r in range(2):
            a(f'ds_read_b128 v[{40+8*w+4*r}:{43+8*w+4*r}], v5 offset:{w*9216 + r*16*144}')
    a('s_waitcnt lgkmcnt(0)')
    for r in range(2):
        for i in range(0, 4, 2):
            x = 40 + 4*r + i
            a(f"""
            v_pk_add_f32 v[{x}:{x+1}], v[{x}:{x+1}], v[{x+8}:{x+9}]
            v_pk_add_f32 v[{x+16}:{x+17}], v[{x+16}:{x+17}], v[{x+24}:{x+25}]
            v_pk_add_f32 v[{x}:{x+1}], v[{x}:{x+1}], v[{x+16}:{x+17}]
            """)
    for i in range(4):
        b0, b1 = 40 + i, 44 + i
        e = 2*i
        a.rnd2(b0, b1, 12)
        p0, p1 = 7 - e, 7 - (e+1)
        a(f"""
        v_and_b32 v13, 0xffff0000, v{8 + p0//2}
        v_lshlrev_b32 v14, 16, v{8 + p1//2}
        v_mul_f32 v13, v13, v39
        v_mul_f32 v14, v14, v39
        """)
        a.rnd2(13, 14, 12)
        a(f"""
        v_add_f32 v13, v13, v{b0}
        v_add_f32 v14, v14, v{b1}
        v_cvt_pk_bf16_f32 v{16+i}, v13, v14
        """)
    a("""
    v_lshlrev_b32 v3, 4, v0
    buffer_store_dwordx4 v[16:19], v3, s[32:35], 0 offen
    """)
    if STAMP:
        a('s_waitcnt vmcnt(0)')
    stamp(4)
    stamp_out(5)
    a.label('conv_done')
    a('s_endpgm')
    a.kernels.append((k, 96, 80, 96))

def ln_rows(vals, n_elems, outs, tmp, neps_s):
    t0, t1, t2, t3 = tmp, tmp+1, tmp+2, tmp+3
    a(f'v_mov_b32 v{t0}, v{vals[0]}')
    for v in vals[1:]:
        a(f'v_add_f32 v{t0}, v{t0}, v{v}')
    a.wave_sum(t0, t1, 50)
    a(f'''
    v_mov_b32 v{t0}, {1.0/n_elems!r}
    v_mul_f32 v{t2}, s50, v{t0}
    ''')
    a(f'v_sub_f32 v{t1}, v{vals[0]}, v{t2}')
    a(f'v_mul_f32 v{t0}, v{t1}, v{t1}')
    for v in vals[1:]:
        a(f'v_sub_f32 v{t1}, v{v}, v{t2}')
        a(f'v_fmac_f32 v{t0}, v{t1}, v{t1}')
    a.wave_sum(t0, t1, 51)
    a(f'''
    v_mov_b32 v{t0}, {1.0/n_elems!r}
    v_mul_f32 v{t3}, s51, v{t0}
    ''')
    a.rnd2(t2, t3, t0)
    a(f'''
    v_add_f32 v{t3}, 0x3727c5ac, v{t3}
    v_cvt_pk_bf16_f32 v{t0}, v{t3}, v{t3}
    v_lshlrev_b32 v{t3}, 16, v{t0}
    v_sqrt_f32 v{t3}, v{t3}
    s_nop 0
    v_cvt_pk_bf16_f32 v{t0}, v{t3}, v{t3}
    v_lshlrev_b32 v{t3}, 16, v{t0}
    v_rcp_f32 v{t1}, v{t3}
    s_nop 0
    ''')
    a(f'''
    v_fma_f32 v{t0}, -v{t3}, v{t1}, 2.0
    v_mul_f32 v{t1}, v{t1}, v{t0}
    ''')
    for i in range(0, len(vals), 2):
        o0, o1 = outs[i], outs[i+1]
        a(f'''
        v_sub_f32 v{o0}, v{vals[i]}, v{t2}
        v_sub_f32 v{o1}, v{vals[i+1]}, v{t2}
        ''')
        a.rnd2(o0, o1, t0)
        a(f'''
        v_mul_f32 v{tmp+4}, v{o0}, v{t1}
        v_mul_f32 v{tmp+5}, v{o1}, v{t1}
        v_fma_f32 v{t0}, -v{tmp+4}, v{t3}, v{o0}
        v_fma_f32 v{o0}, v{t0}, v{t1}, v{tmp+4}
        v_fma_f32 v{t0}, -v{tmp+5}, v{t3}, v{o1}
        v_fma_f32 v{o1}, v{t0}, v{t1}, v{tmp+5}
        ''')
        a.rnd2(o0, o1, t0)

def gen_row(k, xin_arg, xin_off, xout_off):
    a.begin(k)
    done = k + '_done'
    a(f'''
    s_cmp_ge_u32 s2, 256
    s_cbranch_scc1 {done}
    s_load_dwordx2 s[4:5], s[0:1], {xin_arg}
    s_load_dwordx2 s[14:15], s[0:1], {WS}
    s_waitcnt lgkmcnt(0)
    ''')
    a.srd(24, 4, 2621440, xin_off)
    a.srd(28, 14, 2621440, YYT)
    a.srd(32, 14, 2621440, xout_off)
    a.srd(36, 14, 2621440, HH)
    a('''
    v_lshrrev_b32 v1, 6, v0
    v_and_b32 v2, 63, v0
    ''')
    for rr in range(2):
        a(f'''
        s_lshl_b32 s17, s2, 3
        s_add_u32 s17, s17, {rr}
        v_lshlrev_b32 v3, 1, v1
        v_add_u32 v3, s17, v3
        v_mul_u32_u24 v3, 1280, v3
        v_lshlrev_b32 v4, 2, v2
        v_add_u32 v{74+rr}, v3, v4
        ''')
        for j in range(5):
            a(f'buffer_load_dword v{64+5*rr+j}, v{74+rr}, s[24:27], 0 offen offset:{256*j}')
    a('''
    s_lshl_b32 s16, s2, 4
    v_lshlrev_b32 v3, 12, v0
    v_add_u32 v3, s16, v3
    v_add_u32 v4, 0x100000, v3
    v_add_u32 v5, 0x200000, v3
    buffer_load_dwordx4 v[8:11], v3, s[28:31], 0 offen
    buffer_load_dwordx4 v[12:15], v4, s[28:31], 0 offen
    buffer_load_dwordx4 v[16:19], v5, s[28:31], 0 offen
    v_lshlrev_b32 v6, 4, v0
    s_waitcnt vmcnt(0)
    ds_write_b128 v6, v[8:11]
    ds_write_b128 v6, v[12:15] offset:4096
    ds_write_b128 v6, v[16:19] offset:8192
    s_waitcnt lgkmcnt(0)
    s_barrier
    ''')
    for rr in range(2):
        a(f'v_mov_b32 v3, v{74+rr}')
        for j in range(5):
            a(f'v_mov_b32 v{8+j}, v{64+5*rr+j}')
        a(f'''
        v_lshlrev_b32 v4, 5, v2
        v_lshlrev_b32 v5, 2, v1
        v_add_u32 v4, v4, v5
        ''')
        for j in range(5):
            a(f'ds_read_u16 v{40+2*j}, v4 offset:{2048*j + 2*rr}')
            a(f'ds_read_u16 v{41+2*j}, v4 offset:{2048*j + 16 + 2*rr}')
        a('s_waitcnt lgkmcnt(0)')
        xs = list(range(16, 26))
        for j in range(5):
            a.unpack(16+2*j, 17+2*j, 8+j)
        for j in range(10):
            a(f'v_lshlrev_b32 v{40+j}, 16, v{40+j}')
        qs = list(range(28, 38))
        ln_rows(xs, 640, qs, 56, None)
        for i in range(0, 10, 2):
            a(f'''
            v_mul_f32 v{qs[i]}, v{qs[i]}, v{40+i}
            v_mul_f32 v{qs[i+1]}, v{qs[i+1]}, v{41+i}
            ''')
            a.rnd2(qs[i], qs[i+1], 56)
            a(f'''
            v_add_f32 v{xs[i]}, v{xs[i]}, v{qs[i]}
            v_add_f32 v{xs[i+1]}, v{xs[i+1]}, v{qs[i+1]}
            ''')
            a.rnd2(xs[i], xs[i+1], 56)
            a(f'buffer_store_dword v56, v3, s[32:35], 0 offen offset:{256*(i//2)}')
            a('s_nop 1')
        ln_rows(xs, 640, qs, 56, None)
        for i in range(0, 10, 2):
            a(f'v_cvt_pk_bf16_f32 v{8+i//2}, v{qs[i]}, v{qs[i+1]}')
            a(f'buffer_store_dword v{8+i//2}, v3, s[36:39], 0 offen offset:{256*(i//2)}')
        a('s_nop 2')
    a.label(done)
    a('s_endpgm')
    a.kernels.append((k, 80, 56, 80))

def gen_lnz():
    k = 'lnz_kernel'
    a.begin(k)
    a(f'''
    s_cmp_ge_u32 s2, 256
    s_cbranch_scc1 lnz_done
    s_load_dwordx2 s[14:15], s[0:1], {WS}
    s_waitcnt lgkmcnt(0)
    ''')
    a.srd(24, 14, 7077888, ZZ)
    a.srd(28, 14, 3538944, Z2T)
    a('''
    v_lshrrev_b32 v1, 6, v0
    v_and_b32 v2, 63, v0
    ''')
    for rr in range(2):
        a(f'''
        s_lshl_b32 s17, s2, 3
        s_add_u32 s17, s17, {rr}
        v_lshlrev_b32 v3, 1, v1
        v_add_u32 v3, s17, v3
        v_mul_u32_u24 v3, 3456, v3
        v_lshlrev_b32 v4, 2, v2
        v_add_u32 v3, v3, v4
        v_mov_b32 v{64+7*rr+6}, 0
        ''')
        for j in range(6):
            a(f'buffer_load_dword v{64+7*rr+j}, v3, s[24:27], 0 offen offset:{1728 + 256*j}')
        a(f'''
        v_cmp_gt_u32 vcc, 48, v2
        s_and_saveexec_b64 s[40:41], vcc
        buffer_load_dword v{64+7*rr+6}, v3, s[24:27], 0 offen offset:{1728 + 256*6}
        s_mov_b64 exec, s[40:41]
        ''')
    a('s_waitcnt vmcnt(0)')
    for rr in range(2):
        for j in range(7):
            a(f'v_mov_b32 v{8+j}, v{64+7*rr+j}')
        xs = list(range(16, 30))
        for j in range(7):
            a.unpack(16+2*j, 17+2*j, 8+j)
        t0, t1, t2, t3 = 56, 57, 58, 59
        a(f'v_mov_b32 v{t0}, v16')
        for v in xs[1:]:
            a(f'v_add_f32 v{t0}, v{t0}, v{v}')
        a.wave_sum(t0, t1, 50)
        a(f'''
        v_mov_b32 v{t0}, {1.0/864!r}
        v_mul_f32 v{t2}, s50, v{t0}
        v_mov_b32 v{t0}, 0
        ''')
        for v in xs[:12]:
            a(f'v_sub_f32 v{t1}, v{v}, v{t2}')
            a(f'v_fmac_f32 v{t0}, v{t1}, v{t1}')
        a(f'''
        v_cmp_gt_u32 vcc, 48, v2
        v_sub_f32 v{t1}, v28, v{t2}
        v_mul_f32 v{t1}, v{t1}, v{t1}
        v_sub_f32 v{t3}, v29, v{t2}
        v_fmac_f32 v{t1}, v{t3}, v{t3}
        v_cndmask_b32 v{t1}, 0, v{t1}, vcc
        v_add_f32 v{t0}, v{t0}, v{t1}
        ''')
        a.wave_sum(t0, t1, 51)
        a(f'''
        v_mov_b32 v{t0}, {1.0/864!r}
        v_mul_f32 v{t3}, s51, v{t0}
        ''')
        a.rnd2(t2, t3, t0)
        a(f'''
        v_add_f32 v{t3}, 0x3727c5ac, v{t3}
        v_cvt_pk_bf16_f32 v{t0}, v{t3}, v{t3}
        v_lshlrev_b32 v{t3}, 16, v{t0}
        v_sqrt_f32 v{t3}, v{t3}
        s_nop 0
        v_cvt_pk_bf16_f32 v{t0}, v{t3}, v{t3}
        v_lshlrev_b32 v{t3}, 16, v{t0}
        v_rcp_f32 v{t1}, v{t3}
        s_nop 0
        v_fma_f32 v{t0}, -v{t3}, v{t1}, 2.0
        v_mul_f32 v{t1}, v{t1}, v{t0}
        ''')
        a(f'''
        v_lshlrev_b32 v4, 5, v2
        v_lshlrev_b32 v5, 2, v1
        v_add_u32 v4, v4, v5
        ''')
        for j in range(7):
            o0, o1 = 40, 41
            a(f'''
            v_sub_f32 v{o0}, v{xs[2*j]}, v{t2}
            v_sub_f32 v{o1}, v{xs[2*j+1]}, v{t2}
            ''')
            a.rnd2(o0, o1, t0)
            a(f'''
            v_mul_f32 v60, v{o0}, v{t1}
            v_mul_f32 v61, v{o1}, v{t1}
            v_fma_f32 v{t0}, -v60, v{t3}, v{o0}
            v_fma_f32 v{o0}, v{t0}, v{t1}, v60
            v_fma_f32 v{t0}, -v61, v{t3}, v{o1}
            v_fma_f32 v{o1}, v{t0}, v{t1}, v61
            v_cvt_pk_bf16_f32 v{42+j}, v{o0}, v{o1}
            ds_write_b16 v4, v{42+j} offset:{2048*j + 2*rr}
            ds_write_b16_d16_hi v4, v{42+j} offset:{2048*j + 16 + 2*rr}
            ''')
    a('''
    s_waitcnt lgkmcnt(0)
    s_barrier
    v_lshlrev_b32 v4, 4, v0
    ds_read_b128 v[8:11], v4
    ds_read_b128 v[12:15], v4 offset:4096
    ds_read_b128 v[16:19], v4 offset:8192
    ds_read_b128 v[20:23], v4 offset:12288
    s_lshl_b32 s16, s2, 4
    v_lshlrev_b32 v3, 12, v0
    v_add_u32 v3, s16, v3
    v_add_u32 v5, 0x100000, v3
    v_add_u32 v6, 0x200000, v3
    v_add_u32 v7, 0x300000, v3
    s_waitcnt lgkmcnt(0)
    buffer_store_dwordx4 v[8:11], v3, s[28:31], 0 offen
    buffer_store_dwordx4 v[12:15], v5, s[28:31], 0 offen
    buffer_store_dwordx4 v[16:19], v6, s[28:31], 0 offen
    buffer_store_dwordx4 v[20:23], v7, s[28:31], 0 offen
    ''')
    a.label('lnz_done')
    a('s_endpgm')
    a.kernels.append((k, 80, 56, 80))

def gen_gemm(k, WM, WN, BK, K, M, N, A_src, B_src, epi, D=4, GM=2, GN=4):
    BM, BN = GM*WM, GN*WN
    NT = 64*GM*GN
    TM, TN = WM//32, WN//32
    nmt, nnt = M//BM, -(-N//BN)
    rowb = 128
    nsteps = K//BK
    Abytes, Bbytes = BM*rowb, BN*rowb
    stage = Abytes + Bbytes
    PB = NT*16
    nla, nlb = Abytes//PB, Bbytes//PB
    nl = nla + nlb
    RPL = NT//8
    done = k + '_done'
    a.begin(k)
    a(f"""
    s_cmp_ge_u32 s2, {nmt*nnt}
    s_cbranch_scc1 {done}
    """)
    stamp(0)
    a(f"""
    s_load_dwordx2 s[4:5], s[0:1], {A_src[0]}
    s_load_dwordx2 s[6:7], s[0:1], {B_src[0]}
    s_load_dwordx2 s[14:15], s[0:1], {WS}
    s_load_dwordx2 s[10:11], s[0:1], {B_BSP}
    s_load_dwordx2 s[12:13], s[0:1], {OUT}
    s_and_b32 s16, s2, {nmt-1}
    s_lshr_b32 s17, s2, {nmt.bit_length()-1}
    s_mul_i32 s18, s16, {BM}
    s_mul_i32 s19, s17, {BN}
    v_lshrrev_b32 v1, 6, v0
    v_lshlrev_b32 v1, 10, v1
    s_nop 0
    v_readfirstlane_b32 s22, v1
    s_waitcnt lgkmcnt(0)
    """)
    a.srd(24, 4, M*K*2, A_src[1])
    a.srd(28, 6, N*K*2, B_src[1])
    a(f"""
    v_lshrrev_b32 v1, 3, v0
    v_and_b32 v2, 7, v0
    v_lshrrev_b32 v3, 1, v1
    v_and_b32 v3, 7, v3
    v_xor_b32 v2, v2, v3
    v_lshlrev_b32 v2, 4, v2
    v_add_u32 v3, s18, v1
    v_mul_u32_u24 v3, {K*2}, v3
    v_add_u32 v4, v3, v2
    v_add_u32 v3, s19, v1
    v_mul_u32_u24 v3, {K*2}, v3
    v_add_u32 v8, v3, v2
    """)
    for i in range(1, nla):
        a(f'v_add_u32 v{4+i}, {RPL*i*K*2}, v4')
    for i in range(1, nlb):
        a(f'v_add_u32 v{8+i}, {RPL*i*K*2}, v8')
    a(f"""
    v_lshrrev_b32 v1, 6, v0
    v_and_b32 v2, 63, v0
    v_and_b32 v3, 31, v2
    v_lshrrev_b32 v20, 5, v2
    v_and_b32 v21, {GM-1}, v1
    v_lshrrev_b32 v22, {GM.bit_length()-1}, v1
    """)
    nkk = 4
    AB, AR = 12, 24
    for (isB, wsel, W, R) in ((0, 21, WM, AB), (1, 22, WN, AB+4)):
        a(f"""
        v_mul_u32_u24 v23, {W}, v{wsel}
        v_add_u32 v23, v23, v3
        v_lshrrev_b32 v{R}, 1, v23
        v_and_b32 v{R}, 7, v{R}
        v_xor_b32 v{R}, v{R}, v20
        v_mul_u32_u24 v23, {rowb}, v23
        """)
        if isB:
            a(f'v_add_u32 v23, {Abytes}, v23')
        for kk in range(3, -1, -1):
            a(f"""
            v_xor_b32 v{R+kk}, {2*kk}, v{R}
            v_lshl_add_u32 v{R+kk}, v{R+kk}, 4, v23
            """)
    FA = 32
    FB = FA + 4*TM*2
    ACC = 64
    nacc = TM*TN*16
    EPR = ACC + nacc
    global G_EPR, G_BM, G_BN
    G_EPR = EPR
    global G_NT
    G_BM, G_BN = BM, BN
    G_NT = NT
    assert FB + 4*TN*2 <= ACC
    for i in range(nacc):
        a(f'v_mov_b32 v{ACC+i}, 0')
    a(f"""
    v_mul_u32_u24 v23, {WM}, v21
    v_add_u32 v23, v23, v3
    v_add_u32 v{EPR}, s18, v23
    v_mul_u32_u24 v23, {WN}, v22
    v_lshlrev_b32 v{EPR+1}, 2, v20
    v_add_u32 v23, v23, v{EPR+1}
    v_add_u32 v{EPR+1}, s19, v23
    """)
    epi(TM, TN, ACC, True)
    def gload():
        for i in range(nl):
            a(f's_add_u32 m0, s55, {i*PB}')
            a('s_nop 0')
            if i < nla:
                a(f'buffer_load_dwordx4 v{4+i}, s[24:27], s20 offen lds')
            else:
                a(f'buffer_load_dwordx4 v{8+i-nla}, s[28:31], s20 offen lds')
        a(f"""
        s_add_u32 s20, s20, {rowb}
        s_add_u32 s55, s55, {stage}
        s_cmp_lt_u32 s55, {D*stage}
        s_cselect_b32 s55, s55, s22
        """)
    lp, lm, lw, lnl = [a.newlabel(x) for x in ('gp', 'gm', 'gw', 'gn')]
    a(f"""
    s_mov_b32 s20, 0
    s_mov_b32 s55, s22
    s_mov_b32 s48, 0
    s_mov_b32 s49, 0
    """)
    stamp(1)
    a.label(lp)
    gload()
    a(f"""
    s_add_u32 s48, s48, 1
    s_cmp_lt_u32 s48, {D-1}
    s_cbranch_scc1 {lp}
    s_mov_b32 s48, 0
    """)
    stamp(2)
    a.label(lm)
    a(f"""
    s_cmp_lt_u32 s48, {nsteps-(D-2)}
    s_cbranch_scc1 {lw}
    s_waitcnt vmcnt(0)
    """)
    a.label(lw)
    a(f"""
    s_waitcnt vmcnt({nl*(D-2)})
    s_barrier
    """)
    for i in range(8):
        a(f'v_add_u32 v{AR+i}, s49, v{AB+i}')
    def rd(kk, s):
        for i in range(TM):
            f = FA + 4*(s*TM + i)
            a(f'ds_read_b128 v[{f}:{f+3}], v{AR+kk} offset:{i*32*rowb}')
        for i in range(TN):
            f = FB + 4*(s*TN + i)
            a(f'ds_read_b128 v[{f}:{f+3}], v{AR+4+kk} offset:{i*32*rowb}')
    rd(0, 0)
    a(f"""
    s_cmp_lt_u32 s48, {nsteps-(D-1)}
    s_cbranch_scc0 {lnl}
    """)
    lend = a.newlabel('gx')
    for withload in (True, False):
        if not withload:
            a.label(lnl)
        nm = 0
        li = 0
        tot = nkk*TM*TN
        for kk in range(nkk):
            s_ = kk & 1
            if kk + 1 < nkk:
                rd(kk+1, s_ ^ 1)
                a(f's_waitcnt lgkmcnt({TM+TN})')
            else:
                a('s_waitcnt lgkmcnt(0)')
            for i in range(TM):
                for j in range(TN):
                    fa = FA + 4*(s_*TM + i)
                    fb = FB + 4*(s_*TN + j)
                    c = ACC + 16*(i*TN + j)
                    a(f'v_mfma_f32_32x32x16_bf16 v[{c}:{c+15}], v[{fb}:{fb+3}], v[{fa}:{fa+3}], v[{c}:{c+15}]')
                    nm += 1
                    if withload:
                        while li < nl and li * tot < nm * nl:
                            a(f's_add_u32 m0, s55, {li*PB}')
                            a('s_nop 0')
                            if li < nla:
                                a(f'buffer_load_dwordx4 v{4+li}, s[24:27], s20 offen lds')
                            else:
                                a(f'buffer_load_dwordx4 v{8+li-nla}, s[28:31], s20 offen lds')
                            li += 1
        if withload:
            a(f"""
            s_add_u32 s20, s20, {rowb}
            s_add_u32 s55, s55, {stage}
            s_cmp_lt_u32 s55, {D*stage}
            s_cselect_b32 s55, s55, s22
            s_branch {lend}
            """)
    a.label(lend)
    a(f"""
    s_add_u32 s49, s49, {stage}
    s_cmp_lt_u32 s49, {D*stage}
    s_cselect_b32 s49, s49, 0
    s_add_u32 s48, s48, 1
    s_cmp_lt_u32 s48, {nsteps}
    s_cbranch_scc1 {lm}
    s_nop 7
    s_nop 7
    """)
    stamp(3)
    a('s_barrier')
    le = a.newlabel('ge')
    lg = TN.bit_length() - 1
    epi(TM, TN, ACC, 'setup')
    a('s_mov_b32 s48, 0')
    a.label(le)
    a(f"""
    s_lshl_b32 s56, s48, 2
    s_lshr_b32 s49, s48, {2+lg}
    s_lshl_b32 s49, s49, 5
    s_lshr_b32 s55, s48, 2
    s_and_b32 s55, s55, {TN-1}
    s_lshl_b32 s55, s55, 5
    s_and_b32 s20, s48, 3
    s_lshl_b32 s20, s20, 3
    s_add_u32 s55, s55, s20
    s_set_gpr_idx_on s56, gpr_idx(SRC0)
    v_mov_b32 v40, v{ACC}
    v_mov_b32 v41, v{ACC+1}
    v_mov_b32 v42, v{ACC+2}
    v_mov_b32 v43, v{ACC+3}
    s_set_gpr_idx_off
    v_add_u32 v4, s49, v{EPR}
    v_add_u32 v5, s55, v{EPR+1}
    """)
    epi(TM, TN, ACC, 'body')
    a(f"""
    s_add_u32 s48, s48, 1
    s_cmp_lt_u32 s48, {nacc//4}
    s_cbranch_scc1 {le}
    s_waitcnt lgkmcnt(0)
    s_barrier
    """)
    epi(TM, TN, ACC, 'out')
    a('s_waitcnt vmcnt(0)')
    stamp(4)
    stamp_out(5)
    a.label(done)
    a('s_endpgm')
    lds = D*stage
    a.kernels.append((k, EPR + 4 + 24, 80, EPR + 4 + 24))
    return nmt*nnt, lds, NT

def gelu_regs(x, t0, t1):
    a(f'''
    v_mul_f32 v{t0}, v{x}, v{x}
    v_mul_f32 v{t0}, v{t0}, v{x}
    v_fma_f32 v{t0}, v{t0}, s46, v{x}
    v_mul_f32 v{t0}, s47, v{t0}
    v_exp_f32 v{t0}, v{t0}
    s_nop 0
    v_add_f32 v{t0}, 1.0, v{t0}
    v_rcp_f32 v{t0}, v{t0}
    s_nop 0
    v_fma_f32 v{t0}, v{t0}, -2.0, 2.0
    v_mul_f32 v{t1}, 0.5, v{x}
    v_mul_f32 v{x}, v{t1}, v{t0}
    ''')

def tile_addr():
    pitch = G_BN*2 + 16
    a(f"""
    v_subrev_u32 v6, s18, v4
    v_mul_u32_u24 v6, {pitch}, v6
    v_subrev_u32 v7, s19, v5
    v_lshl_add_u32 v7, v7, 1, v6
    """)

def out_chunks(t=4):
    cpr = G_BN // 8
    n = G_BM*G_BN*2//16//G_NT
    pitch = G_BN*2 + 16
    sh = cpr.bit_length()-1
    for i in range(n):
        a(f"""
        v_add_u32 v{t+2}, {G_NT*i}, v0
        v_lshrrev_b32 v{t}, {sh}, v{t+2}
        v_and_b32 v{t+1}, {cpr-1}, v{t+2}
        v_lshlrev_b32 v{t+1}, 3, v{t+1}
        v_mul_u32_u24 v{t+3}, {pitch}, v{t}
        v_lshl_add_u32 v{t+3}, v{t+1}, 1, v{t+3}
        v_add_u32 v{t}, s18, v{t}
        v_add_u32 v{t+1}, s19, v{t+1}
        """)
        yield i

def epi_gemm1(TM, TN, ACC, pre):
    if pre is True:
        return
    if pre == 'setup':
        a.srd(32, 14, 7077888, ZZ)
        a("""
        v_mov_b32 v48, 0x3dd2d3e8
        v_mov_b32 v49, 0x3dd2d3e8
        v_mov_b32 v50, 0x40135761
        v_mov_b32 v51, 0x40135761
        v_mov_b32 v52, 1.0
        v_mov_b32 v53, 1.0
        """)
        return
    if pre == 'out':
        for i in out_chunks():
            r = 32 + 4*(i % 8)
            a(f"""
            ds_read_b128 v[{r}:{r+3}], v7
            v_mul_u32_u24 v6, 3456, v4
            v_cmp_gt_u32 vcc, 1728, v5
            v_lshl_add_u32 v6, v5, 1, v6
            s_nop 0
            v_cndmask_b32 v6, -1, v6, vcc
            s_waitcnt lgkmcnt(0)
            buffer_store_dwordx4 v[{r}:{r+3}], v6, s[32:35], 0 offen
            """)
        return
    a.rnd2(40, 41, 8)
    a.rnd2(42, 43, 9)
    a("""
    v_pk_mul_f32 v[44:45], v[40:41], v[40:41]
    v_pk_mul_f32 v[46:47], v[42:43], v[42:43]
    v_pk_fma_f32 v[44:45], v[44:45], v[48:49], v[50:51]
    v_pk_fma_f32 v[46:47], v[46:47], v[48:49], v[50:51]
    v_pk_mul_f32 v[44:45], v[44:45], v[40:41]
    v_pk_mul_f32 v[46:47], v[46:47], v[42:43]
    v_exp_f32 v44, v44
    v_exp_f32 v45, v45
    v_exp_f32 v46, v46
    v_exp_f32 v47, v47
    v_pk_add_f32 v[44:45], v[44:45], v[52:53]
    v_pk_add_f32 v[46:47], v[46:47], v[52:53]
    v_rcp_f32 v44, v44
    v_rcp_f32 v45, v45
    v_rcp_f32 v46, v46
    v_rcp_f32 v47, v47
    """)
    tile_addr()
    a("""
    v_pk_fma_f32 v[40:41], v[40:41], v[44:45], v[40:41] neg_lo:[1,0,0] neg_hi:[1,0,0]
    v_pk_fma_f32 v[42:43], v[42:43], v[46:47], v[42:43] neg_lo:[1,0,0] neg_hi:[1,0,0]
    v_cvt_pk_bf16_f32 v10, v40, v41
    v_cvt_pk_bf16_f32 v11, v42, v43
    ds_write_b64 v7, v[10:11]
    """)

def epi_gemm2(TM, TN, ACC, pre):
    E = G_EPR
    R, C = E, E+1
    Z = E + 2 + (E+2) % 4
    Z = ((E + 2 + 3)//4)*4
    BS = Z + 16
    if pre is True:
        a.srd(32, 14, 7077888, ZZ)
        a.srd(44, 10, 4096)
        for i in range(TM):
            a(f"""
            v_add_u32 v23, {32*i}, v{R}
            v_lshlrev_b32 v{BS+4}, 1, v23
            buffer_load_ushort v{BS+i}, v{BS+4}, s[44:47], 0 offen
            """)
        for i in out_chunks(40):
            a(f"""
            v_mul_u32_u24 v42, 3456, v40
            v_cmp_gt_u32 vcc, 864, v41
            v_lshl_add_u32 v42, v41, 1, v42
            s_nop 0
            v_cndmask_b32 v42, -1, v42, vcc
            buffer_load_dwordx4 v[{Z+4*i}:{Z+4*i+3}], v42, s[32:35], 0 offen
            """)
        return
    if pre == 'setup':
        a.srd(36, 14, 3670016, UU)
        for i in range(TM):
            a(f'v_lshlrev_b32 v{BS+i}, 16, v{BS+i}')
        return
    if pre == 'out':
        for i in out_chunks():
            a(f"""
            ds_read_b128 v[32:35], v7
            v_mul_u32_u24 v6, 1792, v4
            v_lshl_add_u32 v6, v5, 1, v6
            s_waitcnt lgkmcnt(0)
            """)
            for w in range(4):
                a.unpack(36, 37, 32+w)
                a.unpack(38, 39, Z+4*i+w)
                a(f"""
                v_mul_f32 v36, v36, v38
                v_mul_f32 v37, v37, v39
                v_cvt_pk_bf16_f32 v{Z+4*i+w}, v36, v37
                """)
            a(f'buffer_store_dwordx4 v[{Z+4*i}:{Z+4*i+3}], v6, s[36:39], 0 offen')
        return
    lg = TN.bit_length() - 1
    a(f"""
    s_lshr_b32 s56, s48, {2+lg}
    s_set_gpr_idx_on s56, gpr_idx(SRC0)
    v_mov_b32 v12, v{BS}
    s_set_gpr_idx_off
    """)
    tile_addr()
    a.rnd2(40, 41, 8)
    a.rnd2(42, 43, 9)
    for e in range(4):
        a(f'v_add_f32 v{40+e}, v{40+e}, v12')
    a("""
    v_cvt_pk_bf16_f32 v10, v40, v41
    v_cvt_pk_bf16_f32 v11, v42, v43
    ds_write_b64 v7, v[10:11]
    """)

def make_epi_gemm3(xin_off, out_ws_off):
    def epi(TM, TN, ACC, pre):
        E = G_EPR
        Z = ((E + 2 + 3)//4)*4
        if pre is True:
            a.srd(32, 14, 2621440, xin_off)
            for i in out_chunks(40):
                a(f"""
                v_mul_u32_u24 v42, 1280, v40
                v_lshl_add_u32 v42, v41, 1, v42
                buffer_load_dwordx4 v[{Z+4*i}:{Z+4*i+3}], v42, s[32:35], 0 offen
                """)
            return
        if pre == 'setup':
            if out_ws_off is None:
                a.srd(36, 12, 2621440)
            else:
                a.srd(36, 14, 2621440, out_ws_off)
            return
        if pre == 'out':
            for i in out_chunks():
                a(f"""
                ds_read_b128 v[32:35], v7
                v_mul_u32_u24 v6, 1280, v4
                v_lshl_add_u32 v6, v5, 1, v6
                s_waitcnt lgkmcnt(0)
                """)
                for w in range(4):
                    a.unpack(36, 37, 32+w)
                    a.unpack(38, 39, Z+4*i+w)
                    a(f"""
                    v_add_f32 v36, v36, v38
                    v_add_f32 v37, v37, v39
                    v_cvt_pk_bf16_f32 v{Z+4*i+w}, v36, v37
                    """)
                a(f'buffer_store_dwordx4 v[{Z+4*i}:{Z+4*i+3}], v6, s[36:39], 0 offen')
            return
        tile_addr()
        a("""
        v_cvt_pk_bf16_f32 v10, v40, v41
        v_cvt_pk_bf16_f32 v11, v42, v43
        ds_write_b64 v7, v[10:11]
        """)
    return epi

gen_prep()
gen_conv()
gen_row('rowa_kernel', A_Q, 0, X1)
gen_row('rowb_kernel', WS, X2, X3)
gen_lnz()
g1, l1, t1 = gen_gemm('gemm1_kernel', 64, 32, 64, 640, 2048, 1728, (WS, HH), (WS, WINT), epi_gemm1, D=4, GM=2, GN=4)
g2, l2, t2 = gen_gemm('gemm2_kernel', 32, 32, 64, 2048, 2048, 864, (B_WSP, 0), (WS, Z2T), epi_gemm2, D=4, GM=4, GN=2)
g3, l3, t3 = gen_gemm('gemm3a_kernel', 32, 32, 64, 896, 2048, 640, (WS, UU), (WS, WOUTT), make_epi_gemm3(X1, X2), D=4, GM=4, GN=2)
g3, l3, t3 = gen_gemm('gemm3b_kernel', 32, 32, 64, 896, 2048, 640, (WS, UU), (WS, WOUTT), make_epi_gemm3(X3, None), D=4, GM=4, GN=2)

launches = [
    ('prep_kernel', 1460, 5120, 256),
    ('conv_kernel', 640, CONV_LDS, 256),
    ('rowa_kernel', 256, 12288, 256),
    ('gemm1_kernel', g1, l1, t1),
    ('lnz_kernel', 256, 16384, 256),
    ('gemm2_kernel', g2, l2, t2),
    ('gemm3a_kernel', g3, l3, t3),
    ('rowb_kernel', 256, 12288, 256),
    ('gemm1_kernel', g1, l1, t1),
    ('lnz_kernel', 256, 16384, 256),
    ('gemm2_kernel', g2, l2, t2),
    ('gemm3b_kernel', g3, l3, t3),
]

ref = open('cdna_kernels/' + NAME + '.s.ref').read().split('\n')
head = [l for l in ref if l.startswith(';') and '@launch' not in l]
out = head[:]
for (k, g, lds, nt) in launches:
    out.append(f'; @launch kernel={k} grid=({g},1,1) block=({nt},1,1) lds={lds}')
out.append('.amdgcn_target "amdgcn-amd-amdhsa--gfx950"')
out.append('.text')
out += a.L
out.append('.section .rodata,"a"')
for (k, v, s, acc) in a.kernels:
    out.append('.p2align 6')
    out.append(f'.amdhsa_kernel {k}')
    out.append(f'  .amdhsa_next_free_vgpr {v}')
    out.append(f'  .amdhsa_next_free_sgpr {s}')
    out.append(f'  .amdhsa_accum_offset {((acc+3)//4)*4}')
    out.append('  .amdhsa_group_segment_fixed_size 0')
    out.append('  .amdhsa_kernarg_size 112')
    out.append('  .amdhsa_user_sgpr_count 2')
    out.append('  .amdhsa_user_sgpr_kernarg_segment_ptr 1')
    out.append('  .amdhsa_system_sgpr_workgroup_id_x 1')
    out.append('.end_amdhsa_kernel')
open('stamp.s' if STAMP else 'cdna_kernels/' + NAME + '.s', 'w').write('\n'.join(out) + '\n')
print('ok', len(out), 'lines', g1, l1, g2, l2, g3, l3)
```

```python
NAME = "interleave_layers__ssm_conv_h3__mixer_gmlp__prompt"

KVR = 0x0
YYT = 0x300000
WINT = 0x600000
WOUTT = 0x900000
X1 = 0xB00000
X2 = 0xE00000
X3 = 0x1100000
HH = 0x1400000
ZZ = 0x1700000
Z2T = 0x1E00000
UU = 0x2200000

A_Q, A_K, A_V, A_SK, A_SSMK, A_D, B_X, B_WIN, B_WSP, B_BSP, B_WOUT, OUT, DBG, WS = [8*i for i in range(14)]

class Asm:
    def __init__(self):
        self.L = []
        self.kernels = []
        self.launches = []
        self.uid = 0
    def __call__(self, s):
        for line in s.strip().split('\n'):
            self.L.append('    ' + line.strip())
    def label(self, l):
        self.L.append(l + ':')
    def newlabel(self, p='L'):
        self.uid += 1
        return f'{p}_{self.uid}'
    def begin(self, label):
        self.L.append('.globl ' + label)
        self.L.append('.p2align 8')
        self.L.append(f'.type {label},@function')
        self.label(label)
    def srd(self, d, p, nbytes, off=0):
        if off:
            self(f's_add_u32 s{d}, s{p}, {off}')
            self(f's_addc_u32 s{d+1}, s{p+1}, 0')
        else:
            self(f's_mov_b32 s{d}, s{p}')
            self(f's_mov_b32 s{d+1}, s{p+1}')
        self(f's_mov_b32 s{d+2}, {nbytes}')
        self(f's_mov_b32 s{d+3}, 0x00020000')
    def rnd2(self, a, b, t):
        self(f'v_cvt_pk_bf16_f32 v{t}, v{a}, v{b}')
        self(f'v_lshlrev_b32 v{a}, 16, v{t}')
        self(f'v_and_b32 v{b}, 0xffff0000, v{t}')
    def unpack(self, lo, hi, src):
        self(f'v_lshlrev_b32 v{lo}, 16, v{src}')
        self(f'v_and_b32 v{hi}, 0xffff0000, v{src}')
    def wave_sum(self, v, t, sdst):
        self('s_nop 1')
        self(f'v_add_f32_dpp v{t}, v{v}, v{v} quad_perm:[1,0,3,2] row_mask:0xf bank_mask:0xf')
        self('s_nop 1')
        self(f'v_add_f32_dpp v{v}, v{t}, v{t} quad_perm:[2,3,0,1] row_mask:0xf bank_mask:0xf')
        self('s_nop 1')
        self(f'v_add_f32_dpp v{t}, v{v}, v{v} row_half_mirror row_mask:0xf bank_mask:0xf')
        self('s_nop 1')
        self(f'v_add_f32_dpp v{v}, v{t}, v{t} row_mirror row_mask:0xf bank_mask:0xf')
        self('s_nop 0')
        self(f'v_readlane_b32 s52, v{v}, 16')
        self(f'v_readlane_b32 s53, v{v}, 32')
        self(f'v_readlane_b32 s54, v{v}, 48')
        self('s_nop 1')
        self(f'v_add_f32 v{v}, s52, v{v}')
        self(f'v_add_f32 v{v}, s53, v{v}')
        self(f'v_add_f32 v{v}, s54, v{v}')
        self('s_nop 0')
        self(f'v_readlane_b32 s{sdst}, v{v}, 0')
        self('s_nop 1')

a = Asm()
import os
STAMP = os.environ.get('STAMP') == '1'
def stamp(i):
    if STAMP:
        a(f's_memtime s[{60+2*i}:{61+2*i}]')
def stamp_out(n):
    if STAMP:
        a(f"""
        s_load_dwordx2 s[4:5], s[0:1], {DBG}
        s_waitcnt lgkmcnt(0)
        s_cmp_lg_u32 s2, 5
        s_cbranch_scc1 skipst_{a.uid}
        """)
        a.srd(8, 4, 256)
        for i in range(n):
            a(f"""
            v_mov_b32 v1, s{60+2*i}
            v_mov_b32 v2, {4*i}
            buffer_store_dword v1, v2, s[8:11], 0 offen
            """)
        a.label(f'skipst_{a.uid}')
        a.uid += 1


def gen_prep():
    k = 'prep_kernel'
    a.begin(k)
    a(f'''
    s_cmp_ge_u32 s2, 1460
    s_cbranch_scc1 prep_done
    s_load_dwordx2 s[4:5], s[0:1], {A_K}
    s_load_dwordx2 s[6:7], s[0:1], {A_V}
    s_load_dwordx2 s[8:9], s[0:1], {A_SK}
    s_load_dwordx2 s[10:11], s[0:1], {B_WIN}
    s_load_dwordx2 s[12:13], s[0:1], {B_WOUT}
    s_load_dwordx2 s[14:15], s[0:1], {WS}
    v_lshrrev_b32 v1, 3, v0
    v_and_b32 v2, 7, v0
    s_waitcnt lgkmcnt(0)
    s_cmp_ge_u32 s2, 640
    s_cbranch_scc1 prep_tr
    ''')
    a(f'''
    s_mov_b32 s16, 429496730
    s_mul_hi_u32 s17, s2, s16
    s_mul_i32 s18, s17, 10
    s_sub_u32 s18, s2, s18
    s_lshl_b32 s19, s17, 5
    s_lshl_b32 s20, s18, 6
    ''')
    a.srd(24, 4, 2621440)
    a.srd(28, 6, 2621440)
    a.srd(32, 8, 5120)
    a.srd(36, 14, 2621440, KVR)
    a(f'''
    v_add_u32 v3, s19, v1
    v_mul_u32_u24 v3, 1280, v3
    v_lshlrev_b32 v4, 4, v2
    v_add_u32 v3, v3, v4
    s_lshl_b32 s21, s20, 1
    v_add_u32 v3, s21, v3
    v_subrev_u32 v5, 1280, v3
    v_subrev_u32 v6, 2560, v3
    v_subrev_u32 v7, 3840, v3
    buffer_load_dwordx4 v[8:11], v3, s[24:27], 0 offen
    buffer_load_dwordx4 v[12:15], v5, s[24:27], 0 offen
    buffer_load_dwordx4 v[16:19], v6, s[24:27], 0 offen
    buffer_load_dwordx4 v[20:23], v7, s[24:27], 0 offen
    buffer_load_dwordx4 v[24:27], v3, s[28:31], 0 offen
    v_lshlrev_b32 v4, 6, v2
    s_lshl_b32 s21, s20, 3
    v_add_u32 v4, s21, v4
    buffer_load_dwordx4 v[28:31], v4, s[32:35], 0 offen
    buffer_load_dwordx4 v[32:35], v4, s[32:35], 0 offen offset:16
    buffer_load_dwordx4 v[36:39], v4, s[32:35], 0 offen offset:32
    buffer_load_dwordx4 v[40:43], v4, s[32:35], 0 offen offset:48
    ''')
    a('''
    v_mul_u32_u24 v44, 640, v2
    v_sub_u32 v45, 31, v1
    v_lshlrev_b32 v45, 1, v45
    v_add_u32 v44, v44, v45
    s_waitcnt vmcnt(0)
    ''')
    for e in range(8):
        w = e // 2
        def g(dst, base):
            if e % 2 == 0:
                a(f'v_lshlrev_b32 v{dst}, 16, v{base+w}')
            else:
                a(f'v_and_b32 v{dst}, 0xffff0000, v{base+w}')
        g(50, 8); g(51, 12); g(52, 16); g(53, 20); g(54, 24)
        a.unpack(55, 56, 28 + 2*e)
        a.unpack(57, 58, 29 + 2*e)
        a(f'''
        v_mul_f32 v60, v53, v58
        v_mul_f32 v61, v52, v57
        ''')
        a.rnd2(60, 61, 62)
        a(f'''
        v_add_f32 v60, v60, v61
        v_mul_f32 v61, v51, v56
        ''')
        a.rnd2(60, 61, 62)
        a(f'''
        v_add_f32 v60, v60, v61
        v_mul_f32 v61, v50, v55
        ''')
        a.rnd2(60, 61, 62)
        a(f'''
        v_add_f32 v60, v60, v61
        v_cvt_pk_bf16_f32 v62, v60, v60
        v_lshlrev_b32 v60, 16, v62
        v_mul_f32 v60, v60, v54
        v_cvt_pk_bf16_f32 v62, v60, v60
        ds_write_b16 v44, v62 offset:{80*e}
        ''')
    a(f'''
    s_waitcnt lgkmcnt(0)
    s_barrier
    v_lshrrev_b32 v45, 2, v0
    v_and_b32 v46, 3, v0
    v_mul_u32_u24 v47, 80, v45
    v_lshlrev_b32 v48, 4, v46
    v_add_u32 v47, v47, v48
    ds_read_b128 v[8:11], v47
    v_add_u32 v45, s20, v45
    v_lshlrev_b32 v45, 12, v45
    s_sub_u32 s21, 2016, s19
    s_lshl_b32 s21, s21, 1
    v_add_u32 v45, s21, v45
    v_add_u32 v45, v45, v48
    s_waitcnt lgkmcnt(0)
    buffer_store_dwordx4 v[8:11], v45, s[36:39], 0 offen
    s_branch prep_done
    ''')
    a.label('prep_tr')
    a('''
    s_sub_u32 s16, s2, 640
    s_cmp_ge_u32 s16, 540
    s_cbranch_scc1 prep_tr2
    ''')
    a(f'''
    s_mov_b32 s17, 159072863
    s_mul_hi_u32 s18, s16, s17
    s_mul_i32 s19, s18, 27
    s_sub_u32 s19, s16, s19
    s_mov_b32 s20, 640
    s_mov_b32 s21, 1728
    ''')
    a.srd(24, 10, 2211840)
    a.srd(28, 14, 2211840, WINT)
    a('s_branch prep_tr3')
    a.label('prep_tr2')
    a(f'''
    s_sub_u32 s16, s16, 540
    s_mov_b32 s17, 429496730
    s_mul_hi_u32 s18, s16, s17
    s_mul_i32 s19, s18, 10
    s_sub_u32 s19, s16, s19
    s_mov_b32 s20, 896
    s_mov_b32 s21, 640
    ''')
    a.srd(24, 12, 1105920)
    a.srd(28, 14, 1146880, WOUTT)
    a.label('prep_tr3')
    a('''
    s_lshl_b32 s22, s18, 5
    s_lshl_b32 s23, s19, 6
    v_add_u32 v3, s22, v1
    v_mul_lo_u32 v3, v3, s21
    v_lshlrev_b32 v4, 3, v2
    v_add_u32 v3, v3, v4
    v_add_u32 v3, s23, v3
    v_lshlrev_b32 v3, 1, v3
    buffer_load_dwordx4 v[8:11], v3, s[24:27], 0 offen
    v_mul_u32_u24 v44, 640, v2
    v_lshlrev_b32 v45, 1, v1
    v_add_u32 v44, v44, v45
    s_waitcnt vmcnt(0)
    ''')
    for e in range(8):
        if e % 2 == 0:
            a(f'ds_write_b16 v44, v{8+e//2} offset:{80*e}')
        else:
            a(f'ds_write_b16_d16_hi v44, v{8+e//2} offset:{80*e}')
    a('''
    s_waitcnt lgkmcnt(0)
    s_barrier
    v_lshrrev_b32 v45, 2, v0
    v_and_b32 v46, 3, v0
    v_mul_u32_u24 v47, 80, v45
    v_lshlrev_b32 v48, 4, v46
    v_add_u32 v47, v47, v48
    ds_read_b128 v[8:11], v47
    v_add_u32 v45, s23, v45
    v_mul_lo_u32 v45, v45, s20
    v_add_u32 v45, s22, v45
    v_lshlrev_b32 v45, 1, v45
    v_add_u32 v45, v45, v48
    s_waitcnt lgkmcnt(0)
    buffer_store_dwordx4 v[8:11], v45, s[28:31], 0 offen
    ''')
    a.label('prep_done')
    a('s_endpgm')
    a.kernels.append((k, 64, 48, 64))

HP = 4384
NHC = 4
KV0 = NHC * HP
KVSZ = 9216 + 64
KV1 = KV0 + KVSZ
CONV_LDS = max(KV1 + KVSZ, 4*64*144)
def gen_conv():
    k = 'conv_kernel'
    a.begin(k)
    a(f"""
    s_cmp_ge_u32 s2, 640
    s_cbranch_scc1 conv_done
    """)
    stamp(0)
    a(f"""
    s_load_dwordx2 s[4:5], s[0:1], {A_SSMK}
    s_load_dwordx2 s[6:7], s[0:1], {A_D}
    s_load_dwordx2 s[14:15], s[0:1], {WS}
    s_lshl_b32 s16, s2, 12
    v_lshrrev_b32 v1, 6, v0
    s_nop 0
    v_readfirstlane_b32 s22, v1
    s_waitcnt lgkmcnt(0)
    s_add_u32 s4, s4, s16
    s_addc_u32 s5, s5, 0
    s_add_u32 s8, s14, s16
    s_addc_u32 s9, s15, 0
    """)
    a.srd(24, 4, 4096)
    a.srd(28, 8, 4096, KVR)
    a.srd(32, 8, 4096, YYT)
    a.srd(36, 6, 1280)
    a(f"""
    v_lshlrev_b32 v3, 4, v0
    v_subrev_u32 v4, 128, v3
    v_subrev_u32 v5, 112, v3
    buffer_load_dwordx4 v[8:11], v4, s[24:27], 0 offen
    buffer_load_dwordx4 v[12:15], v5, s[24:27], 0 offen
    v_add_u32 v6, 4096, v3
    v_subrev_u32 v4, 128, v6
    v_subrev_u32 v5, 112, v6
    buffer_load_dwordx4 v[16:19], v4, s[24:27], 0 offen
    buffer_load_dwordx4 v[20:23], v5, s[24:27], 0 offen
    v_subrev_u32 v4, 16, v3
    buffer_load_dwordx4 v[24:27], v4, s[28:31], 0 offen
    buffer_load_dwordx4 v[28:31], v3, s[28:31], 0 offen
    s_lshl_b32 s17, s2, 1
    v_mov_b32 v4, s17
    buffer_load_ushort v39, v4, s[36:39], 0 offen
    v_lshrrev_b32 v5, 3, v0
    v_lshlrev_b32 v5, 4, v5
    v_add_u32 v7, v3, v5
    v_mov_b32 v32, 0
    v_mov_b32 v33, 0
    v_mov_b32 v34, 0
    v_mov_b32 v35, 0
    ds_write_b128 v7, v[32:35] offset:{KV0+4608}
    v_cmp_ne_u32 vcc, 0, v0
    s_and_saveexec_b64 s[40:41], vcc
    ds_write_b128 v7, v[32:35] offset:{KV1+4608}
    s_mov_b64 exec, s[40:41]
    s_waitcnt vmcnt(5)
    """)
    def hcopies(base, addr):
        for ci, c in enumerate((1, 3, 5, 7)):
            j = (c - 1)//2
            o = 40 + 4*(ci & 1)
            for i in range(4):
                a(f'v_alignbit_b32 v{o+i}, v{base+j+i+1}, v{base+j+i}, 16')
            a(f'ds_write_b128 v{addr}, v[{o}:{o+3}] offset:{ci*HP}')
    hcopies(8, 3)
    a("""
    s_waitcnt vmcnt(3)
    v_cmp_gt_u32 vcc, 16, v0
    s_and_saveexec_b64 s[40:41], vcc
    """)
    hcopies(16, 6)
    a('s_mov_b64 exec, s[40:41]')
    a(f"""
    s_waitcnt vmcnt(0)
    ds_write_b128 v7, v[28:31] offset:{KV0}
    v_alignbit_b32 v40, v28, v27, 16
    v_alignbit_b32 v41, v29, v28, 16
    v_alignbit_b32 v42, v30, v29, 16
    v_alignbit_b32 v43, v31, v30, 16
    ds_write_b128 v7, v[40:43] offset:{KV1}
    v_lshrrev_b32 v44, 16, v31
    v_mov_b32 v45, 0
    v_mov_b32 v46, 0
    v_mov_b32 v47, 0
    v_cmp_eq_u32 vcc, 255, v0
    s_and_saveexec_b64 s[40:41], vcc
    v_mov_b32 v5, {KV1+4608}
    ds_write_b128 v5, v[44:47]
    s_mov_b64 exec, s[40:41]
    v_lshlrev_b32 v39, 16, v39
    """)
    a(f"""
    v_and_b32 v2, 63, v0
    v_and_b32 v3, 31, v2
    v_lshrrev_b32 v4, 5, v2
    s_mul_i32 s42, s22, 24
    s_cmp_eq_u32 s22, 3
    s_cselect_b32 s42, 76, s42
    s_lshl_b32 s43, s42, 5
    v_lshlrev_b32 v5, 1, v3
    v_add_u32 v5, 1, v5
    v_and_b32 v6, 7, v5
    v_lshrrev_b32 v6, 1, v6
    v_mul_u32_u24 v6, {HP}, v6
    v_and_b32 v5, 0x78, v5
    v_lshl_add_u32 v5, v4, 3, v5
    v_lshl_add_u32 v36, v5, 1, v6
    v_add_u32 v36, s43, v36
    """)
    a(f"""
    v_and_b32 v5, 15, v2
    v_bfe_u32 v6, v2, 4, 1
    v_mul_u32_u24 v6, {KVSZ}, v6
    v_mul_u32_u24 v5, 144, v5
    v_sub_u32 v5, {KV0 + 1984*2 + 31*16}, v5
    v_add_u32 v5, v5, v6
    v_lshl_add_u32 v5, v4, 4, v5
    s_lshr_b32 s44, s42, 2
    s_lshl_b32 s44, s44, 4
    s_add_u32 s44, s44, s43
    v_add_u32 v37, s44, v5
    v_subrev_u32 v38, {16*144}, v37
    """)
    for i in range(32):
        a(f'v_mov_b32 v{64+i}, 0')
    stamp(1)
    a("""
    s_waitcnt lgkmcnt(0)
    s_barrier
    """)
    stamp(2)
    a("""
    s_mov_b32 s45, 6
    s_cmp_eq_u32 s22, 2
    s_cselect_b32 s45, 5, s45
    s_cmp_eq_u32 s22, 3
    s_cselect_b32 s45, 0, s45
    s_mov_b32 s46, 0
    s_cmp_eq_u32 s22, 2
    s_cselect_b32 s46, 2, s46
    s_cmp_eq_u32 s22, 3
    s_cselect_b32 s46, 14, s46
    s_cmp_eq_u32 s45, 0
    s_cbranch_scc1 conv_lb
    """)
    a.label('conv_la')
    for st in range(4):
        b = 40 + 12*(st & 1)
        a(f"""
        ds_read_b128 v[{b}:{b+3}], v36 offset:{32*st}
        ds_read_b128 v[{b+4}:{b+7}], v37 offset:{32*st}
        ds_read_b128 v[{b+8}:{b+11}], v38 offset:{32*st}
        """)
        if st > 0:
            pb = 40 + 12*((st-1) & 1)
            a(f"""
            s_waitcnt lgkmcnt(3)
            v_mfma_f32_32x32x16_bf16 v[64:79], v[{pb}:{pb+3}], v[{pb+4}:{pb+7}], v[64:79]
            v_mfma_f32_32x32x16_bf16 v[80:95], v[{pb}:{pb+3}], v[{pb+8}:{pb+11}], v[80:95]
            """)
    a(f"""
    v_add_u32 v36, 128, v36
    v_add_u32 v37, 144, v37
    v_add_u32 v38, 144, v38
    s_waitcnt lgkmcnt(0)
    v_mfma_f32_32x32x16_bf16 v[64:79], v[52:55], v[56:59], v[64:79]
    v_mfma_f32_32x32x16_bf16 v[80:95], v[52:55], v[60:63], v[80:95]
    s_sub_u32 s45, s45, 1
    s_cmp_lg_u32 s45, 0
    s_cbranch_scc1 conv_la
    """)
    a.label('conv_lb')
    a("""
    s_cmp_eq_u32 s46, 0
    s_cbranch_scc1 conv_le
    """)
    a.label('conv_lb2')
    LB = (8, 16, 24, 40)
    for st in range(4):
        b = LB[st]
        a(f"""
        ds_read_b128 v[{b}:{b+3}], v36 offset:{32*st}
        ds_read_b128 v[{b+4}:{b+7}], v38 offset:{32*st}
        """)
    a("""
    v_add_u32 v36, 128, v36
    v_add_u32 v38, 144, v38
    """)
    for st in range(4):
        b = LB[st]
        a(f"""
        s_waitcnt lgkmcnt({6-2*st})
        v_mfma_f32_32x32x16_bf16 v[80:95], v[{b}:{b+3}], v[{b+4}:{b+7}], v[80:95]
        """)
    a("""
    s_sub_u32 s46, s46, 1
    s_cmp_lg_u32 s46, 0
    s_cbranch_scc1 conv_lb2
    """)
    a.label('conv_le')
    stamp(3)
    a(f"""
    v_sub_u32 v6, 255, v0
    v_lshrrev_b32 v7, 3, v6
    v_add_u32 v6, v6, v7
    v_lshlrev_b32 v6, 4, v6
    ds_read_b128 v[8:11], v6 offset:{KV0}
    s_waitcnt lgkmcnt(0)
    s_barrier
    s_nop 7
    s_mul_i32 s43, s22, 9216
    v_mul_u32_u24 v5, 144, v3
    v_lshl_add_u32 v5, v4, 4, v5
    v_add_u32 v5, s43, v5
    """)
    for T in range(2):
        for q in range(4):
            r = 64 + 16*T + 4*q
            a(f'ds_write_b128 v5, v[{r}:{r+3}] offset:{T*32*144 + q*32}')
    a(f"""
    v_lshrrev_b32 v5, 3, v0
    v_and_b32 v6, 15, v5
    v_lshrrev_b32 v7, 4, v5
    v_lshl_add_u32 v6, v7, 5, v6
    v_mul_u32_u24 v6, 144, v6
    v_and_b32 v7, 7, v0
    v_lshl_add_u32 v5, v7, 4, v6
    s_waitcnt lgkmcnt(0)
    s_barrier
    """)
    for w in range(4):
        for r in range(2):
            a(f'ds_read_b128 v[{40+8*w+4*r}:{43+8*w+4*r}], v5 offset:{w*9216 + r*16*144}')
    a('s_waitcnt lgkmcnt(0)')
    for r in range(2):
        for i in range(0, 4, 2):
            x = 40 + 4*r + i
            a(f"""
            v_pk_add_f32 v[{x}:{x+1}], v[{x}:{x+1}], v[{x+8}:{x+9}]
            v_pk_add_f32 v[{x+16}:{x+17}], v[{x+16}:{x+17}], v[{x+24}:{x+25}]
            v_pk_add_f32 v[{x}:{x+1}], v[{x}:{x+1}], v[{x+16}:{x+17}]
            """)
    for i in range(4):
        b0, b1 = 40 + i, 44 + i
        e = 2*i
        a.rnd2(b0, b1, 12)
        p0, p1 = 7 - e, 7 - (e+1)
        a(f"""
        v_and_b32 v13, 0xffff0000, v{8 + p0//2}
        v_lshlrev_b32 v14, 16, v{8 + p1//2}
        v_mul_f32 v13, v13, v39
        v_mul_f32 v14, v14, v39
        """)
        a.rnd2(13, 14, 12)
        a(f"""
        v_add_f32 v13, v13, v{b0}
        v_add_f32 v14, v14, v{b1}
        v_cvt_pk_bf16_f32 v{16+i}, v13, v14
        """)
    a("""
    v_lshlrev_b32 v3, 4, v0
    buffer_store_dwordx4 v[16:19], v3, s[32:35], 0 offen
    """)
    if STAMP:
        a('s_waitcnt vmcnt(0)')
    stamp(4)
    stamp_out(5)
    a.label('conv_done')
    a('s_endpgm')
    a.kernels.append((k, 96, 80, 96))

def ln_pk(X, npair, n_elems, Q, T, mask_last=False):
    a(f'v_pk_add_f32 v[{T}:{T+1}], v[{X}:{X+1}], v[{X+2}:{X+3}]')
    for i in range(2, npair):
        a(f'v_pk_add_f32 v[{T}:{T+1}], v[{T}:{T+1}], v[{X+2*i}:{X+2*i+1}]')
    a(f'v_add_f32 v{T}, v{T}, v{T+1}')
    a.wave_sum(T, T+1, 50)
    a(f"""
    v_mov_b32 v{T}, {1.0/n_elems!r}
    v_mul_f32 v{T+2}, s50, v{T}
    v_mul_f32 v{T+3}, s50, v{T}
    v_mov_b32 v{T+4}, 0
    v_mov_b32 v{T+5}, 0
    """)
    for i in range(npair):
        a(f'v_pk_add_f32 v[{T}:{T+1}], v[{X+2*i}:{X+2*i+1}], v[{T+2}:{T+3}] neg_lo:[0,1] neg_hi:[0,1]')
        if mask_last and i == npair-1:
            a(f"""
            v_cndmask_b32 v{T}, 0, v{T}, s[58:59]
            v_cndmask_b32 v{T+1}, 0, v{T+1}, s[58:59]
            """)
        a(f'v_pk_fma_f32 v[{T+4}:{T+5}], v[{T}:{T+1}], v[{T}:{T+1}], v[{T+4}:{T+5}]')
    a(f'v_add_f32 v{T}, v{T+4}, v{T+5}')
    a.wave_sum(T, T+1, 51)
    a(f"""
    v_mov_b32 v{T}, {1.0/n_elems!r}
    v_mul_f32 v{T+4}, s51, v{T}
    """)
    a.rnd2(T+2, T+4, T)
    a(f"""
    v_mov_b32 v{T+3}, v{T+2}
    v_add_f32 v{T+4}, 0x3727c5ac, v{T+4}
    v_cvt_pk_bf16_f32 v{T}, v{T+4}, v{T+4}
    v_lshlrev_b32 v{T+4}, 16, v{T}
    v_sqrt_f32 v{T+4}, v{T+4}
    s_nop 0
    v_cvt_pk_bf16_f32 v{T}, v{T+4}, v{T+4}
    v_lshlrev_b32 v{T+4}, 16, v{T}
    v_rcp_f32 v{T+6}, v{T+4}
    s_nop 0
    v_fma_f32 v{T}, -v{T+4}, v{T+6}, 2.0
    v_mul_f32 v{T+6}, v{T+6}, v{T}
    v_mov_b32 v{T+7}, v{T+6}
    """)
    for i in range(npair):
        q = Q + 2*i
        a(f'v_pk_add_f32 v[{q}:{q+1}], v[{X+2*i}:{X+2*i+1}], v[{T+2}:{T+3}] neg_lo:[0,1] neg_hi:[0,1]')
        a.rnd2(q, q+1, T)
        a(f'v_pk_mul_f32 v[{q}:{q+1}], v[{q}:{q+1}], v[{T+6}:{T+7}]')

def gen_row(k, xin_arg, xin_off, xout_off):
    a.begin(k)
    done = k + '_done'
    a(f"""
    s_cmp_ge_u32 s2, 256
    s_cbranch_scc1 {done}
    s_load_dwordx2 s[4:5], s[0:1], {xin_arg}
    s_load_dwordx2 s[14:15], s[0:1], {WS}
    v_lshrrev_b32 v1, 6, v0
    v_and_b32 v2, 63, v0
    s_lshl_b32 s17, s2, 3
    v_add_u32 v3, s17, v1
    v_mul_u32_u24 v3, 1280, v3
    v_lshl_add_u32 v3, v2, 2, v3
    s_waitcnt lgkmcnt(0)
    """)
    a.srd(24, 4, 2621440, xin_off)
    a.srd(28, 14, 2621440, YYT)
    a.srd(32, 14, 2621440, xout_off)
    a.srd(36, 14, 2621440, HH)
    for j in range(5):
        a(f'buffer_load_dword v{8+j}, v3, s[24:27], 0 offen offset:{256*j}')
    a("""
    s_lshl_b32 s16, s2, 4
    v_lshlrev_b32 v4, 12, v0
    v_add_u32 v4, s16, v4
    v_add_u32 v5, 0x200000, v4
    buffer_load_dwordx4 v[16:19], v4, s[28:31], 0 offen
    buffer_load_dwordx4 v[20:23], v5, s[28:31], 0 offen
    v_lshlrev_b32 v6, 4, v0
    s_waitcnt vmcnt(0)
    ds_write_b128 v6, v[16:19]
    ds_write_b128 v6, v[20:23] offset:8192
    v_lshlrev_b32 v4, 5, v2
    v_lshl_add_u32 v4, v1, 1, v4
    """)
    for j in range(5):
        a.unpack(16+2*j, 17+2*j, 8+j)
    a("""
    s_waitcnt lgkmcnt(0)
    s_barrier
    """)
    for j in range(5):
        a(f'ds_read_u16 v{40+2*j}, v4 offset:{2048*j}')
        a(f'ds_read_u16 v{41+2*j}, v4 offset:{2048*j + 16}')
    ln_pk(16, 5, 640, 28, 56)
    a('s_waitcnt lgkmcnt(0)')
    for j in range(10):
        a(f'v_lshlrev_b32 v{40+j}, 16, v{40+j}')
    for i in range(5):
        q, x, y = 28+2*i, 16+2*i, 40+2*i
        a.rnd2(q, q+1, 56)
        a(f'v_pk_mul_f32 v[{q}:{q+1}], v[{q}:{q+1}], v[{y}:{y+1}]')
        a.rnd2(q, q+1, 56)
        a(f'v_pk_add_f32 v[{x}:{x+1}], v[{x}:{x+1}], v[{q}:{q+1}]')
        a.rnd2(x, x+1, 8+i)
        a(f'buffer_store_dword v{8+i}, v3, s[32:35], 0 offen offset:{256*i}')
    ln_pk(16, 5, 640, 28, 56)
    for i in range(5):
        a(f'v_cvt_pk_bf16_f32 v{40+i}, v{28+2*i}, v{29+2*i}')
        a(f'buffer_store_dword v{40+i}, v3, s[36:39], 0 offen offset:{256*i}')
    a.label(done)
    a('s_endpgm')
    a.kernels.append((k, 64, 64, 64))

def gen_lnz():
    k = 'lnz_kernel'
    a.begin(k)
    a(f"""
    s_cmp_ge_u32 s2, 256
    s_cbranch_scc1 lnz_done
    s_load_dwordx2 s[14:15], s[0:1], {WS}
    v_lshrrev_b32 v1, 6, v0
    v_and_b32 v2, 63, v0
    s_lshl_b32 s17, s2, 3
    v_add_u32 v3, s17, v1
    v_mul_u32_u24 v3, 3456, v3
    v_lshl_add_u32 v3, v2, 2, v3
    v_cmp_gt_u32 s[58:59], 48, v2
    v_add_u32 v4, {1728 + 256*6}, v3
    s_nop 0
    v_cndmask_b32 v4, -1, v4, s[58:59]
    s_waitcnt lgkmcnt(0)
    """)
    a.srd(24, 14, 7077888, ZZ)
    a.srd(28, 14, 3538944, Z2T)
    for j in range(6):
        a(f'buffer_load_dword v{8+j}, v3, s[24:27], 0 offen offset:{1728 + 256*j}')
    a("""
    buffer_load_dword v14, v4, s[24:27], 0 offen
    v_lshlrev_b32 v4, 5, v2
    v_lshl_add_u32 v4, v1, 1, v4
    s_waitcnt vmcnt(0)
    """)
    for j in range(7):
        a.unpack(16+2*j, 17+2*j, 8+j)
    ln_pk(16, 7, 864, 32, 56, mask_last=True)
    for j in range(7):
        a(f"""
        v_cvt_pk_bf16_f32 v{8+j}, v{32+2*j}, v{33+2*j}
        ds_write_b16 v4, v{8+j} offset:{2048*j}
        ds_write_b16_d16_hi v4, v{8+j} offset:{2048*j + 16}
        """)
    a("""
    s_waitcnt lgkmcnt(0)
    s_barrier
    v_lshlrev_b32 v4, 4, v0
    ds_read_b128 v[8:11], v4
    ds_read_b128 v[12:15], v4 offset:8192
    s_lshl_b32 s16, s2, 4
    v_lshlrev_b32 v3, 12, v0
    v_add_u32 v3, s16, v3
    v_add_u32 v5, 0x200000, v3
    s_waitcnt lgkmcnt(0)
    buffer_store_dwordx4 v[8:11], v3, s[28:31], 0 offen
    buffer_store_dwordx4 v[12:15], v5, s[28:31], 0 offen
    """)
    a.label('lnz_done')
    a('s_endpgm')
    a.kernels.append((k, 64, 64, 64))

def gen_gemm(k, WM, WN, BK, K, M, N, A_src, B_src, epi, D=4, GM=2, GN=4):
    BM, BN = GM*WM, GN*WN
    NT = 64*GM*GN
    TM, TN = WM//32, WN//32
    nmt, nnt = M//BM, -(-N//BN)
    rowb = 128
    nsteps = K//BK
    Abytes, Bbytes = BM*rowb, BN*rowb
    stage = Abytes + Bbytes
    PB = NT*16
    nla, nlb = Abytes//PB, Bbytes//PB
    nl = nla + nlb
    RPL = NT//8
    done = k + '_done'
    a.begin(k)
    a(f"""
    s_cmp_ge_u32 s2, {nmt*nnt}
    s_cbranch_scc1 {done}
    """)
    stamp(0)
    a(f"""
    s_load_dwordx2 s[4:5], s[0:1], {A_src[0]}
    s_load_dwordx2 s[6:7], s[0:1], {B_src[0]}
    s_load_dwordx2 s[14:15], s[0:1], {WS}
    s_load_dwordx2 s[10:11], s[0:1], {B_BSP}
    s_load_dwordx2 s[12:13], s[0:1], {OUT}
    s_and_b32 s16, s2, {nmt-1}
    s_lshr_b32 s17, s2, {nmt.bit_length()-1}
    s_mul_i32 s18, s16, {BM}
    s_mul_i32 s19, s17, {BN}
    v_lshrrev_b32 v1, 6, v0
    v_lshlrev_b32 v1, 10, v1
    s_nop 0
    v_readfirstlane_b32 s22, v1
    s_waitcnt lgkmcnt(0)
    """)
    a.srd(24, 4, M*K*2, A_src[1])
    a.srd(28, 6, N*K*2, B_src[1])
    a(f"""
    v_lshrrev_b32 v1, 3, v0
    v_and_b32 v2, 7, v0
    v_lshrrev_b32 v3, 1, v1
    v_and_b32 v3, 7, v3
    v_xor_b32 v2, v2, v3
    v_lshlrev_b32 v2, 4, v2
    v_add_u32 v3, s18, v1
    v_mul_u32_u24 v3, {K*2}, v3
    v_add_u32 v4, v3, v2
    v_add_u32 v3, s19, v1
    v_mul_u32_u24 v3, {K*2}, v3
    v_add_u32 v8, v3, v2
    """)
    for i in range(1, nla):
        a(f'v_add_u32 v{4+i}, {RPL*i*K*2}, v4')
    for i in range(1, nlb):
        a(f'v_add_u32 v{8+i}, {RPL*i*K*2}, v8')
    a(f"""
    v_lshrrev_b32 v1, 6, v0
    v_and_b32 v2, 63, v0
    v_and_b32 v3, 31, v2
    v_lshrrev_b32 v20, 5, v2
    v_and_b32 v21, {GM-1}, v1
    v_lshrrev_b32 v22, {GM.bit_length()-1}, v1
    """)
    nkk = 4
    AB, AR = 12, 24
    for (isB, wsel, W, R) in ((0, 21, WM, AB), (1, 22, WN, AB+4)):
        a(f"""
        v_mul_u32_u24 v23, {W}, v{wsel}
        v_add_u32 v23, v23, v3
        v_lshrrev_b32 v{R}, 1, v23
        v_and_b32 v{R}, 7, v{R}
        v_xor_b32 v{R}, v{R}, v20
        v_mul_u32_u24 v23, {rowb}, v23
        """)
        if isB:
            a(f'v_add_u32 v23, {Abytes}, v23')
        for kk in range(3, -1, -1):
            a(f"""
            v_xor_b32 v{R+kk}, {2*kk}, v{R}
            v_lshl_add_u32 v{R+kk}, v{R+kk}, 4, v23
            """)
    FA = 32
    FB = FA + 4*TM*2
    ACC = 64
    nacc = TM*TN*16
    EPR = ACC + nacc
    global G_EPR, G_BM, G_BN
    G_EPR = EPR
    global G_NT
    G_BM, G_BN = BM, BN
    G_NT = NT
    assert FB + 4*TN*2 <= ACC
    for i in range(nacc):
        a(f'v_mov_b32 v{ACC+i}, 0')
    a(f"""
    v_mul_u32_u24 v23, {WM}, v21
    v_add_u32 v23, v23, v3
    v_add_u32 v{EPR}, s18, v23
    v_mul_u32_u24 v23, {WN}, v22
    v_lshlrev_b32 v{EPR+1}, 2, v20
    v_add_u32 v23, v23, v{EPR+1}
    v_add_u32 v{EPR+1}, s19, v23
    """)
    epi(TM, TN, ACC, True)
    def gload():
        for i in range(nl):
            a(f's_add_u32 m0, s55, {i*PB}')
            a('s_nop 0')
            if i < nla:
                a(f'buffer_load_dwordx4 v{4+i}, s[24:27], s20 offen lds')
            else:
                a(f'buffer_load_dwordx4 v{8+i-nla}, s[28:31], s20 offen lds')
        a(f"""
        s_add_u32 s20, s20, {rowb}
        s_add_u32 s55, s55, {stage}
        s_cmp_lt_u32 s55, {D*stage}
        s_cselect_b32 s55, s55, s22
        """)
    lp, lm, lw, lnl = [a.newlabel(x) for x in ('gp', 'gm', 'gw', 'gn')]
    a(f"""
    s_mov_b32 s20, 0
    s_mov_b32 s55, s22
    s_mov_b32 s48, 0
    s_mov_b32 s49, 0
    """)
    stamp(1)
    a.label(lp)
    gload()
    a(f"""
    s_add_u32 s48, s48, 1
    s_cmp_lt_u32 s48, {D-1}
    s_cbranch_scc1 {lp}
    s_mov_b32 s48, 0
    """)
    stamp(2)
    a.label(lm)
    a(f"""
    s_cmp_lt_u32 s48, {nsteps-(D-2)}
    s_cbranch_scc1 {lw}
    s_waitcnt vmcnt(0)
    """)
    a.label(lw)
    a(f"""
    s_waitcnt vmcnt({nl*(D-2)})
    s_barrier
    """)
    for i in range(8):
        a(f'v_add_u32 v{AR+i}, s49, v{AB+i}')
    def rd(kk, s):
        for i in range(TM):
            f = FA + 4*(s*TM + i)
            a(f'ds_read_b128 v[{f}:{f+3}], v{AR+kk} offset:{i*32*rowb}')
        for i in range(TN):
            f = FB + 4*(s*TN + i)
            a(f'ds_read_b128 v[{f}:{f+3}], v{AR+4+kk} offset:{i*32*rowb}')
    rd(0, 0)
    a(f"""
    s_cmp_lt_u32 s48, {nsteps-(D-1)}
    s_cbranch_scc0 {lnl}
    """)
    lend = a.newlabel('gx')
    for withload in (True, False):
        if not withload:
            a.label(lnl)
        nm = 0
        li = 0
        tot = nkk*TM*TN
        for kk in range(nkk):
            s_ = kk & 1
            if kk + 1 < nkk:
                rd(kk+1, s_ ^ 1)
                a(f's_waitcnt lgkmcnt({TM+TN})')
            else:
                a('s_waitcnt lgkmcnt(0)')
            for i in range(TM):
                for j in range(TN):
                    fa = FA + 4*(s_*TM + i)
                    fb = FB + 4*(s_*TN + j)
                    c = ACC + 16*(i*TN + j)
                    a(f'v_mfma_f32_32x32x16_bf16 v[{c}:{c+15}], v[{fb}:{fb+3}], v[{fa}:{fa+3}], v[{c}:{c+15}]')
                    nm += 1
                    if withload:
                        while li < nl and li * tot < nm * nl:
                            a(f's_add_u32 m0, s55, {li*PB}')
                            a('s_nop 0')
                            if li < nla:
                                a(f'buffer_load_dwordx4 v{4+li}, s[24:27], s20 offen lds')
                            else:
                                a(f'buffer_load_dwordx4 v{8+li-nla}, s[28:31], s20 offen lds')
                            li += 1
        if withload:
            a(f"""
            s_add_u32 s20, s20, {rowb}
            s_add_u32 s55, s55, {stage}
            s_cmp_lt_u32 s55, {D*stage}
            s_cselect_b32 s55, s55, s22
            s_branch {lend}
            """)
    a.label(lend)
    a(f"""
    s_add_u32 s49, s49, {stage}
    s_cmp_lt_u32 s49, {D*stage}
    s_cselect_b32 s49, s49, 0
    s_add_u32 s48, s48, 1
    s_cmp_lt_u32 s48, {nsteps}
    s_cbranch_scc1 {lm}
    s_nop 7
    s_nop 7
    """)
    stamp(3)
    a('s_barrier')
    le = a.newlabel('ge')
    lg = TN.bit_length() - 1
    epi(TM, TN, ACC, 'setup')
    a('s_mov_b32 s48, 0')
    a.label(le)
    a(f"""
    s_lshl_b32 s56, s48, 2
    s_lshr_b32 s49, s48, {2+lg}
    s_lshl_b32 s49, s49, 5
    s_lshr_b32 s55, s48, 2
    s_and_b32 s55, s55, {TN-1}
    s_lshl_b32 s55, s55, 5
    s_and_b32 s20, s48, 3
    s_lshl_b32 s20, s20, 3
    s_add_u32 s55, s55, s20
    s_set_gpr_idx_on s56, gpr_idx(SRC0)
    v_mov_b32 v40, v{ACC}
    v_mov_b32 v41, v{ACC+1}
    v_mov_b32 v42, v{ACC+2}
    v_mov_b32 v43, v{ACC+3}
    s_set_gpr_idx_off
    v_add_u32 v4, s49, v{EPR}
    v_add_u32 v5, s55, v{EPR+1}
    """)
    epi(TM, TN, ACC, 'body')
    a(f"""
    s_add_u32 s48, s48, 1
    s_cmp_lt_u32 s48, {nacc//4}
    s_cbranch_scc1 {le}
    s_waitcnt lgkmcnt(0)
    s_barrier
    """)
    epi(TM, TN, ACC, 'out')
    a('s_waitcnt vmcnt(0)')
    stamp(4)
    stamp_out(5)
    a.label(done)
    a('s_endpgm')
    lds = D*stage
    a.kernels.append((k, EPR + 4 + 24, 80, EPR + 4 + 24))
    return nmt*nnt, lds, NT

def gelu_regs(x, t0, t1):
    a(f'''
    v_mul_f32 v{t0}, v{x}, v{x}
    v_mul_f32 v{t0}, v{t0}, v{x}
    v_fma_f32 v{t0}, v{t0}, s46, v{x}
    v_mul_f32 v{t0}, s47, v{t0}
    v_exp_f32 v{t0}, v{t0}
    s_nop 0
    v_add_f32 v{t0}, 1.0, v{t0}
    v_rcp_f32 v{t0}, v{t0}
    s_nop 0
    v_fma_f32 v{t0}, v{t0}, -2.0, 2.0
    v_mul_f32 v{t1}, 0.5, v{x}
    v_mul_f32 v{x}, v{t1}, v{t0}
    ''')

def tile_addr():
    pitch = G_BN*2 + 16
    a(f"""
    v_subrev_u32 v6, s18, v4
    v_mul_u32_u24 v6, {pitch}, v6
    v_subrev_u32 v7, s19, v5
    v_lshl_add_u32 v7, v7, 1, v6
    """)

def out_chunks(t=4):
    cpr = G_BN // 8
    n = G_BM*G_BN*2//16//G_NT
    pitch = G_BN*2 + 16
    sh = cpr.bit_length()-1
    for i in range(n):
        a(f"""
        v_add_u32 v{t+2}, {G_NT*i}, v0
        v_lshrrev_b32 v{t}, {sh}, v{t+2}
        v_and_b32 v{t+1}, {cpr-1}, v{t+2}
        v_lshlrev_b32 v{t+1}, 3, v{t+1}
        v_mul_u32_u24 v{t+3}, {pitch}, v{t}
        v_lshl_add_u32 v{t+3}, v{t+1}, 1, v{t+3}
        v_add_u32 v{t}, s18, v{t}
        v_add_u32 v{t+1}, s19, v{t+1}
        """)
        yield i

def epi_gemm1(TM, TN, ACC, pre):
    if pre is True:
        return
    if pre == 'setup':
        a.srd(32, 14, 7077888, ZZ)
        a("""
        v_mov_b32 v48, 0x3dd2d3e8
        v_mov_b32 v49, 0x3dd2d3e8
        v_mov_b32 v50, 0x40135761
        v_mov_b32 v51, 0x40135761
        v_mov_b32 v52, 1.0
        v_mov_b32 v53, 1.0
        """)
        return
    if pre == 'out':
        for i in out_chunks():
            r = 32 + 4*(i % 8)
            a(f"""
            ds_read_b128 v[{r}:{r+3}], v7
            v_mul_u32_u24 v6, 3456, v4
            v_cmp_gt_u32 vcc, 1728, v5
            v_lshl_add_u32 v6, v5, 1, v6
            s_nop 0
            v_cndmask_b32 v6, -1, v6, vcc
            s_waitcnt lgkmcnt(0)
            buffer_store_dwordx4 v[{r}:{r+3}], v6, s[32:35], 0 offen
            """)
        return
    a.rnd2(40, 41, 8)
    a.rnd2(42, 43, 9)
    a("""
    v_pk_mul_f32 v[44:45], v[40:41], v[40:41]
    v_pk_mul_f32 v[46:47], v[42:43], v[42:43]
    v_pk_fma_f32 v[44:45], v[44:45], v[48:49], v[50:51]
    v_pk_fma_f32 v[46:47], v[46:47], v[48:49], v[50:51]
    v_pk_mul_f32 v[44:45], v[44:45], v[40:41]
    v_pk_mul_f32 v[46:47], v[46:47], v[42:43]
    v_exp_f32 v44, v44
    v_exp_f32 v45, v45
    v_exp_f32 v46, v46
    v_exp_f32 v47, v47
    v_pk_add_f32 v[44:45], v[44:45], v[52:53]
    v_pk_add_f32 v[46:47], v[46:47], v[52:53]
    v_rcp_f32 v44, v44
    v_rcp_f32 v45, v45
    v_rcp_f32 v46, v46
    v_rcp_f32 v47, v47
    """)
    tile_addr()
    a("""
    v_pk_fma_f32 v[40:41], v[40:41], v[44:45], v[40:41] neg_lo:[1,0,0] neg_hi:[1,0,0]
    v_pk_fma_f32 v[42:43], v[42:43], v[46:47], v[42:43] neg_lo:[1,0,0] neg_hi:[1,0,0]
    v_cvt_pk_bf16_f32 v10, v40, v41
    v_cvt_pk_bf16_f32 v11, v42, v43
    ds_write_b64 v7, v[10:11]
    """)

def epi_gemm2(TM, TN, ACC, pre):
    E = G_EPR
    R, C = E, E+1
    Z = E + 2 + (E+2) % 4
    Z = ((E + 2 + 3)//4)*4
    BS = Z + 16
    if pre is True:
        a.srd(32, 14, 7077888, ZZ)
        a.srd(44, 10, 4096)
        for i in range(TM):
            a(f"""
            v_add_u32 v23, {32*i}, v{R}
            v_lshlrev_b32 v{BS+4}, 1, v23
            buffer_load_ushort v{BS+i}, v{BS+4}, s[44:47], 0 offen
            """)
        for i in out_chunks(40):
            a(f"""
            v_mul_u32_u24 v42, 3456, v40
            v_cmp_gt_u32 vcc, 864, v41
            v_lshl_add_u32 v42, v41, 1, v42
            s_nop 0
            v_cndmask_b32 v42, -1, v42, vcc
            buffer_load_dwordx4 v[{Z+4*i}:{Z+4*i+3}], v42, s[32:35], 0 offen
            """)
        return
    if pre == 'setup':
        a.srd(36, 14, 3670016, UU)
        for i in range(TM):
            a(f'v_lshlrev_b32 v{BS+i}, 16, v{BS+i}')
        return
    if pre == 'out':
        for i in out_chunks():
            a(f"""
            ds_read_b128 v[32:35], v7
            v_mul_u32_u24 v6, 1792, v4
            v_lshl_add_u32 v6, v5, 1, v6
            s_waitcnt lgkmcnt(0)
            """)
            for w in range(4):
                a.unpack(36, 37, 32+w)
                a.unpack(38, 39, Z+4*i+w)
                a(f"""
                v_mul_f32 v36, v36, v38
                v_mul_f32 v37, v37, v39
                v_cvt_pk_bf16_f32 v{Z+4*i+w}, v36, v37
                """)
            a(f'buffer_store_dwordx4 v[{Z+4*i}:{Z+4*i+3}], v6, s[36:39], 0 offen')
        return
    lg = TN.bit_length() - 1
    a(f"""
    s_lshr_b32 s56, s48, {2+lg}
    s_set_gpr_idx_on s56, gpr_idx(SRC0)
    v_mov_b32 v12, v{BS}
    s_set_gpr_idx_off
    """)
    tile_addr()
    a.rnd2(40, 41, 8)
    a.rnd2(42, 43, 9)
    for e in range(4):
        a(f'v_add_f32 v{40+e}, v{40+e}, v12')
    a("""
    v_cvt_pk_bf16_f32 v10, v40, v41
    v_cvt_pk_bf16_f32 v11, v42, v43
    ds_write_b64 v7, v[10:11]
    """)

def make_epi_gemm3(xin_off, out_ws_off):
    def epi(TM, TN, ACC, pre):
        E = G_EPR
        Z = ((E + 2 + 3)//4)*4
        if pre is True:
            a.srd(32, 14, 2621440, xin_off)
            for i in out_chunks(40):
                a(f"""
                v_mul_u32_u24 v42, 1280, v40
                v_lshl_add_u32 v42, v41, 1, v42
                buffer_load_dwordx4 v[{Z+4*i}:{Z+4*i+3}], v42, s[32:35], 0 offen
                """)
            return
        if pre == 'setup':
            if out_ws_off is None:
                a.srd(36, 12, 2621440)
            else:
                a.srd(36, 14, 2621440, out_ws_off)
            return
        if pre == 'out':
            for i in out_chunks():
                a(f"""
                ds_read_b128 v[32:35], v7
                v_mul_u32_u24 v6, 1280, v4
                v_lshl_add_u32 v6, v5, 1, v6
                s_waitcnt lgkmcnt(0)
                """)
                for w in range(4):
                    a.unpack(36, 37, 32+w)
                    a.unpack(38, 39, Z+4*i+w)
                    a(f"""
                    v_add_f32 v36, v36, v38
                    v_add_f32 v37, v37, v39
                    v_cvt_pk_bf16_f32 v{Z+4*i+w}, v36, v37
                    """)
                a(f'buffer_store_dwordx4 v[{Z+4*i}:{Z+4*i+3}], v6, s[36:39], 0 offen')
            return
        tile_addr()
        a("""
        v_cvt_pk_bf16_f32 v10, v40, v41
        v_cvt_pk_bf16_f32 v11, v42, v43
        ds_write_b64 v7, v[10:11]
        """)
    return epi

gen_prep()
gen_conv()
gen_row('rowa_kernel', A_Q, 0, X1)
gen_row('rowb_kernel', WS, X2, X3)
gen_lnz()
g1, l1, t1 = gen_gemm('gemm1_kernel', 64, 32, 64, 640, 2048, 1728, (WS, HH), (WS, WINT), epi_gemm1, D=4, GM=2, GN=4)
g2, l2, t2 = gen_gemm('gemm2_kernel', 32, 32, 64, 2048, 2048, 864, (B_WSP, 0), (WS, Z2T), epi_gemm2, D=4, GM=4, GN=2)
g3, l3, t3 = gen_gemm('gemm3a_kernel', 32, 32, 64, 896, 2048, 640, (WS, UU), (WS, WOUTT), make_epi_gemm3(X1, X2), D=4, GM=4, GN=2)
g3, l3, t3 = gen_gemm('gemm3b_kernel', 32, 32, 64, 896, 2048, 640, (WS, UU), (WS, WOUTT), make_epi_gemm3(X3, None), D=4, GM=4, GN=2)

launches = [
    ('prep_kernel', 1460, 5120, 256),
    ('conv_kernel', 640, CONV_LDS, 256),
    ('rowa_kernel', 256, 16384, 512),
    ('gemm1_kernel', g1, l1, t1),
    ('lnz_kernel', 256, 16384, 512),
    ('gemm2_kernel', g2, l2, t2),
    ('gemm3a_kernel', g3, l3, t3),
    ('rowb_kernel', 256, 16384, 512),
    ('gemm1_kernel', g1, l1, t1),
    ('lnz_kernel', 256, 16384, 512),
    ('gemm2_kernel', g2, l2, t2),
    ('gemm3b_kernel', g3, l3, t3),
]

ref = open('cdna_kernels/' + NAME + '.s.ref').read().split('\n')
head = [l for l in ref if l.startswith(';') and '@launch' not in l]
out = head[:]
for (k, g, lds, nt) in launches:
    out.append(f'; @launch kernel={k} grid=({g},1,1) block=({nt},1,1) lds={lds}')
out.append('.amdgcn_target "amdgcn-amd-amdhsa--gfx950"')
out.append('.text')
out += a.L
out.append('.section .rodata,"a"')
for (k, v, s, acc) in a.kernels:
    out.append('.p2align 6')
    out.append(f'.amdhsa_kernel {k}')
    out.append(f'  .amdhsa_next_free_vgpr {v}')
    out.append(f'  .amdhsa_next_free_sgpr {s}')
    out.append(f'  .amdhsa_accum_offset {((acc+3)//4)*4}')
    out.append('  .amdhsa_group_segment_fixed_size 0')
    out.append('  .amdhsa_kernarg_size 112')
    out.append('  .amdhsa_user_sgpr_count 2')
    out.append('  .amdhsa_user_sgpr_kernarg_segment_ptr 1')
    out.append('  .amdhsa_system_sgpr_workgroup_id_x 1')
    out.append('.end_amdhsa_kernel')
open('stamp.s' if STAMP else 'cdna_kernels/' + NAME + '.s', 'w').write('\n'.join(out) + '\n')
print('ok', len(out), 'lines', g1, l1, g2, l2, g3, l3)
```

```python
NAME = "interleave_layers__ssm_conv_h3__mixer_gmlp__prompt"

KVR = 0x0
P4 = 4352
YYT = 0x300000
WINT = 0x600000
WOUTT = 0x900000
X1 = 0xB00000
X2 = 0xE00000
X3 = 0x1100000
HH = 0x1400000
ZZ = 0x1700000
Z2T = 0x1E00000
UU = 0x2200000

A_Q, A_K, A_V, A_SK, A_SSMK, A_D, B_X, B_WIN, B_WSP, B_BSP, B_WOUT, OUT, DBG, WS = [8*i for i in range(14)]

class Asm:
    def __init__(self):
        self.L = []
        self.kernels = []
        self.launches = []
        self.uid = 0
    def __call__(self, s):
        for line in s.strip().split('\n'):
            self.L.append('    ' + line.strip())
    def label(self, l):
        self.L.append(l + ':')
    def newlabel(self, p='L'):
        self.uid += 1
        return f'{p}_{self.uid}'
    def begin(self, label):
        self.L.append('.globl ' + label)
        self.L.append('.p2align 8')
        self.L.append(f'.type {label},@function')
        self.label(label)
    def srd(self, d, p, nbytes, off=0):
        if off:
            self(f's_add_u32 s{d}, s{p}, {off}')
            self(f's_addc_u32 s{d+1}, s{p+1}, 0')
        else:
            self(f's_mov_b32 s{d}, s{p}')
            self(f's_mov_b32 s{d+1}, s{p+1}')
        self(f's_mov_b32 s{d+2}, {nbytes}')
        self(f's_mov_b32 s{d+3}, 0x00020000')
    def rnd2(self, a, b, t):
        self(f'v_cvt_pk_bf16_f32 v{t}, v{a}, v{b}')
        self(f'v_lshlrev_b32 v{a}, 16, v{t}')
        self(f'v_and_b32 v{b}, 0xffff0000, v{t}')
    def unpack(self, lo, hi, src):
        self(f'v_lshlrev_b32 v{lo}, 16, v{src}')
        self(f'v_and_b32 v{hi}, 0xffff0000, v{src}')
    def wave_sum(self, v, t, sdst):
        self('s_nop 1')
        self(f'v_add_f32_dpp v{t}, v{v}, v{v} quad_perm:[1,0,3,2] row_mask:0xf bank_mask:0xf')
        self('s_nop 1')
        self(f'v_add_f32_dpp v{v}, v{t}, v{t} quad_perm:[2,3,0,1] row_mask:0xf bank_mask:0xf')
        self('s_nop 1')
        self(f'v_add_f32_dpp v{t}, v{v}, v{v} row_half_mirror row_mask:0xf bank_mask:0xf')
        self('s_nop 1')
        self(f'v_add_f32_dpp v{v}, v{t}, v{t} row_mirror row_mask:0xf bank_mask:0xf')
        self('s_nop 0')
        self(f'v_readlane_b32 s52, v{v}, 16')
        self(f'v_readlane_b32 s53, v{v}, 32')
        self(f'v_readlane_b32 s54, v{v}, 48')
        self('s_nop 1')
        self(f'v_add_f32 v{v}, s52, v{v}')
        self(f'v_add_f32 v{v}, s53, v{v}')
        self(f'v_add_f32 v{v}, s54, v{v}')
        self('s_nop 0')
        self(f'v_readlane_b32 s{sdst}, v{v}, 0')
        self('s_nop 1')

a = Asm()
import os
STAMP = os.environ.get('STAMP') == '1'
def stamp(i):
    if STAMP:
        a(f's_memtime s[{60+2*i}:{61+2*i}]')
def stamp_out(n):
    if STAMP:
        a(f"""
        s_load_dwordx2 s[4:5], s[0:1], {DBG}
        s_waitcnt lgkmcnt(0)
        s_cmp_lg_u32 s2, 5
        s_cbranch_scc1 skipst_{a.uid}
        """)
        a.srd(8, 4, 256)
        for i in range(n):
            a(f"""
            v_mov_b32 v1, s{60+2*i}
            v_mov_b32 v2, {4*i}
            buffer_store_dword v1, v2, s[8:11], 0 offen
            """)
        a.label(f'skipst_{a.uid}')
        a.uid += 1


def gen_prep():
    k = 'prep_kernel'
    a.begin(k)
    a(f'''
    s_cmp_ge_u32 s2, 1460
    s_cbranch_scc1 prep_done
    s_load_dwordx2 s[4:5], s[0:1], {A_K}
    s_load_dwordx2 s[6:7], s[0:1], {A_V}
    s_load_dwordx2 s[8:9], s[0:1], {A_SK}
    s_load_dwordx2 s[10:11], s[0:1], {B_WIN}
    s_load_dwordx2 s[12:13], s[0:1], {B_WOUT}
    s_load_dwordx2 s[14:15], s[0:1], {WS}
    v_lshrrev_b32 v1, 3, v0
    v_and_b32 v2, 7, v0
    s_waitcnt lgkmcnt(0)
    s_cmp_ge_u32 s2, 640
    s_cbranch_scc1 prep_tr
    ''')
    a(f'''
    s_mov_b32 s16, 429496730
    s_mul_hi_u32 s17, s2, s16
    s_mul_i32 s18, s17, 10
    s_sub_u32 s18, s2, s18
    s_lshl_b32 s19, s17, 5
    s_lshl_b32 s20, s18, 6
    ''')
    a.srd(24, 4, 2621440)
    a.srd(28, 6, 2621440)
    a.srd(32, 8, 5120)
    a.srd(36, 14, 640*P4, KVR)
    a(f'''
    v_add_u32 v3, s19, v1
    v_mul_u32_u24 v3, 1280, v3
    v_lshlrev_b32 v4, 4, v2
    v_add_u32 v3, v3, v4
    s_lshl_b32 s21, s20, 1
    v_add_u32 v3, s21, v3
    v_subrev_u32 v5, 1280, v3
    v_subrev_u32 v6, 2560, v3
    v_subrev_u32 v7, 3840, v3
    buffer_load_dwordx4 v[8:11], v3, s[24:27], 0 offen
    buffer_load_dwordx4 v[12:15], v5, s[24:27], 0 offen
    buffer_load_dwordx4 v[16:19], v6, s[24:27], 0 offen
    buffer_load_dwordx4 v[20:23], v7, s[24:27], 0 offen
    buffer_load_dwordx4 v[24:27], v3, s[28:31], 0 offen
    v_lshlrev_b32 v4, 6, v2
    s_lshl_b32 s21, s20, 3
    v_add_u32 v4, s21, v4
    buffer_load_dwordx4 v[28:31], v4, s[32:35], 0 offen
    buffer_load_dwordx4 v[32:35], v4, s[32:35], 0 offen offset:16
    buffer_load_dwordx4 v[36:39], v4, s[32:35], 0 offen offset:32
    buffer_load_dwordx4 v[40:43], v4, s[32:35], 0 offen offset:48
    ''')
    a('''
    v_mul_u32_u24 v44, 640, v2
    v_sub_u32 v45, 31, v1
    v_lshlrev_b32 v45, 1, v45
    v_add_u32 v44, v44, v45
    s_waitcnt vmcnt(0)
    ''')
    for e in range(8):
        w = e // 2
        def g(dst, base):
            if e % 2 == 0:
                a(f'v_lshlrev_b32 v{dst}, 16, v{base+w}')
            else:
                a(f'v_and_b32 v{dst}, 0xffff0000, v{base+w}')
        g(50, 8); g(51, 12); g(52, 16); g(53, 20); g(54, 24)
        a.unpack(55, 56, 28 + 2*e)
        a.unpack(57, 58, 29 + 2*e)
        a(f'''
        v_mul_f32 v60, v53, v58
        v_mul_f32 v61, v52, v57
        ''')
        a.rnd2(60, 61, 62)
        a(f'''
        v_add_f32 v60, v60, v61
        v_mul_f32 v61, v51, v56
        ''')
        a.rnd2(60, 61, 62)
        a(f'''
        v_add_f32 v60, v60, v61
        v_mul_f32 v61, v50, v55
        ''')
        a.rnd2(60, 61, 62)
        a(f'''
        v_add_f32 v60, v60, v61
        v_cvt_pk_bf16_f32 v62, v60, v60
        v_lshlrev_b32 v60, 16, v62
        v_mul_f32 v60, v60, v54
        v_cvt_pk_bf16_f32 v62, v60, v60
        ds_write_b16 v44, v62 offset:{80*e}
        ''')
    a(f'''
    s_waitcnt lgkmcnt(0)
    s_barrier
    v_lshrrev_b32 v45, 2, v0
    v_and_b32 v46, 3, v0
    v_mul_u32_u24 v47, 80, v45
    v_lshlrev_b32 v48, 4, v46
    v_add_u32 v47, v47, v48
    ds_read_b128 v[8:11], v47
    v_add_u32 v45, s20, v45
    v_mul_u32_u24 v45, {P4}, v45
    s_sub_u32 s21, 2016, s19
    s_lshl_b32 s21, s21, 1
    v_add_u32 v45, s21, v45
    v_add_u32 v45, v45, v48
    s_waitcnt lgkmcnt(0)
    buffer_store_dwordx4 v[8:11], v45, s[36:39], 0 offen
    s_branch prep_done
    ''')
    a.label('prep_tr')
    a('''
    s_sub_u32 s16, s2, 640
    s_cmp_ge_u32 s16, 540
    s_cbranch_scc1 prep_tr2
    ''')
    a(f'''
    s_mov_b32 s17, 159072863
    s_mul_hi_u32 s18, s16, s17
    s_mul_i32 s19, s18, 27
    s_sub_u32 s19, s16, s19
    s_mov_b32 s20, 640
    s_mov_b32 s21, 1728
    ''')
    a.srd(24, 10, 2211840)
    a.srd(28, 14, 2211840, WINT)
    a('s_branch prep_tr3')
    a.label('prep_tr2')
    a(f'''
    s_sub_u32 s16, s16, 540
    s_mov_b32 s17, 429496730
    s_mul_hi_u32 s18, s16, s17
    s_mul_i32 s19, s18, 10
    s_sub_u32 s19, s16, s19
    s_mov_b32 s20, 896
    s_mov_b32 s21, 640
    ''')
    a.srd(24, 12, 1105920)
    a.srd(28, 14, 1146880, WOUTT)
    a.label('prep_tr3')
    a('''
    s_lshl_b32 s22, s18, 5
    s_lshl_b32 s23, s19, 6
    v_add_u32 v3, s22, v1
    v_mul_lo_u32 v3, v3, s21
    v_lshlrev_b32 v4, 3, v2
    v_add_u32 v3, v3, v4
    v_add_u32 v3, s23, v3
    v_lshlrev_b32 v3, 1, v3
    buffer_load_dwordx4 v[8:11], v3, s[24:27], 0 offen
    v_mul_u32_u24 v44, 640, v2
    v_lshlrev_b32 v45, 1, v1
    v_add_u32 v44, v44, v45
    s_waitcnt vmcnt(0)
    ''')
    for e in range(8):
        if e % 2 == 0:
            a(f'ds_write_b16 v44, v{8+e//2} offset:{80*e}')
        else:
            a(f'ds_write_b16_d16_hi v44, v{8+e//2} offset:{80*e}')
    a('''
    s_waitcnt lgkmcnt(0)
    s_barrier
    v_lshrrev_b32 v45, 2, v0
    v_and_b32 v46, 3, v0
    v_mul_u32_u24 v47, 80, v45
    v_lshlrev_b32 v48, 4, v46
    v_add_u32 v47, v47, v48
    ds_read_b128 v[8:11], v47
    v_add_u32 v45, s23, v45
    v_mul_lo_u32 v45, v45, s20
    v_add_u32 v45, s22, v45
    v_lshlrev_b32 v45, 1, v45
    v_add_u32 v45, v45, v48
    s_waitcnt lgkmcnt(0)
    buffer_store_dwordx4 v[8:11], v45, s[28:31], 0 offen
    ''')
    a.label('prep_done')
    a('s_endpgm')
    a.kernels.append((k, 64, 48, 64))

HP = 4384
NHC = 4
KV0 = NHC * HP
KVSZ = 9216 + 64
KV1 = KV0 + KVSZ
CONV_LDS = max(KV1 + KVSZ, 4*64*144)
def gen_conv():
    k = 'conv_kernel'
    a.begin(k)
    a(f"""
    s_cmp_ge_u32 s2, 640
    s_cbranch_scc1 conv_done
    """)
    stamp(0)
    a(f"""
    s_load_dwordx2 s[4:5], s[0:1], {A_SSMK}
    s_load_dwordx2 s[6:7], s[0:1], {A_D}
    s_load_dwordx2 s[14:15], s[0:1], {WS}
    s_lshl_b32 s16, s2, 12
    v_lshrrev_b32 v1, 6, v0
    s_nop 0
    v_readfirstlane_b32 s22, v1
    s_waitcnt lgkmcnt(0)
    s_add_u32 s4, s4, s16
    s_addc_u32 s5, s5, 0
    s_mul_i32 s16, s2, {P4}
    s_add_u32 s8, s14, s16
    s_addc_u32 s9, s15, 0
    """)
    a.srd(24, 4, 4096)
    a.srd(28, 8, 4096, KVR)
    a.srd(32, 8, 4096, YYT)
    a.srd(36, 6, 1280)
    a(f"""
    v_lshlrev_b32 v3, 4, v0
    v_subrev_u32 v4, 128, v3
    v_subrev_u32 v5, 112, v3
    buffer_load_dwordx4 v[8:11], v4, s[24:27], 0 offen
    buffer_load_dwordx4 v[12:15], v5, s[24:27], 0 offen
    v_add_u32 v6, 4096, v3
    v_subrev_u32 v4, 128, v6
    v_subrev_u32 v5, 112, v6
    buffer_load_dwordx4 v[16:19], v4, s[24:27], 0 offen
    buffer_load_dwordx4 v[20:23], v5, s[24:27], 0 offen
    v_subrev_u32 v4, 16, v3
    buffer_load_dwordx4 v[24:27], v4, s[28:31], 0 offen
    buffer_load_dwordx4 v[28:31], v3, s[28:31], 0 offen
    s_lshl_b32 s17, s2, 1
    v_mov_b32 v4, s17
    buffer_load_ushort v39, v4, s[36:39], 0 offen
    v_lshrrev_b32 v5, 3, v0
    v_lshlrev_b32 v5, 4, v5
    v_add_u32 v7, v3, v5
    v_mov_b32 v32, 0
    v_mov_b32 v33, 0
    v_mov_b32 v34, 0
    v_mov_b32 v35, 0
    ds_write_b128 v7, v[32:35] offset:{KV0+4608}
    v_cmp_ne_u32 vcc, 0, v0
    s_and_saveexec_b64 s[40:41], vcc
    ds_write_b128 v7, v[32:35] offset:{KV1+4608}
    s_mov_b64 exec, s[40:41]
    s_waitcnt vmcnt(5)
    """)
    def hcopies(base, addr):
        for ci, c in enumerate((1, 3, 5, 7)):
            j = (c - 1)//2
            o = 40 + 4*(ci & 1)
            for i in range(4):
                a(f'v_alignbit_b32 v{o+i}, v{base+j+i+1}, v{base+j+i}, 16')
            a(f'ds_write_b128 v{addr}, v[{o}:{o+3}] offset:{ci*HP}')
    hcopies(8, 3)
    a("""
    s_waitcnt vmcnt(3)
    v_cmp_gt_u32 vcc, 16, v0
    s_and_saveexec_b64 s[40:41], vcc
    """)
    hcopies(16, 6)
    a('s_mov_b64 exec, s[40:41]')
    a(f"""
    s_waitcnt vmcnt(0)
    ds_write_b128 v7, v[28:31] offset:{KV0}
    v_alignbit_b32 v40, v28, v27, 16
    v_alignbit_b32 v41, v29, v28, 16
    v_alignbit_b32 v42, v30, v29, 16
    v_alignbit_b32 v43, v31, v30, 16
    ds_write_b128 v7, v[40:43] offset:{KV1}
    v_lshrrev_b32 v44, 16, v31
    v_mov_b32 v45, 0
    v_mov_b32 v46, 0
    v_mov_b32 v47, 0
    v_cmp_eq_u32 vcc, 255, v0
    s_and_saveexec_b64 s[40:41], vcc
    v_mov_b32 v5, {KV1+4608}
    ds_write_b128 v5, v[44:47]
    s_mov_b64 exec, s[40:41]
    v_lshlrev_b32 v39, 16, v39
    """)
    a(f"""
    v_and_b32 v2, 63, v0
    v_and_b32 v3, 31, v2
    v_lshrrev_b32 v4, 5, v2
    s_mul_i32 s42, s22, 24
    s_cmp_eq_u32 s22, 3
    s_cselect_b32 s42, 76, s42
    s_lshl_b32 s43, s42, 5
    v_lshlrev_b32 v5, 1, v3
    v_add_u32 v5, 1, v5
    v_and_b32 v6, 7, v5
    v_lshrrev_b32 v6, 1, v6
    v_mul_u32_u24 v6, {HP}, v6
    v_and_b32 v5, 0x78, v5
    v_lshl_add_u32 v5, v4, 3, v5
    v_lshl_add_u32 v36, v5, 1, v6
    v_add_u32 v36, s43, v36
    """)
    a(f"""
    v_and_b32 v5, 15, v2
    v_bfe_u32 v6, v2, 4, 1
    v_mul_u32_u24 v6, {KVSZ}, v6
    v_mul_u32_u24 v5, 144, v5
    v_sub_u32 v5, {KV0 + 1984*2 + 31*16}, v5
    v_add_u32 v5, v5, v6
    v_lshl_add_u32 v5, v4, 4, v5
    s_lshr_b32 s44, s42, 2
    s_lshl_b32 s44, s44, 4
    s_add_u32 s44, s44, s43
    v_add_u32 v37, s44, v5
    v_subrev_u32 v38, {16*144}, v37
    """)
    for i in range(32):
        a(f'v_mov_b32 v{64+i}, 0')
    stamp(1)
    a("""
    s_waitcnt lgkmcnt(0)
    s_barrier
    """)
    stamp(2)
    a("""
    s_mov_b32 s45, 6
    s_cmp_eq_u32 s22, 2
    s_cselect_b32 s45, 5, s45
    s_cmp_eq_u32 s22, 3
    s_cselect_b32 s45, 0, s45
    s_mov_b32 s46, 0
    s_cmp_eq_u32 s22, 2
    s_cselect_b32 s46, 2, s46
    s_cmp_eq_u32 s22, 3
    s_cselect_b32 s46, 14, s46
    s_cmp_eq_u32 s45, 0
    s_cbranch_scc1 conv_lb
    """)
    a.label('conv_la')
    for st in range(4):
        b = 40 + 12*(st & 1)
        a(f"""
        ds_read_b128 v[{b}:{b+3}], v36 offset:{32*st}
        ds_read_b128 v[{b+4}:{b+7}], v37 offset:{32*st}
        ds_read_b128 v[{b+8}:{b+11}], v38 offset:{32*st}
        """)
        if st > 0:
            pb = 40 + 12*((st-1) & 1)
            a(f"""
            s_waitcnt lgkmcnt(3)
            v_mfma_f32_32x32x16_bf16 v[64:79], v[{pb}:{pb+3}], v[{pb+4}:{pb+7}], v[64:79]
            v_mfma_f32_32x32x16_bf16 v[80:95], v[{pb}:{pb+3}], v[{pb+8}:{pb+11}], v[80:95]
            """)
    a(f"""
    v_add_u32 v36, 128, v36
    v_add_u32 v37, 144, v37
    v_add_u32 v38, 144, v38
    s_waitcnt lgkmcnt(0)
    v_mfma_f32_32x32x16_bf16 v[64:79], v[52:55], v[56:59], v[64:79]
    v_mfma_f32_32x32x16_bf16 v[80:95], v[52:55], v[60:63], v[80:95]
    s_sub_u32 s45, s45, 1
    s_cmp_lg_u32 s45, 0
    s_cbranch_scc1 conv_la
    """)
    a.label('conv_lb')
    a("""
    s_cmp_eq_u32 s46, 0
    s_cbranch_scc1 conv_le
    """)
    a.label('conv_lb2')
    LB = (8, 16, 24, 40)
    for st in range(4):
        b = LB[st]
        a(f"""
        ds_read_b128 v[{b}:{b+3}], v36 offset:{32*st}
        ds_read_b128 v[{b+4}:{b+7}], v38 offset:{32*st}
        """)
    a("""
    v_add_u32 v36, 128, v36
    v_add_u32 v38, 144, v38
    """)
    for st in range(4):
        b = LB[st]
        a(f"""
        s_waitcnt lgkmcnt({6-2*st})
        v_mfma_f32_32x32x16_bf16 v[80:95], v[{b}:{b+3}], v[{b+4}:{b+7}], v[80:95]
        """)
    a("""
    s_sub_u32 s46, s46, 1
    s_cmp_lg_u32 s46, 0
    s_cbranch_scc1 conv_lb2
    """)
    a.label('conv_le')
    stamp(3)
    a(f"""
    v_sub_u32 v6, 255, v0
    v_lshrrev_b32 v7, 3, v6
    v_add_u32 v6, v6, v7
    v_lshlrev_b32 v6, 4, v6
    ds_read_b128 v[8:11], v6 offset:{KV0}
    s_waitcnt lgkmcnt(0)
    s_barrier
    s_nop 7
    s_mul_i32 s43, s22, 9216
    v_mul_u32_u24 v5, 144, v3
    v_lshl_add_u32 v5, v4, 4, v5
    v_add_u32 v5, s43, v5
    """)
    for T in range(2):
        for q in range(4):
            r = 64 + 16*T + 4*q
            a(f'ds_write_b128 v5, v[{r}:{r+3}] offset:{T*32*144 + q*32}')
    a(f"""
    v_lshrrev_b32 v5, 3, v0
    v_and_b32 v6, 15, v5
    v_lshrrev_b32 v7, 4, v5
    v_lshl_add_u32 v6, v7, 5, v6
    v_mul_u32_u24 v6, 144, v6
    v_and_b32 v7, 7, v0
    v_lshl_add_u32 v5, v7, 4, v6
    s_waitcnt lgkmcnt(0)
    s_barrier
    """)
    for w in range(4):
        for r in range(2):
            a(f'ds_read_b128 v[{40+8*w+4*r}:{43+8*w+4*r}], v5 offset:{w*9216 + r*16*144}')
    a('s_waitcnt lgkmcnt(0)')
    for r in range(2):
        for i in range(0, 4, 2):
            x = 40 + 4*r + i
            a(f"""
            v_pk_add_f32 v[{x}:{x+1}], v[{x}:{x+1}], v[{x+8}:{x+9}]
            v_pk_add_f32 v[{x+16}:{x+17}], v[{x+16}:{x+17}], v[{x+24}:{x+25}]
            v_pk_add_f32 v[{x}:{x+1}], v[{x}:{x+1}], v[{x+16}:{x+17}]
            """)
    for i in range(4):
        b0, b1 = 40 + i, 44 + i
        e = 2*i
        a.rnd2(b0, b1, 12)
        p0, p1 = 7 - e, 7 - (e+1)
        a(f"""
        v_and_b32 v13, 0xffff0000, v{8 + p0//2}
        v_lshlrev_b32 v14, 16, v{8 + p1//2}
        v_mul_f32 v13, v13, v39
        v_mul_f32 v14, v14, v39
        """)
        a.rnd2(13, 14, 12)
        a(f"""
        v_add_f32 v13, v13, v{b0}
        v_add_f32 v14, v14, v{b1}
        v_cvt_pk_bf16_f32 v{16+i}, v13, v14
        """)
    a("""
    v_lshlrev_b32 v3, 4, v0
    buffer_store_dwordx4 v[16:19], v3, s[32:35], 0 offen
    """)
    if STAMP:
        a('s_waitcnt vmcnt(0)')
    stamp(4)
    stamp_out(5)
    a.label('conv_done')
    a('s_endpgm')
    a.kernels.append((k, 96, 80, 96))

def ln_pk(X, npair, n_elems, Q, T, mask_last=False):
    a(f'v_pk_add_f32 v[{T}:{T+1}], v[{X}:{X+1}], v[{X+2}:{X+3}]')
    for i in range(2, npair):
        a(f'v_pk_add_f32 v[{T}:{T+1}], v[{T}:{T+1}], v[{X+2*i}:{X+2*i+1}]')
    a(f'v_add_f32 v{T}, v{T}, v{T+1}')
    a.wave_sum(T, T+1, 50)
    a(f"""
    v_mov_b32 v{T}, {1.0/n_elems!r}
    v_mul_f32 v{T+2}, s50, v{T}
    v_mul_f32 v{T+3}, s50, v{T}
    v_mov_b32 v{T+4}, 0
    v_mov_b32 v{T+5}, 0
    """)
    for i in range(npair):
        a(f'v_pk_add_f32 v[{T}:{T+1}], v[{X+2*i}:{X+2*i+1}], v[{T+2}:{T+3}] neg_lo:[0,1] neg_hi:[0,1]')
        if mask_last and i == npair-1:
            a(f"""
            v_cndmask_b32 v{T}, 0, v{T}, s[58:59]
            v_cndmask_b32 v{T+1}, 0, v{T+1}, s[58:59]
            """)
        a(f'v_pk_fma_f32 v[{T+4}:{T+5}], v[{T}:{T+1}], v[{T}:{T+1}], v[{T+4}:{T+5}]')
    a(f'v_add_f32 v{T}, v{T+4}, v{T+5}')
    a.wave_sum(T, T+1, 51)
    a(f"""
    v_mov_b32 v{T}, {1.0/n_elems!r}
    v_mul_f32 v{T+4}, s51, v{T}
    """)
    a.rnd2(T+2, T+4, T)
    a(f"""
    v_mov_b32 v{T+3}, v{T+2}
    v_add_f32 v{T+4}, 0x3727c5ac, v{T+4}
    v_cvt_pk_bf16_f32 v{T}, v{T+4}, v{T+4}
    v_lshlrev_b32 v{T+4}, 16, v{T}
    v_sqrt_f32 v{T+4}, v{T+4}
    s_nop 0
    v_cvt_pk_bf16_f32 v{T}, v{T+4}, v{T+4}
    v_lshlrev_b32 v{T+4}, 16, v{T}
    v_rcp_f32 v{T+6}, v{T+4}
    s_nop 0
    v_fma_f32 v{T}, -v{T+4}, v{T+6}, 2.0
    v_mul_f32 v{T+6}, v{T+6}, v{T}
    v_mov_b32 v{T+7}, v{T+6}
    """)
    for i in range(npair):
        q = Q + 2*i
        a(f'v_pk_add_f32 v[{q}:{q+1}], v[{X+2*i}:{X+2*i+1}], v[{T+2}:{T+3}] neg_lo:[0,1] neg_hi:[0,1]')
        a.rnd2(q, q+1, T)
        a(f'v_pk_mul_f32 v[{q}:{q+1}], v[{q}:{q+1}], v[{T+6}:{T+7}]')

def gen_row(k, xin_arg, xin_off, xout_off):
    a.begin(k)
    done = k + '_done'
    a(f"""
    s_cmp_ge_u32 s2, 256
    s_cbranch_scc1 {done}
    s_load_dwordx2 s[4:5], s[0:1], {xin_arg}
    s_load_dwordx2 s[14:15], s[0:1], {WS}
    v_lshrrev_b32 v1, 6, v0
    v_and_b32 v2, 63, v0
    s_lshl_b32 s17, s2, 3
    v_add_u32 v3, s17, v1
    v_mul_u32_u24 v3, 1280, v3
    v_lshl_add_u32 v3, v2, 2, v3
    s_waitcnt lgkmcnt(0)
    """)
    a.srd(24, 4, 2621440, xin_off)
    a.srd(28, 14, 640*P4, YYT)
    a.srd(32, 14, 2621440, xout_off)
    a.srd(36, 14, 2621440, HH)
    for j in range(5):
        a(f'buffer_load_dword v{8+j}, v3, s[24:27], 0 offen offset:{256*j}')
    a(f"""
    s_lshl_b32 s16, s2, 4
    v_mul_u32_u24 v4, {P4}, v0
    v_add_u32 v4, s16, v4
    v_add_u32 v5, {512*P4}, v4
    buffer_load_dwordx4 v[16:19], v4, s[28:31], 0 offen
    buffer_load_dwordx4 v[20:23], v5, s[28:31], 0 offen
    v_lshlrev_b32 v6, 4, v0
    s_waitcnt vmcnt(0)
    ds_write_b128 v6, v[16:19]
    ds_write_b128 v6, v[20:23] offset:8192
    v_lshlrev_b32 v4, 5, v2
    v_lshl_add_u32 v4, v1, 1, v4
    """)
    for j in range(5):
        a.unpack(16+2*j, 17+2*j, 8+j)
    a("""
    s_waitcnt lgkmcnt(0)
    s_barrier
    """)
    for j in range(5):
        a(f'ds_read_u16 v{40+2*j}, v4 offset:{2048*j}')
        a(f'ds_read_u16 v{41+2*j}, v4 offset:{2048*j + 16}')
    ln_pk(16, 5, 640, 28, 56)
    a('s_waitcnt lgkmcnt(0)')
    for j in range(10):
        a(f'v_lshlrev_b32 v{40+j}, 16, v{40+j}')
    for i in range(5):
        q, x, y = 28+2*i, 16+2*i, 40+2*i
        a.rnd2(q, q+1, 56)
        a(f'v_pk_mul_f32 v[{q}:{q+1}], v[{q}:{q+1}], v[{y}:{y+1}]')
        a.rnd2(q, q+1, 56)
        a(f'v_pk_add_f32 v[{x}:{x+1}], v[{x}:{x+1}], v[{q}:{q+1}]')
        a.rnd2(x, x+1, 8+i)
        a(f'buffer_store_dword v{8+i}, v3, s[32:35], 0 offen offset:{256*i}')
    ln_pk(16, 5, 640, 28, 56)
    for i in range(5):
        a(f'v_cvt_pk_bf16_f32 v{40+i}, v{28+2*i}, v{29+2*i}')
        a(f'buffer_store_dword v{40+i}, v3, s[36:39], 0 offen offset:{256*i}')
    a.label(done)
    a('s_endpgm')
    a.kernels.append((k, 64, 64, 64))

def gen_lnz():
    k = 'lnz_kernel'
    a.begin(k)
    a(f"""
    s_cmp_ge_u32 s2, 256
    s_cbranch_scc1 lnz_done
    s_load_dwordx2 s[14:15], s[0:1], {WS}
    v_lshrrev_b32 v1, 6, v0
    v_and_b32 v2, 63, v0
    s_lshl_b32 s17, s2, 3
    v_add_u32 v3, s17, v1
    v_mul_u32_u24 v3, 3456, v3
    v_lshl_add_u32 v3, v2, 2, v3
    v_cmp_gt_u32 s[58:59], 48, v2
    v_add_u32 v4, {1728 + 256*6}, v3
    s_nop 0
    v_cndmask_b32 v4, -1, v4, s[58:59]
    s_waitcnt lgkmcnt(0)
    """)
    a.srd(24, 14, 7077888, ZZ)
    a.srd(28, 14, 864*P4, Z2T)
    for j in range(6):
        a(f'buffer_load_dword v{8+j}, v3, s[24:27], 0 offen offset:{1728 + 256*j}')
    a("""
    buffer_load_dword v14, v4, s[24:27], 0 offen
    v_lshlrev_b32 v4, 5, v2
    v_lshl_add_u32 v4, v1, 1, v4
    s_waitcnt vmcnt(0)
    """)
    for j in range(7):
        a.unpack(16+2*j, 17+2*j, 8+j)
    ln_pk(16, 7, 864, 32, 56, mask_last=True)
    for j in range(7):
        a(f"""
        v_cvt_pk_bf16_f32 v{8+j}, v{32+2*j}, v{33+2*j}
        ds_write_b16 v4, v{8+j} offset:{2048*j}
        ds_write_b16_d16_hi v4, v{8+j} offset:{2048*j + 16}
        """)
    a(f"""
    s_waitcnt lgkmcnt(0)
    s_barrier
    v_lshlrev_b32 v4, 4, v0
    ds_read_b128 v[8:11], v4
    ds_read_b128 v[12:15], v4 offset:8192
    s_lshl_b32 s16, s2, 4
    v_mul_u32_u24 v3, {P4}, v0
    v_add_u32 v3, s16, v3
    v_add_u32 v5, {512*P4}, v3
    s_waitcnt lgkmcnt(0)
    buffer_store_dwordx4 v[8:11], v3, s[28:31], 0 offen
    buffer_store_dwordx4 v[12:15], v5, s[28:31], 0 offen
    """)
    a.label('lnz_done')
    a('s_endpgm')
    a.kernels.append((k, 64, 64, 64))

def gen_gemm(k, WM, WN, BK, K, M, N, A_src, B_src, epi, D=4, GM=2, GN=4, ldb=None):
    ldb = ldb or K*2
    BM, BN = GM*WM, GN*WN
    NT = 64*GM*GN
    TM, TN = WM//32, WN//32
    nmt, nnt = M//BM, -(-N//BN)
    rowb = 128
    nsteps = K//BK
    Abytes, Bbytes = BM*rowb, BN*rowb
    stage = Abytes + Bbytes
    PB = NT*16
    nla, nlb = Abytes//PB, Bbytes//PB
    nl = nla + nlb
    RPL = NT//8
    done = k + '_done'
    a.begin(k)
    a(f"""
    s_cmp_ge_u32 s2, {nmt*nnt}
    s_cbranch_scc1 {done}
    """)
    stamp(0)
    a(f"""
    s_load_dwordx2 s[4:5], s[0:1], {A_src[0]}
    s_load_dwordx2 s[6:7], s[0:1], {B_src[0]}
    s_load_dwordx2 s[14:15], s[0:1], {WS}
    s_load_dwordx2 s[10:11], s[0:1], {B_BSP}
    s_load_dwordx2 s[12:13], s[0:1], {OUT}
    s_and_b32 s16, s2, {nmt-1}
    s_lshr_b32 s17, s2, {nmt.bit_length()-1}
    s_mul_i32 s18, s16, {BM}
    s_mul_i32 s19, s17, {BN}
    v_lshrrev_b32 v1, 6, v0
    v_lshlrev_b32 v1, 10, v1
    s_nop 0
    v_readfirstlane_b32 s22, v1
    s_waitcnt lgkmcnt(0)
    """)
    a.srd(24, 4, M*K*2, A_src[1])
    a.srd(28, 6, N*ldb, B_src[1])
    a(f"""
    v_lshrrev_b32 v1, 3, v0
    v_and_b32 v2, 7, v0
    v_lshrrev_b32 v3, 1, v1
    v_and_b32 v3, 7, v3
    v_xor_b32 v2, v2, v3
    v_lshlrev_b32 v2, 4, v2
    v_add_u32 v3, s18, v1
    v_mul_u32_u24 v3, {K*2}, v3
    v_add_u32 v4, v3, v2
    v_add_u32 v3, s19, v1
    v_mul_u32_u24 v3, {ldb}, v3
    v_add_u32 v8, v3, v2
    """)
    for i in range(1, nla):
        a(f'v_add_u32 v{4+i}, {RPL*i*K*2}, v4')
    for i in range(1, nlb):
        a(f'v_add_u32 v{8+i}, {RPL*i*ldb}, v8')
    a(f"""
    v_lshrrev_b32 v1, 6, v0
    v_and_b32 v2, 63, v0
    v_and_b32 v3, 31, v2
    v_lshrrev_b32 v20, 5, v2
    v_and_b32 v21, {GM-1}, v1
    v_lshrrev_b32 v22, {GM.bit_length()-1}, v1
    """)
    nkk = 4
    AB, AR = 12, 24
    for (isB, wsel, W, R) in ((0, 21, WM, AB), (1, 22, WN, AB+4)):
        a(f"""
        v_mul_u32_u24 v23, {W}, v{wsel}
        v_add_u32 v23, v23, v3
        v_lshrrev_b32 v{R}, 1, v23
        v_and_b32 v{R}, 7, v{R}
        v_xor_b32 v{R}, v{R}, v20
        v_mul_u32_u24 v23, {rowb}, v23
        """)
        if isB:
            a(f'v_add_u32 v23, {Abytes}, v23')
        for kk in range(3, -1, -1):
            a(f"""
            v_xor_b32 v{R+kk}, {2*kk}, v{R}
            v_lshl_add_u32 v{R+kk}, v{R+kk}, 4, v23
            """)
    FA = 32
    FB = FA + 4*TM*2
    ACC = 64
    nacc = TM*TN*16
    EPR = ACC + nacc
    global G_EPR, G_BM, G_BN
    G_EPR = EPR
    global G_NT
    G_BM, G_BN = BM, BN
    G_NT = NT
    assert FB + 4*TN*2 <= ACC
    for i in range(nacc):
        a(f'v_mov_b32 v{ACC+i}, 0')
    a(f"""
    v_mul_u32_u24 v23, {WM}, v21
    v_add_u32 v23, v23, v3
    v_add_u32 v{EPR}, s18, v23
    v_mul_u32_u24 v23, {WN}, v22
    v_lshlrev_b32 v{EPR+1}, 2, v20
    v_add_u32 v23, v23, v{EPR+1}
    v_add_u32 v{EPR+1}, s19, v23
    """)
    epi(TM, TN, ACC, True)
    def gload():
        for i in range(nl):
            a(f's_add_u32 m0, s55, {i*PB}')
            a('s_nop 0')
            if i < nla:
                a(f'buffer_load_dwordx4 v{4+i}, s[24:27], s20 offen lds')
            else:
                a(f'buffer_load_dwordx4 v{8+i-nla}, s[28:31], s20 offen lds')
        a(f"""
        s_add_u32 s20, s20, {rowb}
        s_add_u32 s55, s55, {stage}
        s_cmp_lt_u32 s55, {D*stage}
        s_cselect_b32 s55, s55, s22
        """)
    lp, lm, lw, lnl = [a.newlabel(x) for x in ('gp', 'gm', 'gw', 'gn')]
    a(f"""
    s_mov_b32 s20, 0
    s_mov_b32 s55, s22
    s_mov_b32 s48, 0
    s_mov_b32 s49, 0
    """)
    stamp(1)
    a.label(lp)
    gload()
    a(f"""
    s_add_u32 s48, s48, 1
    s_cmp_lt_u32 s48, {D-1}
    s_cbranch_scc1 {lp}
    s_mov_b32 s48, 0
    """)
    stamp(2)
    a.label(lm)
    a(f"""
    s_cmp_lt_u32 s48, {nsteps-(D-2)}
    s_cbranch_scc1 {lw}
    s_waitcnt vmcnt(0)
    """)
    a.label(lw)
    a(f"""
    s_waitcnt vmcnt({nl*(D-2)})
    s_barrier
    """)
    for i in range(8):
        a(f'v_add_u32 v{AR+i}, s49, v{AB+i}')
    def rd(kk, s):
        for i in range(TM):
            f = FA + 4*(s*TM + i)
            a(f'ds_read_b128 v[{f}:{f+3}], v{AR+kk} offset:{i*32*rowb}')
        for i in range(TN):
            f = FB + 4*(s*TN + i)
            a(f'ds_read_b128 v[{f}:{f+3}], v{AR+4+kk} offset:{i*32*rowb}')
    rd(0, 0)
    a(f"""
    s_cmp_lt_u32 s48, {nsteps-(D-1)}
    s_cbranch_scc0 {lnl}
    """)
    lend = a.newlabel('gx')
    for withload in (True, False):
        if not withload:
            a.label(lnl)
        nm = 0
        li = 0
        tot = nkk*TM*TN
        for kk in range(nkk):
            s_ = kk & 1
            if kk + 1 < nkk:
                rd(kk+1, s_ ^ 1)
                a(f's_waitcnt lgkmcnt({TM+TN})')
            else:
                a('s_waitcnt lgkmcnt(0)')
            for i in range(TM):
                for j in range(TN):
                    fa = FA + 4*(s_*TM + i)
                    fb = FB + 4*(s_*TN + j)
                    c = ACC + 16*(i*TN + j)
                    a(f'v_mfma_f32_32x32x16_bf16 v[{c}:{c+15}], v[{fb}:{fb+3}], v[{fa}:{fa+3}], v[{c}:{c+15}]')
                    nm += 1
                    if withload:
                        while li < nl and li * tot < nm * nl:
                            a(f's_add_u32 m0, s55, {li*PB}')
                            a('s_nop 0')
                            if li < nla:
                                a(f'buffer_load_dwordx4 v{4+li}, s[24:27], s20 offen lds')
                            else:
                                a(f'buffer_load_dwordx4 v{8+li-nla}, s[28:31], s20 offen lds')
                            li += 1
        if withload:
            a(f"""
            s_add_u32 s20, s20, {rowb}
            s_add_u32 s55, s55, {stage}
            s_cmp_lt_u32 s55, {D*stage}
            s_cselect_b32 s55, s55, s22
            s_branch {lend}
            """)
    a.label(lend)
    a(f"""
    s_add_u32 s49, s49, {stage}
    s_cmp_lt_u32 s49, {D*stage}
    s_cselect_b32 s49, s49, 0
    s_add_u32 s48, s48, 1
    s_cmp_lt_u32 s48, {nsteps}
    s_cbranch_scc1 {lm}
    s_nop 7
    s_nop 7
    """)
    stamp(3)
    a('s_barrier')
    le = a.newlabel('ge')
    lg = TN.bit_length() - 1
    epi(TM, TN, ACC, 'setup')
    a('s_mov_b32 s48, 0')
    a.label(le)
    a(f"""
    s_lshl_b32 s56, s48, 2
    s_lshr_b32 s49, s48, {2+lg}
    s_lshl_b32 s49, s49, 5
    s_lshr_b32 s55, s48, 2
    s_and_b32 s55, s55, {TN-1}
    s_lshl_b32 s55, s55, 5
    s_and_b32 s20, s48, 3
    s_lshl_b32 s20, s20, 3
    s_add_u32 s55, s55, s20
    s_set_gpr_idx_on s56, gpr_idx(SRC0)
    v_mov_b32 v40, v{ACC}
    v_mov_b32 v41, v{ACC+1}
    v_mov_b32 v42, v{ACC+2}
    v_mov_b32 v43, v{ACC+3}
    s_set_gpr_idx_off
    v_add_u32 v4, s49, v{EPR}
    v_add_u32 v5, s55, v{EPR+1}
    """)
    epi(TM, TN, ACC, 'body')
    a(f"""
    s_add_u32 s48, s48, 1
    s_cmp_lt_u32 s48, {nacc//4}
    s_cbranch_scc1 {le}
    s_waitcnt lgkmcnt(0)
    s_barrier
    """)
    epi(TM, TN, ACC, 'out')
    a('s_waitcnt vmcnt(0)')
    stamp(4)
    stamp_out(5)
    a.label(done)
    a('s_endpgm')
    lds = D*stage
    a.kernels.append((k, EPR + 4 + 24, 80, EPR + 4 + 24))
    return nmt*nnt, lds, NT

def gelu_regs(x, t0, t1):
    a(f'''
    v_mul_f32 v{t0}, v{x}, v{x}
    v_mul_f32 v{t0}, v{t0}, v{x}
    v_fma_f32 v{t0}, v{t0}, s46, v{x}
    v_mul_f32 v{t0}, s47, v{t0}
    v_exp_f32 v{t0}, v{t0}
    s_nop 0
    v_add_f32 v{t0}, 1.0, v{t0}
    v_rcp_f32 v{t0}, v{t0}
    s_nop 0
    v_fma_f32 v{t0}, v{t0}, -2.0, 2.0
    v_mul_f32 v{t1}, 0.5, v{x}
    v_mul_f32 v{x}, v{t1}, v{t0}
    ''')

def tile_addr():
    pitch = G_BN*2 + 16
    a(f"""
    v_subrev_u32 v6, s18, v4
    v_mul_u32_u24 v6, {pitch}, v6
    v_subrev_u32 v7, s19, v5
    v_lshl_add_u32 v7, v7, 1, v6
    """)

def out_chunks(t=4):
    cpr = G_BN // 8
    n = G_BM*G_BN*2//16//G_NT
    pitch = G_BN*2 + 16
    sh = cpr.bit_length()-1
    for i in range(n):
        a(f"""
        v_add_u32 v{t+2}, {G_NT*i}, v0
        v_lshrrev_b32 v{t}, {sh}, v{t+2}
        v_and_b32 v{t+1}, {cpr-1}, v{t+2}
        v_lshlrev_b32 v{t+1}, 3, v{t+1}
        v_mul_u32_u24 v{t+3}, {pitch}, v{t}
        v_lshl_add_u32 v{t+3}, v{t+1}, 1, v{t+3}
        v_add_u32 v{t}, s18, v{t}
        v_add_u32 v{t+1}, s19, v{t+1}
        """)
        yield i

def epi_gemm1(TM, TN, ACC, pre):
    if pre is True:
        return
    if pre == 'setup':
        a.srd(32, 14, 7077888, ZZ)
        a("""
        v_mov_b32 v48, 0x3dd2d3e8
        v_mov_b32 v49, 0x3dd2d3e8
        v_mov_b32 v50, 0x40135761
        v_mov_b32 v51, 0x40135761
        v_mov_b32 v52, 1.0
        v_mov_b32 v53, 1.0
        """)
        return
    if pre == 'out':
        for i in out_chunks():
            r = 32 + 4*(i % 8)
            a(f"""
            ds_read_b128 v[{r}:{r+3}], v7
            v_mul_u32_u24 v6, 3456, v4
            v_cmp_gt_u32 vcc, 1728, v5
            v_lshl_add_u32 v6, v5, 1, v6
            s_nop 0
            v_cndmask_b32 v6, -1, v6, vcc
            s_waitcnt lgkmcnt(0)
            buffer_store_dwordx4 v[{r}:{r+3}], v6, s[32:35], 0 offen
            """)
        return
    a.rnd2(40, 41, 8)
    a.rnd2(42, 43, 9)
    a("""
    v_pk_mul_f32 v[44:45], v[40:41], v[40:41]
    v_pk_mul_f32 v[46:47], v[42:43], v[42:43]
    v_pk_fma_f32 v[44:45], v[44:45], v[48:49], v[50:51]
    v_pk_fma_f32 v[46:47], v[46:47], v[48:49], v[50:51]
    v_pk_mul_f32 v[44:45], v[44:45], v[40:41]
    v_pk_mul_f32 v[46:47], v[46:47], v[42:43]
    v_exp_f32 v44, v44
    v_exp_f32 v45, v45
    v_exp_f32 v46, v46
    v_exp_f32 v47, v47
    v_pk_add_f32 v[44:45], v[44:45], v[52:53]
    v_pk_add_f32 v[46:47], v[46:47], v[52:53]
    v_rcp_f32 v44, v44
    v_rcp_f32 v45, v45
    v_rcp_f32 v46, v46
    v_rcp_f32 v47, v47
    """)
    tile_addr()
    a("""
    v_pk_fma_f32 v[40:41], v[40:41], v[44:45], v[40:41] neg_lo:[1,0,0] neg_hi:[1,0,0]
    v_pk_fma_f32 v[42:43], v[42:43], v[46:47], v[42:43] neg_lo:[1,0,0] neg_hi:[1,0,0]
    v_cvt_pk_bf16_f32 v10, v40, v41
    v_cvt_pk_bf16_f32 v11, v42, v43
    ds_write_b64 v7, v[10:11]
    """)

def epi_gemm2(TM, TN, ACC, pre):
    E = G_EPR
    R, C = E, E+1
    Z = E + 2 + (E+2) % 4
    Z = ((E + 2 + 3)//4)*4
    BS = Z + 16
    if pre is True:
        a.srd(32, 14, 7077888, ZZ)
        a.srd(44, 10, 4096)
        for i in range(TM):
            a(f"""
            v_add_u32 v23, {32*i}, v{R}
            v_lshlrev_b32 v{BS+4}, 1, v23
            buffer_load_ushort v{BS+i}, v{BS+4}, s[44:47], 0 offen
            """)
        for i in out_chunks(40):
            a(f"""
            v_mul_u32_u24 v42, 3456, v40
            v_cmp_gt_u32 vcc, 864, v41
            v_lshl_add_u32 v42, v41, 1, v42
            s_nop 0
            v_cndmask_b32 v42, -1, v42, vcc
            buffer_load_dwordx4 v[{Z+4*i}:{Z+4*i+3}], v42, s[32:35], 0 offen
            """)
        return
    if pre == 'setup':
        a.srd(36, 14, 3670016, UU)
        for i in range(TM):
            a(f'v_lshlrev_b32 v{BS+i}, 16, v{BS+i}')
        return
    if pre == 'out':
        for i in out_chunks():
            a(f"""
            ds_read_b128 v[32:35], v7
            v_mul_u32_u24 v6, 1792, v4
            v_lshl_add_u32 v6, v5, 1, v6
            s_waitcnt lgkmcnt(0)
            """)
            for w in range(4):
                a.unpack(36, 37, 32+w)
                a.unpack(38, 39, Z+4*i+w)
                a(f"""
                v_mul_f32 v36, v36, v38
                v_mul_f32 v37, v37, v39
                v_cvt_pk_bf16_f32 v{Z+4*i+w}, v36, v37
                """)
            a(f'buffer_store_dwordx4 v[{Z+4*i}:{Z+4*i+3}], v6, s[36:39], 0 offen')
        return
    lg = TN.bit_length() - 1
    a(f"""
    s_lshr_b32 s56, s48, {2+lg}
    s_set_gpr_idx_on s56, gpr_idx(SRC0)
    v_mov_b32 v12, v{BS}
    s_set_gpr_idx_off
    """)
    tile_addr()
    a.rnd2(40, 41, 8)
    a.rnd2(42, 43, 9)
    for e in range(4):
        a(f'v_add_f32 v{40+e}, v{40+e}, v12')
    a("""
    v_cvt_pk_bf16_f32 v10, v40, v41
    v_cvt_pk_bf16_f32 v11, v42, v43
    ds_write_b64 v7, v[10:11]
    """)

def make_epi_gemm3(xin_off, out_ws_off):
    def epi(TM, TN, ACC, pre):
        E = G_EPR
        Z = ((E + 2 + 3)//4)*4
        if pre is True:
            a.srd(32, 14, 2621440, xin_off)
            for i in out_chunks(40):
                a(f"""
                v_mul_u32_u24 v42, 1280, v40
                v_lshl_add_u32 v42, v41, 1, v42
                buffer_load_dwordx4 v[{Z+4*i}:{Z+4*i+3}], v42, s[32:35], 0 offen
                """)
            return
        if pre == 'setup':
            if out_ws_off is None:
                a.srd(36, 12, 2621440)
            else:
                a.srd(36, 14, 2621440, out_ws_off)
            return
        if pre == 'out':
            for i in out_chunks():
                a(f"""
                ds_read_b128 v[32:35], v7
                v_mul_u32_u24 v6, 1280, v4
                v_lshl_add_u32 v6, v5, 1, v6
                s_waitcnt lgkmcnt(0)
                """)
                for w in range(4):
                    a.unpack(36, 37, 32+w)
                    a.unpack(38, 39, Z+4*i+w)
                    a(f"""
                    v_add_f32 v36, v36, v38
                    v_add_f32 v37, v37, v39
                    v_cvt_pk_bf16_f32 v{Z+4*i+w}, v36, v37
                    """)
                a(f'buffer_store_dwordx4 v[{Z+4*i}:{Z+4*i+3}], v6, s[36:39], 0 offen')
            return
        tile_addr()
        a("""
        v_cvt_pk_bf16_f32 v10, v40, v41
        v_cvt_pk_bf16_f32 v11, v42, v43
        ds_write_b64 v7, v[10:11]
        """)
    return epi

gen_prep()
gen_conv()
gen_row('rowa_kernel', A_Q, 0, X1)
gen_row('rowb_kernel', WS, X2, X3)
gen_lnz()
g1, l1, t1 = gen_gemm('gemm1_kernel', 64, 32, 64, 640, 2048, 1728, (WS, HH), (WS, WINT), epi_gemm1, D=4, GM=2, GN=4)
g2, l2, t2 = gen_gemm('gemm2_kernel', 32, 32, 64, 2048, 2048, 864, (B_WSP, 0), (WS, Z2T), epi_gemm2, D=4, GM=4, GN=2, ldb=P4)
g3, l3, t3 = gen_gemm('gemm3a_kernel', 32, 32, 64, 896, 2048, 640, (WS, UU), (WS, WOUTT), make_epi_gemm3(X1, X2), D=4, GM=4, GN=2)
g3, l3, t3 = gen_gemm('gemm3b_kernel', 32, 32, 64, 896, 2048, 640, (WS, UU), (WS, WOUTT), make_epi_gemm3(X3, None), D=4, GM=4, GN=2)

launches = [
    ('prep_kernel', 1460, 5120, 256),
    ('conv_kernel', 640, CONV_LDS, 256),
    ('rowa_kernel', 256, 16384, 512),
    ('gemm1_kernel', g1, l1, t1),
    ('lnz_kernel', 256, 16384, 512),
    ('gemm2_kernel', g2, l2, t2),
    ('gemm3a_kernel', g3, l3, t3),
    ('rowb_kernel', 256, 16384, 512),
    ('gemm1_kernel', g1, l1, t1),
    ('lnz_kernel', 256, 16384, 512),
    ('gemm2_kernel', g2, l2, t2),
    ('gemm3b_kernel', g3, l3, t3),
]

ref = open('cdna_kernels/' + NAME + '.s.ref').read().split('\n')
head = [l for l in ref if l.startswith(';') and '@launch' not in l]
out = head[:]
for (k, g, lds, nt) in launches:
    out.append(f'; @launch kernel={k} grid=({g},1,1) block=({nt},1,1) lds={lds}')
out.append('.amdgcn_target "amdgcn-amd-amdhsa--gfx950"')
out.append('.text')
out += a.L
out.append('.section .rodata,"a"')
for (k, v, s, acc) in a.kernels:
    out.append('.p2align 6')
    out.append(f'.amdhsa_kernel {k}')
    out.append(f'  .amdhsa_next_free_vgpr {v}')
    out.append(f'  .amdhsa_next_free_sgpr {s}')
    out.append(f'  .amdhsa_accum_offset {((acc+3)//4)*4}')
    out.append('  .amdhsa_group_segment_fixed_size 0')
    out.append('  .amdhsa_kernarg_size 112')
    out.append('  .amdhsa_user_sgpr_count 2')
    out.append('  .amdhsa_user_sgpr_kernarg_segment_ptr 1')
    out.append('  .amdhsa_system_sgpr_workgroup_id_x 1')
    out.append('.end_amdhsa_kernel')
open('stamp.s' if STAMP else 'cdna_kernels/' + NAME + '.s', 'w').write('\n'.join(out) + '\n')
print('ok', len(out), 'lines', g1, l1, g2, l2, g3, l3)
```

```python
NAME = "interleave_layers__ssm_conv_h3__mixer_gmlp__prompt"

KVR = 0x0
P4 = 4352
YYT = 0x300000
WINT = 0x600000
WOUTT = 0x900000
X1 = 0xB00000
X2 = 0xE00000
X3 = 0x1100000
HH = 0x1400000
ZZ = 0x1700000
Z2T = 0x1E00000
UU = 0x2200000

A_Q, A_K, A_V, A_SK, A_SSMK, A_D, B_X, B_WIN, B_WSP, B_BSP, B_WOUT, OUT, DBG, WS = [8*i for i in range(14)]

class Asm:
    def __init__(self):
        self.L = []
        self.kernels = []
        self.launches = []
        self.uid = 0
    def __call__(self, s):
        for line in s.strip().split('\n'):
            self.L.append('    ' + line.strip())
    def label(self, l):
        self.L.append(l + ':')
    def newlabel(self, p='L'):
        self.uid += 1
        return f'{p}_{self.uid}'
    def begin(self, label):
        self.L.append('.globl ' + label)
        self.L.append('.p2align 8')
        self.L.append(f'.type {label},@function')
        self.label(label)
    def srd(self, d, p, nbytes, off=0):
        if off:
            self(f's_add_u32 s{d}, s{p}, {off}')
            self(f's_addc_u32 s{d+1}, s{p+1}, 0')
        else:
            self(f's_mov_b32 s{d}, s{p}')
            self(f's_mov_b32 s{d+1}, s{p+1}')
        self(f's_mov_b32 s{d+2}, {nbytes}')
        self(f's_mov_b32 s{d+3}, 0x00020000')
    def rnd2(self, a, b, t):
        self(f'v_cvt_pk_bf16_f32 v{t}, v{a}, v{b}')
        self(f'v_lshlrev_b32 v{a}, 16, v{t}')
        self(f'v_and_b32 v{b}, 0xffff0000, v{t}')
    def unpack(self, lo, hi, src):
        self(f'v_lshlrev_b32 v{lo}, 16, v{src}')
        self(f'v_and_b32 v{hi}, 0xffff0000, v{src}')
    def wave_sum(self, v, t, sdst):
        self('s_nop 1')
        self(f'v_add_f32_dpp v{t}, v{v}, v{v} quad_perm:[1,0,3,2] row_mask:0xf bank_mask:0xf')
        self('s_nop 1')
        self(f'v_add_f32_dpp v{v}, v{t}, v{t} quad_perm:[2,3,0,1] row_mask:0xf bank_mask:0xf')
        self('s_nop 1')
        self(f'v_add_f32_dpp v{t}, v{v}, v{v} row_half_mirror row_mask:0xf bank_mask:0xf')
        self('s_nop 1')
        self(f'v_add_f32_dpp v{v}, v{t}, v{t} row_mirror row_mask:0xf bank_mask:0xf')
        self('s_nop 0')
        self(f'v_readlane_b32 s52, v{v}, 16')
        self(f'v_readlane_b32 s53, v{v}, 32')
        self(f'v_readlane_b32 s54, v{v}, 48')
        self('s_nop 1')
        self(f'v_add_f32 v{v}, s52, v{v}')
        self(f'v_add_f32 v{v}, s53, v{v}')
        self(f'v_add_f32 v{v}, s54, v{v}')
        self('s_nop 0')
        self(f'v_readlane_b32 s{sdst}, v{v}, 0')
        self('s_nop 1')

a = Asm()
import os
STAMP = os.environ.get('STAMP') == '1'
def stamp(i):
    if STAMP:
        a(f's_memtime s[{60+2*i}:{61+2*i}]')
def stamp_out(n):
    if STAMP:
        a(f"""
        s_load_dwordx2 s[4:5], s[0:1], {DBG}
        s_waitcnt lgkmcnt(0)
        s_cmp_lg_u32 s2, 5
        s_cbranch_scc1 skipst_{a.uid}
        """)
        a.srd(8, 4, 256)
        for i in range(n):
            a(f"""
            v_mov_b32 v1, s{60+2*i}
            v_mov_b32 v2, {4*i}
            buffer_store_dword v1, v2, s[8:11], 0 offen
            """)
        a.label(f'skipst_{a.uid}')
        a.uid += 1


def gen_prep():
    k = 'prep_kernel'
    a.begin(k)
    a(f'''
    s_cmp_ge_u32 s2, 1460
    s_cbranch_scc1 prep_done
    s_load_dwordx2 s[4:5], s[0:1], {A_K}
    s_load_dwordx2 s[6:7], s[0:1], {A_V}
    s_load_dwordx2 s[8:9], s[0:1], {A_SK}
    s_load_dwordx2 s[10:11], s[0:1], {B_WIN}
    s_load_dwordx2 s[12:13], s[0:1], {B_WOUT}
    s_load_dwordx2 s[14:15], s[0:1], {WS}
    v_lshrrev_b32 v1, 3, v0
    v_and_b32 v2, 7, v0
    s_waitcnt lgkmcnt(0)
    s_cmp_ge_u32 s2, 640
    s_cbranch_scc1 prep_tr
    ''')
    a(f'''
    s_mov_b32 s16, 429496730
    s_mul_hi_u32 s17, s2, s16
    s_mul_i32 s18, s17, 10
    s_sub_u32 s18, s2, s18
    s_lshl_b32 s19, s17, 5
    s_lshl_b32 s20, s18, 6
    ''')
    a.srd(24, 4, 2621440)
    a.srd(28, 6, 2621440)
    a.srd(32, 8, 5120)
    a.srd(36, 14, 640*P4, KVR)
    a(f'''
    v_add_u32 v3, s19, v1
    v_mul_u32_u24 v3, 1280, v3
    v_lshlrev_b32 v4, 4, v2
    v_add_u32 v3, v3, v4
    s_lshl_b32 s21, s20, 1
    v_add_u32 v3, s21, v3
    v_subrev_u32 v5, 1280, v3
    v_subrev_u32 v6, 2560, v3
    v_subrev_u32 v7, 3840, v3
    buffer_load_dwordx4 v[8:11], v3, s[24:27], 0 offen
    buffer_load_dwordx4 v[12:15], v5, s[24:27], 0 offen
    buffer_load_dwordx4 v[16:19], v6, s[24:27], 0 offen
    buffer_load_dwordx4 v[20:23], v7, s[24:27], 0 offen
    buffer_load_dwordx4 v[24:27], v3, s[28:31], 0 offen
    v_lshlrev_b32 v4, 6, v2
    s_lshl_b32 s21, s20, 3
    v_add_u32 v4, s21, v4
    buffer_load_dwordx4 v[28:31], v4, s[32:35], 0 offen
    buffer_load_dwordx4 v[32:35], v4, s[32:35], 0 offen offset:16
    buffer_load_dwordx4 v[36:39], v4, s[32:35], 0 offen offset:32
    buffer_load_dwordx4 v[40:43], v4, s[32:35], 0 offen offset:48
    ''')
    a('''
    v_mul_u32_u24 v44, 640, v2
    v_sub_u32 v45, 31, v1
    v_lshlrev_b32 v45, 1, v45
    v_add_u32 v44, v44, v45
    s_waitcnt vmcnt(0)
    ''')
    for e in range(8):
        w = e // 2
        def g(dst, base):
            if e % 2 == 0:
                a(f'v_lshlrev_b32 v{dst}, 16, v{base+w}')
            else:
                a(f'v_and_b32 v{dst}, 0xffff0000, v{base+w}')
        g(50, 8); g(51, 12); g(52, 16); g(53, 20); g(54, 24)
        a.unpack(55, 56, 28 + 2*e)
        a.unpack(57, 58, 29 + 2*e)
        a(f'''
        v_mul_f32 v60, v53, v58
        v_mul_f32 v61, v52, v57
        ''')
        a.rnd2(60, 61, 62)
        a(f'''
        v_add_f32 v60, v60, v61
        v_mul_f32 v61, v51, v56
        ''')
        a.rnd2(60, 61, 62)
        a(f'''
        v_add_f32 v60, v60, v61
        v_mul_f32 v61, v50, v55
        ''')
        a.rnd2(60, 61, 62)
        a(f'''
        v_add_f32 v60, v60, v61
        v_cvt_pk_bf16_f32 v62, v60, v60
        v_lshlrev_b32 v60, 16, v62
        v_mul_f32 v60, v60, v54
        v_cvt_pk_bf16_f32 v62, v60, v60
        ds_write_b16 v44, v62 offset:{80*e}
        ''')
    a(f'''
    s_waitcnt lgkmcnt(0)
    s_barrier
    v_lshrrev_b32 v45, 2, v0
    v_and_b32 v46, 3, v0
    v_mul_u32_u24 v47, 80, v45
    v_lshlrev_b32 v48, 4, v46
    v_add_u32 v47, v47, v48
    ds_read_b128 v[8:11], v47
    v_add_u32 v45, s20, v45
    v_mul_u32_u24 v45, {P4}, v45
    s_sub_u32 s21, 2016, s19
    s_lshl_b32 s21, s21, 1
    v_add_u32 v45, s21, v45
    v_add_u32 v45, v45, v48
    s_waitcnt lgkmcnt(0)
    buffer_store_dwordx4 v[8:11], v45, s[36:39], 0 offen
    s_branch prep_done
    ''')
    a.label('prep_tr')
    a('''
    s_sub_u32 s16, s2, 640
    s_cmp_ge_u32 s16, 540
    s_cbranch_scc1 prep_tr2
    ''')
    a(f'''
    s_mov_b32 s17, 159072863
    s_mul_hi_u32 s18, s16, s17
    s_mul_i32 s19, s18, 27
    s_sub_u32 s19, s16, s19
    s_mov_b32 s20, 640
    s_mov_b32 s21, 1728
    ''')
    a.srd(24, 10, 2211840)
    a.srd(28, 14, 2211840, WINT)
    a('s_branch prep_tr3')
    a.label('prep_tr2')
    a(f'''
    s_sub_u32 s16, s16, 540
    s_mov_b32 s17, 429496730
    s_mul_hi_u32 s18, s16, s17
    s_mul_i32 s19, s18, 10
    s_sub_u32 s19, s16, s19
    s_mov_b32 s20, 896
    s_mov_b32 s21, 640
    ''')
    a.srd(24, 12, 1105920)
    a.srd(28, 14, 1146880, WOUTT)
    a.label('prep_tr3')
    a('''
    s_lshl_b32 s22, s18, 5
    s_lshl_b32 s23, s19, 6
    v_add_u32 v3, s22, v1
    v_mul_lo_u32 v3, v3, s21
    v_lshlrev_b32 v4, 3, v2
    v_add_u32 v3, v3, v4
    v_add_u32 v3, s23, v3
    v_lshlrev_b32 v3, 1, v3
    buffer_load_dwordx4 v[8:11], v3, s[24:27], 0 offen
    v_mul_u32_u24 v44, 640, v2
    v_lshlrev_b32 v45, 1, v1
    v_add_u32 v44, v44, v45
    s_waitcnt vmcnt(0)
    ''')
    for e in range(8):
        if e % 2 == 0:
            a(f'ds_write_b16 v44, v{8+e//2} offset:{80*e}')
        else:
            a(f'ds_write_b16_d16_hi v44, v{8+e//2} offset:{80*e}')
    a('''
    s_waitcnt lgkmcnt(0)
    s_barrier
    v_lshrrev_b32 v45, 2, v0
    v_and_b32 v46, 3, v0
    v_mul_u32_u24 v47, 80, v45
    v_lshlrev_b32 v48, 4, v46
    v_add_u32 v47, v47, v48
    ds_read_b128 v[8:11], v47
    v_add_u32 v45, s23, v45
    v_mul_lo_u32 v45, v45, s20
    v_add_u32 v45, s22, v45
    v_lshlrev_b32 v45, 1, v45
    v_add_u32 v45, v45, v48
    s_waitcnt lgkmcnt(0)
    buffer_store_dwordx4 v[8:11], v45, s[28:31], 0 offen
    ''')
    a.label('prep_done')
    a('s_endpgm')
    a.kernels.append((k, 64, 48, 64))

HP = 4384
NHC = 4
KV0 = NHC * HP
KVSZ = 9216 + 64
KV1 = KV0 + KVSZ
CONV_LDS = max(KV1 + KVSZ, 4*64*144)
def gen_conv():
    k = 'conv_kernel'
    a.begin(k)
    a(f"""
    s_cmp_ge_u32 s2, 640
    s_cbranch_scc1 conv_done
    """)
    stamp(0)
    a(f"""
    s_load_dwordx2 s[4:5], s[0:1], {A_SSMK}
    s_load_dwordx2 s[6:7], s[0:1], {A_D}
    s_load_dwordx2 s[14:15], s[0:1], {WS}
    s_lshl_b32 s16, s2, 12
    v_lshrrev_b32 v1, 6, v0
    s_nop 0
    v_readfirstlane_b32 s22, v1
    s_waitcnt lgkmcnt(0)
    s_add_u32 s4, s4, s16
    s_addc_u32 s5, s5, 0
    s_mul_i32 s16, s2, {P4}
    s_add_u32 s8, s14, s16
    s_addc_u32 s9, s15, 0
    """)
    a.srd(24, 4, 4096)
    a.srd(28, 8, 4096, KVR)
    a.srd(32, 8, 4096, YYT)
    a.srd(36, 6, 1280)
    a(f"""
    v_lshlrev_b32 v3, 4, v0
    v_subrev_u32 v4, 128, v3
    v_subrev_u32 v5, 112, v3
    buffer_load_dwordx4 v[8:11], v4, s[24:27], 0 offen
    buffer_load_dwordx4 v[12:15], v5, s[24:27], 0 offen
    v_add_u32 v6, 4096, v3
    v_subrev_u32 v4, 128, v6
    v_subrev_u32 v5, 112, v6
    buffer_load_dwordx4 v[16:19], v4, s[24:27], 0 offen
    buffer_load_dwordx4 v[20:23], v5, s[24:27], 0 offen
    v_subrev_u32 v4, 16, v3
    buffer_load_dwordx4 v[24:27], v4, s[28:31], 0 offen
    buffer_load_dwordx4 v[28:31], v3, s[28:31], 0 offen
    s_lshl_b32 s17, s2, 1
    v_mov_b32 v4, s17
    buffer_load_ushort v39, v4, s[36:39], 0 offen
    v_lshrrev_b32 v5, 3, v0
    v_lshlrev_b32 v5, 4, v5
    v_add_u32 v7, v3, v5
    v_mov_b32 v32, 0
    v_mov_b32 v33, 0
    v_mov_b32 v34, 0
    v_mov_b32 v35, 0
    ds_write_b128 v7, v[32:35] offset:{KV0+4608}
    v_cmp_ne_u32 vcc, 0, v0
    s_and_saveexec_b64 s[40:41], vcc
    ds_write_b128 v7, v[32:35] offset:{KV1+4608}
    s_mov_b64 exec, s[40:41]
    s_waitcnt vmcnt(5)
    """)
    def hcopies(base, addr):
        for ci, c in enumerate((1, 3, 5, 7)):
            j = (c - 1)//2
            o = 40 + 4*(ci & 1)
            for i in range(4):
                a(f'v_alignbit_b32 v{o+i}, v{base+j+i+1}, v{base+j+i}, 16')
            a(f'ds_write_b128 v{addr}, v[{o}:{o+3}] offset:{ci*HP}')
    hcopies(8, 3)
    a("""
    s_waitcnt vmcnt(3)
    v_cmp_gt_u32 vcc, 16, v0
    s_and_saveexec_b64 s[40:41], vcc
    """)
    hcopies(16, 6)
    a('s_mov_b64 exec, s[40:41]')
    a(f"""
    s_waitcnt vmcnt(0)
    ds_write_b128 v7, v[28:31] offset:{KV0}
    v_alignbit_b32 v40, v28, v27, 16
    v_alignbit_b32 v41, v29, v28, 16
    v_alignbit_b32 v42, v30, v29, 16
    v_alignbit_b32 v43, v31, v30, 16
    ds_write_b128 v7, v[40:43] offset:{KV1}
    v_lshrrev_b32 v44, 16, v31
    v_mov_b32 v45, 0
    v_mov_b32 v46, 0
    v_mov_b32 v47, 0
    v_cmp_eq_u32 vcc, 255, v0
    s_and_saveexec_b64 s[40:41], vcc
    v_mov_b32 v5, {KV1+4608}
    ds_write_b128 v5, v[44:47]
    s_mov_b64 exec, s[40:41]
    v_lshlrev_b32 v39, 16, v39
    """)
    a(f"""
    v_and_b32 v2, 63, v0
    v_and_b32 v3, 31, v2
    v_lshrrev_b32 v4, 5, v2
    s_mul_i32 s42, s22, 24
    s_cmp_eq_u32 s22, 3
    s_cselect_b32 s42, 76, s42
    s_lshl_b32 s43, s42, 5
    v_lshlrev_b32 v5, 1, v3
    v_add_u32 v5, 1, v5
    v_and_b32 v6, 7, v5
    v_lshrrev_b32 v6, 1, v6
    v_mul_u32_u24 v6, {HP}, v6
    v_and_b32 v5, 0x78, v5
    v_lshl_add_u32 v5, v4, 3, v5
    v_lshl_add_u32 v36, v5, 1, v6
    v_add_u32 v36, s43, v36
    """)
    a(f"""
    v_and_b32 v5, 15, v2
    v_bfe_u32 v6, v2, 4, 1
    v_mul_u32_u24 v6, {KVSZ}, v6
    v_mul_u32_u24 v5, 144, v5
    v_sub_u32 v5, {KV0 + 1984*2 + 31*16}, v5
    v_add_u32 v5, v5, v6
    v_lshl_add_u32 v5, v4, 4, v5
    s_lshr_b32 s44, s42, 2
    s_lshl_b32 s44, s44, 4
    s_add_u32 s44, s44, s43
    v_add_u32 v37, s44, v5
    v_subrev_u32 v38, {16*144}, v37
    """)
    for i in range(32):
        a(f'v_mov_b32 v{64+i}, 0')
    stamp(1)
    a("""
    s_waitcnt lgkmcnt(0)
    s_barrier
    """)
    stamp(2)
    a("""
    s_mov_b32 s45, 6
    s_cmp_eq_u32 s22, 2
    s_cselect_b32 s45, 5, s45
    s_cmp_eq_u32 s22, 3
    s_cselect_b32 s45, 0, s45
    s_mov_b32 s46, 0
    s_cmp_eq_u32 s22, 2
    s_cselect_b32 s46, 2, s46
    s_cmp_eq_u32 s22, 3
    s_cselect_b32 s46, 14, s46
    s_cmp_eq_u32 s45, 0
    s_cbranch_scc1 conv_lb
    """)
    a.label('conv_la')
    for st in range(4):
        b = 40 + 12*(st & 1)
        a(f"""
        ds_read_b128 v[{b}:{b+3}], v36 offset:{32*st}
        ds_read_b128 v[{b+4}:{b+7}], v37 offset:{32*st}
        ds_read_b128 v[{b+8}:{b+11}], v38 offset:{32*st}
        """)
        if st > 0:
            pb = 40 + 12*((st-1) & 1)
            a(f"""
            s_waitcnt lgkmcnt(3)
            v_mfma_f32_32x32x16_bf16 v[64:79], v[{pb}:{pb+3}], v[{pb+4}:{pb+7}], v[64:79]
            v_mfma_f32_32x32x16_bf16 v[80:95], v[{pb}:{pb+3}], v[{pb+8}:{pb+11}], v[80:95]
            """)
    a(f"""
    v_add_u32 v36, 128, v36
    v_add_u32 v37, 144, v37
    v_add_u32 v38, 144, v38
    s_waitcnt lgkmcnt(0)
    v_mfma_f32_32x32x16_bf16 v[64:79], v[52:55], v[56:59], v[64:79]
    v_mfma_f32_32x32x16_bf16 v[80:95], v[52:55], v[60:63], v[80:95]
    s_sub_u32 s45, s45, 1
    s_cmp_lg_u32 s45, 0
    s_cbranch_scc1 conv_la
    """)
    a.label('conv_lb')
    a("""
    s_cmp_eq_u32 s46, 0
    s_cbranch_scc1 conv_le
    """)
    a.label('conv_lb2')
    LB = (8, 16, 24, 40)
    for st in range(4):
        b = LB[st]
        a(f"""
        ds_read_b128 v[{b}:{b+3}], v36 offset:{32*st}
        ds_read_b128 v[{b+4}:{b+7}], v38 offset:{32*st}
        """)
    a("""
    v_add_u32 v36, 128, v36
    v_add_u32 v38, 144, v38
    """)
    for st in range(4):
        b = LB[st]
        a(f"""
        s_waitcnt lgkmcnt({6-2*st})
        v_mfma_f32_32x32x16_bf16 v[80:95], v[{b}:{b+3}], v[{b+4}:{b+7}], v[80:95]
        """)
    a("""
    s_sub_u32 s46, s46, 1
    s_cmp_lg_u32 s46, 0
    s_cbranch_scc1 conv_lb2
    """)
    a.label('conv_le')
    stamp(3)
    a(f"""
    v_sub_u32 v6, 255, v0
    v_lshrrev_b32 v7, 3, v6
    v_add_u32 v6, v6, v7
    v_lshlrev_b32 v6, 4, v6
    ds_read_b128 v[8:11], v6 offset:{KV0}
    s_waitcnt lgkmcnt(0)
    s_barrier
    s_nop 7
    s_mul_i32 s43, s22, 9216
    v_mul_u32_u24 v5, 144, v3
    v_lshl_add_u32 v5, v4, 4, v5
    v_add_u32 v5, s43, v5
    """)
    for T in range(2):
        for q in range(4):
            r = 64 + 16*T + 4*q
            a(f'ds_write_b128 v5, v[{r}:{r+3}] offset:{T*32*144 + q*32}')
    a(f"""
    v_lshrrev_b32 v5, 3, v0
    v_and_b32 v6, 15, v5
    v_lshrrev_b32 v7, 4, v5
    v_lshl_add_u32 v6, v7, 5, v6
    v_mul_u32_u24 v6, 144, v6
    v_and_b32 v7, 7, v0
    v_lshl_add_u32 v5, v7, 4, v6
    s_waitcnt lgkmcnt(0)
    s_barrier
    """)
    for w in range(4):
        for r in range(2):
            a(f'ds_read_b128 v[{40+8*w+4*r}:{43+8*w+4*r}], v5 offset:{w*9216 + r*16*144}')
    a('s_waitcnt lgkmcnt(0)')
    for r in range(2):
        for i in range(0, 4, 2):
            x = 40 + 4*r + i
            a(f"""
            v_pk_add_f32 v[{x}:{x+1}], v[{x}:{x+1}], v[{x+8}:{x+9}]
            v_pk_add_f32 v[{x+16}:{x+17}], v[{x+16}:{x+17}], v[{x+24}:{x+25}]
            v_pk_add_f32 v[{x}:{x+1}], v[{x}:{x+1}], v[{x+16}:{x+17}]
            """)
    for i in range(4):
        b0, b1 = 40 + i, 44 + i
        e = 2*i
        a.rnd2(b0, b1, 12)
        p0, p1 = 7 - e, 7 - (e+1)
        a(f"""
        v_and_b32 v13, 0xffff0000, v{8 + p0//2}
        v_lshlrev_b32 v14, 16, v{8 + p1//2}
        v_mul_f32 v13, v13, v39
        v_mul_f32 v14, v14, v39
        """)
        a.rnd2(13, 14, 12)
        a(f"""
        v_add_f32 v13, v13, v{b0}
        v_add_f32 v14, v14, v{b1}
        v_cvt_pk_bf16_f32 v{16+i}, v13, v14
        """)
    a("""
    v_lshlrev_b32 v3, 4, v0
    buffer_store_dwordx4 v[16:19], v3, s[32:35], 0 offen
    """)
    if STAMP:
        a('s_waitcnt vmcnt(0)')
    stamp(4)
    stamp_out(5)
    a.label('conv_done')
    a('s_endpgm')
    a.kernels.append((k, 96, 80, 96))

def ln_pk(X, npair, n_elems, Q, T, mask_last=False):
    a(f'v_pk_add_f32 v[{T}:{T+1}], v[{X}:{X+1}], v[{X+2}:{X+3}]')
    for i in range(2, npair):
        a(f'v_pk_add_f32 v[{T}:{T+1}], v[{T}:{T+1}], v[{X+2*i}:{X+2*i+1}]')
    a(f'v_add_f32 v{T}, v{T}, v{T+1}')
    a.wave_sum(T, T+1, 50)
    a(f"""
    v_mov_b32 v{T}, {1.0/n_elems!r}
    v_mul_f32 v{T+2}, s50, v{T}
    v_mul_f32 v{T+3}, s50, v{T}
    v_mov_b32 v{T+4}, 0
    v_mov_b32 v{T+5}, 0
    """)
    for i in range(npair):
        a(f'v_pk_add_f32 v[{T}:{T+1}], v[{X+2*i}:{X+2*i+1}], v[{T+2}:{T+3}] neg_lo:[0,1] neg_hi:[0,1]')
        if mask_last and i == npair-1:
            a(f"""
            v_cndmask_b32 v{T}, 0, v{T}, s[58:59]
            v_cndmask_b32 v{T+1}, 0, v{T+1}, s[58:59]
            """)
        a(f'v_pk_fma_f32 v[{T+4}:{T+5}], v[{T}:{T+1}], v[{T}:{T+1}], v[{T+4}:{T+5}]')
    a(f'v_add_f32 v{T}, v{T+4}, v{T+5}')
    a.wave_sum(T, T+1, 51)
    a(f"""
    v_mov_b32 v{T}, {1.0/n_elems!r}
    v_mul_f32 v{T+4}, s51, v{T}
    """)
    a.rnd2(T+2, T+4, T)
    a(f"""
    v_mov_b32 v{T+3}, v{T+2}
    v_add_f32 v{T+4}, 0x3727c5ac, v{T+4}
    v_cvt_pk_bf16_f32 v{T}, v{T+4}, v{T+4}
    v_lshlrev_b32 v{T+4}, 16, v{T}
    v_sqrt_f32 v{T+4}, v{T+4}
    s_nop 0
    v_cvt_pk_bf16_f32 v{T}, v{T+4}, v{T+4}
    v_lshlrev_b32 v{T+4}, 16, v{T}
    v_rcp_f32 v{T+6}, v{T+4}
    s_nop 0
    v_fma_f32 v{T}, -v{T+4}, v{T+6}, 2.0
    v_mul_f32 v{T+6}, v{T+6}, v{T}
    v_mov_b32 v{T+7}, v{T+6}
    """)
    for i in range(npair):
        q = Q + 2*i
        a(f'v_pk_add_f32 v[{q}:{q+1}], v[{X+2*i}:{X+2*i+1}], v[{T+2}:{T+3}] neg_lo:[0,1] neg_hi:[0,1]')
        a.rnd2(q, q+1, T)
        a(f'v_pk_mul_f32 v[{q}:{q+1}], v[{q}:{q+1}], v[{T+6}:{T+7}]')

HI = {4: 62, 7: 63}
def dso(reg, off):
    if off >= 65536:
        return f'v{HI[reg]}', off - 65536
    return f'v{reg}', off
YP = 144
def gen_row(k, xin_arg, xin_off, xout_off):
    a.begin(k)
    done = k + '_done'
    a(f"""
    s_cmp_ge_u32 s2, 32
    s_cbranch_scc1 {done}
    s_load_dwordx2 s[4:5], s[0:1], {xin_arg}
    s_load_dwordx2 s[14:15], s[0:1], {WS}
    v_lshrrev_b32 v1, 6, v0
    v_and_b32 v2, 63, v0
    s_lshl_b32 s17, s2, 6
    v_lshl_add_u32 v3, v1, 2, s17
    v_mul_u32_u24 v3, 1280, v3
    v_lshl_add_u32 v3, v2, 2, v3
    s_waitcnt lgkmcnt(0)
    """)
    a.srd(24, 4, 2621440, xin_off)
    a.srd(28, 14, 640*P4, YYT)
    a.srd(32, 14, 2621440, xout_off)
    a.srd(36, 14, 2621440, HH)
    a(f"""
    s_lshl_b32 s16, s2, 7
    v_lshrrev_b32 v4, 3, v0
    v_and_b32 v5, 7, v0
    v_mul_u32_u24 v6, {P4}, v4
    v_lshl_add_u32 v6, v5, 4, v6
    v_add_u32 v6, s16, v6
    v_mul_u32_u24 v7, {YP}, v4
    v_lshl_add_u32 v7, v5, 4, v7
    v_add_u32 v63, 0x10000, v7
    """)
    for i in range(5):
        a(f's_mov_b32 s18, {128*i*P4}')
        a(f'buffer_load_dwordx4 v[{64+4*i}:{67+4*i}], v6, s[28:31], s18 offen')
    for r in range(4):
        for j in range(5):
            a(f's_mov_b32 s18, {1280*r}') if j == 0 else None
            a(f'buffer_load_dword v{84+5*r+j}, v3, s[24:27], s18 offen offset:{256*j}')
    a('s_waitcnt vmcnt(20)')
    for i in range(5):
        a('ds_write_b128 %s, v[%d:%d] offset:%d' % (dso(7,128*i*YP)[0], 64+4*i, 67+4*i, dso(7,128*i*YP)[1]))
    a(f"""
    v_mul_u32_u24 v4, {2*YP}, v2
    v_lshl_add_u32 v4, v1, 3, v4
    v_add_u32 v62, 0x10000, v4
    s_waitcnt vmcnt(0) lgkmcnt(0)
    s_barrier
    """)
    for r in range(4):
        for j in range(5):
            a('ds_read_u16 v%d, %s offset:%d' % ((40+2*j,) + dso(4,128*YP*j+2*r)))
            a('ds_read_u16 v%d, %s offset:%d' % ((41+2*j,) + dso(4,128*YP*j+YP+2*r)))
        for j in range(5):
            a.unpack(16+2*j, 17+2*j, 84+5*r+j)
        a(f's_mov_b32 s18, {1280*r}')
        ln_pk(16, 5, 640, 28, 52)
        a('s_waitcnt lgkmcnt(0)')
        for j in range(10):
            a(f'v_lshlrev_b32 v{40+j}, 16, v{40+j}')
        for i in range(5):
            q, x, y = 28+2*i, 16+2*i, 40+2*i
            a.rnd2(q, q+1, 56)
            a(f'v_pk_mul_f32 v[{q}:{q+1}], v[{q}:{q+1}], v[{y}:{y+1}]')
            a.rnd2(q, q+1, 56)
            a(f'v_pk_add_f32 v[{x}:{x+1}], v[{x}:{x+1}], v[{q}:{q+1}]')
            a.rnd2(x, x+1, 8+i)
            a(f'buffer_store_dword v{8+i}, v3, s[32:35], s18 offen offset:{256*i}')
        ln_pk(16, 5, 640, 28, 52)
        for i in range(5):
            a(f'v_cvt_pk_bf16_f32 v{64+5*r+i}, v{28+2*i}, v{29+2*i}')
            a(f'buffer_store_dword v{64+5*r+i}, v3, s[36:39], s18 offen offset:{256*i}')
    a.label(done)
    a('s_endpgm')
    a.kernels.append((k, 104, 80, 104))

def gen_lnz():
    k = 'lnz_kernel'
    a.begin(k)
    a(f"""
    s_cmp_ge_u32 s2, 32
    s_cbranch_scc1 lnz_done
    s_load_dwordx2 s[14:15], s[0:1], {WS}
    v_lshrrev_b32 v1, 6, v0
    v_and_b32 v2, 63, v0
    s_lshl_b32 s17, s2, 6
    v_lshl_add_u32 v3, v1, 2, s17
    v_mul_u32_u24 v3, 3456, v3
    v_lshl_add_u32 v3, v2, 2, v3
    v_cmp_gt_u32 s[58:59], 48, v2
    v_add_u32 v5, {1728 + 256*6}, v3
    s_nop 0
    v_cndmask_b32 v5, -1, v5, s[58:59]
    s_waitcnt lgkmcnt(0)
    """)
    a.srd(24, 14, 7077888, ZZ)
    a.srd(28, 14, 864*P4, Z2T)
    for r in range(4):
        a(f's_mov_b32 s18, {3456*r}')
        for j in range(6):
            a(f'buffer_load_dword v{64+7*r+j}, v3, s[24:27], s18 offen offset:{1728 + 256*j}')
        a(f'buffer_load_dword v{64+7*r+6}, v5, s[24:27], s18 offen')
    a(f"""
    v_mul_u32_u24 v4, {2*YP}, v2
    v_lshl_add_u32 v4, v1, 3, v4
    v_add_u32 v62, 0x10000, v4
    """)
    for r in range(4):
        a(f's_waitcnt vmcnt({7*(3-r)})')
        for j in range(7):
            a.unpack(16+2*j, 17+2*j, 64+7*r+j)
        ln_pk(16, 7, 864, 32, 52, mask_last=True)
        for j in range(7):
            a(f"""
            v_cvt_pk_bf16_f32 v{8+j}, v{32+2*j}, v{33+2*j}
            ds_write_b16 {dso(4,128*YP*j+2*r)[0]}, v{8+j} offset:{dso(4,128*YP*j+2*r)[1]}
            ds_write_b16_d16_hi {dso(4,128*YP*j+YP+2*r)[0]}, v{8+j} offset:{dso(4,128*YP*j+YP+2*r)[1]}
            """)
    a(f"""
    s_lshl_b32 s16, s2, 7
    v_lshrrev_b32 v4, 3, v0
    v_and_b32 v5, 7, v0
    v_mul_u32_u24 v6, {P4}, v4
    v_lshl_add_u32 v6, v5, 4, v6
    v_add_u32 v6, s16, v6
    v_mul_u32_u24 v7, {YP}, v4
    v_lshl_add_u32 v7, v5, 4, v7
    v_add_u32 v63, 0x10000, v7
    s_waitcnt lgkmcnt(0)
    s_barrier
    """)
    for i in range(7):
        a('ds_read_b128 v[%d:%d], %s offset:%d' % ((64+4*i, 67+4*i) + dso(7,128*i*YP)))
    for i in range(7):
        a(f"""
        s_mov_b32 s18, {128*i*P4}
        s_waitcnt lgkmcnt({6-i})
        buffer_store_dwordx4 v[{64+4*i}:{67+4*i}], v6, s[28:31], s18 offen
        """)
    a.label('lnz_done')
    a('s_endpgm')
    a.kernels.append((k, 96, 80, 96))

def gen_gemm(k, WM, WN, BK, K, M, N, A_src, B_src, epi, D=4, GM=2, GN=4, ldb=None):
    ldb = ldb or K*2
    BM, BN = GM*WM, GN*WN
    NT = 64*GM*GN
    TM, TN = WM//32, WN//32
    nmt, nnt = M//BM, -(-N//BN)
    rowb = 128
    nsteps = K//BK
    Abytes, Bbytes = BM*rowb, BN*rowb
    stage = Abytes + Bbytes
    PB = NT*16
    nla, nlb = Abytes//PB, Bbytes//PB
    nl = nla + nlb
    RPL = NT//8
    done = k + '_done'
    a.begin(k)
    a(f"""
    s_cmp_ge_u32 s2, {nmt*nnt}
    s_cbranch_scc1 {done}
    """)
    stamp(0)
    a(f"""
    s_load_dwordx2 s[4:5], s[0:1], {A_src[0]}
    s_load_dwordx2 s[6:7], s[0:1], {B_src[0]}
    s_load_dwordx2 s[14:15], s[0:1], {WS}
    s_load_dwordx2 s[10:11], s[0:1], {B_BSP}
    s_load_dwordx2 s[12:13], s[0:1], {OUT}
    s_and_b32 s16, s2, {nmt-1}
    s_lshr_b32 s17, s2, {nmt.bit_length()-1}
    s_mul_i32 s18, s16, {BM}
    s_mul_i32 s19, s17, {BN}
    v_lshrrev_b32 v1, 6, v0
    v_lshlrev_b32 v1, 10, v1
    s_nop 0
    v_readfirstlane_b32 s22, v1
    s_waitcnt lgkmcnt(0)
    """)
    a.srd(24, 4, M*K*2, A_src[1])
    a.srd(28, 6, N*ldb, B_src[1])
    a(f"""
    v_lshrrev_b32 v1, 3, v0
    v_and_b32 v2, 7, v0
    v_lshrrev_b32 v3, 1, v1
    v_and_b32 v3, 7, v3
    v_xor_b32 v2, v2, v3
    v_lshlrev_b32 v2, 4, v2
    v_add_u32 v3, s18, v1
    v_mul_u32_u24 v3, {K*2}, v3
    v_add_u32 v4, v3, v2
    v_add_u32 v3, s19, v1
    v_mul_u32_u24 v3, {ldb}, v3
    v_add_u32 v8, v3, v2
    """)
    for i in range(1, nla):
        a(f'v_add_u32 v{4+i}, {RPL*i*K*2}, v4')
    for i in range(1, nlb):
        a(f'v_add_u32 v{8+i}, {RPL*i*ldb}, v8')
    a(f"""
    v_lshrrev_b32 v1, 6, v0
    v_and_b32 v2, 63, v0
    v_and_b32 v3, 31, v2
    v_lshrrev_b32 v20, 5, v2
    v_and_b32 v21, {GM-1}, v1
    v_lshrrev_b32 v22, {GM.bit_length()-1}, v1
    """)
    nkk = 4
    AB, AR = 12, 24
    for (isB, wsel, W, R) in ((0, 21, WM, AB), (1, 22, WN, AB+4)):
        a(f"""
        v_mul_u32_u24 v23, {W}, v{wsel}
        v_add_u32 v23, v23, v3
        v_lshrrev_b32 v{R}, 1, v23
        v_and_b32 v{R}, 7, v{R}
        v_xor_b32 v{R}, v{R}, v20
        v_mul_u32_u24 v23, {rowb}, v23
        """)
        if isB:
            a(f'v_add_u32 v23, {Abytes}, v23')
        for kk in range(3, -1, -1):
            a(f"""
            v_xor_b32 v{R+kk}, {2*kk}, v{R}
            v_lshl_add_u32 v{R+kk}, v{R+kk}, 4, v23
            """)
    FA = 32
    FB = FA + 4*TM*2
    ACC = 64
    nacc = TM*TN*16
    EPR = ACC + nacc
    global G_EPR, G_BM, G_BN
    G_EPR = EPR
    global G_NT
    G_BM, G_BN = BM, BN
    G_NT = NT
    assert FB + 4*TN*2 <= ACC
    for i in range(nacc):
        a(f'v_mov_b32 v{ACC+i}, 0')
    a(f"""
    v_mul_u32_u24 v23, {WM}, v21
    v_add_u32 v23, v23, v3
    v_add_u32 v{EPR}, s18, v23
    v_mul_u32_u24 v23, {WN}, v22
    v_lshlrev_b32 v{EPR+1}, 2, v20
    v_add_u32 v23, v23, v{EPR+1}
    v_add_u32 v{EPR+1}, s19, v23
    """)
    epi(TM, TN, ACC, True)
    def gload():
        for i in range(nl):
            a(f's_add_u32 m0, s55, {i*PB}')
            a('s_nop 0')
            if i < nla:
                a(f'buffer_load_dwordx4 v{4+i}, s[24:27], s20 offen lds')
            else:
                a(f'buffer_load_dwordx4 v{8+i-nla}, s[28:31], s20 offen lds')
        a(f"""
        s_add_u32 s20, s20, {rowb}
        s_add_u32 s55, s55, {stage}
        s_cmp_lt_u32 s55, {D*stage}
        s_cselect_b32 s55, s55, s22
        """)
    lp, lm, lw, lnl = [a.newlabel(x) for x in ('gp', 'gm', 'gw', 'gn')]
    a(f"""
    s_mov_b32 s20, 0
    s_mov_b32 s55, s22
    s_mov_b32 s48, 0
    s_mov_b32 s49, 0
    """)
    stamp(1)
    a.label(lp)
    gload()
    a(f"""
    s_add_u32 s48, s48, 1
    s_cmp_lt_u32 s48, {D-1}
    s_cbranch_scc1 {lp}
    s_mov_b32 s48, 0
    """)
    stamp(2)
    a.label(lm)
    a(f"""
    s_cmp_lt_u32 s48, {nsteps-(D-2)}
    s_cbranch_scc1 {lw}
    s_waitcnt vmcnt(0)
    """)
    a.label(lw)
    a(f"""
    s_waitcnt vmcnt({nl*(D-2)})
    s_barrier
    """)
    for i in range(8):
        a(f'v_add_u32 v{AR+i}, s49, v{AB+i}')
    def rd(kk, s):
        for i in range(TM):
            f = FA + 4*(s*TM + i)
            a(f'ds_read_b128 v[{f}:{f+3}], v{AR+kk} offset:{i*32*rowb}')
        for i in range(TN):
            f = FB + 4*(s*TN + i)
            a(f'ds_read_b128 v[{f}:{f+3}], v{AR+4+kk} offset:{i*32*rowb}')
    rd(0, 0)
    a(f"""
    s_cmp_lt_u32 s48, {nsteps-(D-1)}
    s_cbranch_scc0 {lnl}
    """)
    lend = a.newlabel('gx')
    for withload in (True, False):
        if not withload:
            a.label(lnl)
        nm = 0
        li = 0
        tot = nkk*TM*TN
        for kk in range(nkk):
            s_ = kk & 1
            if kk + 1 < nkk:
                rd(kk+1, s_ ^ 1)
                a(f's_waitcnt lgkmcnt({TM+TN})')
            else:
                a('s_waitcnt lgkmcnt(0)')
            for i in range(TM):
                for j in range(TN):
                    fa = FA + 4*(s_*TM + i)
                    fb = FB + 4*(s_*TN + j)
                    c = ACC + 16*(i*TN + j)
                    a(f'v_mfma_f32_32x32x16_bf16 v[{c}:{c+15}], v[{fb}:{fb+3}], v[{fa}:{fa+3}], v[{c}:{c+15}]')
                    nm += 1
                    if withload:
                        while li < nl and li * tot < nm * nl:
                            a(f's_add_u32 m0, s55, {li*PB}')
                            a('s_nop 0')
                            if li < nla:
                                a(f'buffer_load_dwordx4 v{4+li}, s[24:27], s20 offen lds')
                            else:
                                a(f'buffer_load_dwordx4 v{8+li-nla}, s[28:31], s20 offen lds')
                            li += 1
        if withload:
            a(f"""
            s_add_u32 s20, s20, {rowb}
            s_add_u32 s55, s55, {stage}
            s_cmp_lt_u32 s55, {D*stage}
            s_cselect_b32 s55, s55, s22
            s_branch {lend}
            """)
    a.label(lend)
    a(f"""
    s_add_u32 s49, s49, {stage}
    s_cmp_lt_u32 s49, {D*stage}
    s_cselect_b32 s49, s49, 0
    s_add_u32 s48, s48, 1
    s_cmp_lt_u32 s48, {nsteps}
    s_cbranch_scc1 {lm}
    s_nop 7
    s_nop 7
    """)
    stamp(3)
    a('s_barrier')
    le = a.newlabel('ge')
    lg = TN.bit_length() - 1
    epi(TM, TN, ACC, 'setup')
    a('s_mov_b32 s48, 0')
    a.label(le)
    a(f"""
    s_lshl_b32 s56, s48, 2
    s_lshr_b32 s49, s48, {2+lg}
    s_lshl_b32 s49, s49, 5
    s_lshr_b32 s55, s48, 2
    s_and_b32 s55, s55, {TN-1}
    s_lshl_b32 s55, s55, 5
    s_and_b32 s20, s48, 3
    s_lshl_b32 s20, s20, 3
    s_add_u32 s55, s55, s20
    s_set_gpr_idx_on s56, gpr_idx(SRC0)
    v_mov_b32 v40, v{ACC}
    v_mov_b32 v41, v{ACC+1}
    v_mov_b32 v42, v{ACC+2}
    v_mov_b32 v43, v{ACC+3}
    s_set_gpr_idx_off
    v_add_u32 v4, s49, v{EPR}
    v_add_u32 v5, s55, v{EPR+1}
    """)
    epi(TM, TN, ACC, 'body')
    a(f"""
    s_add_u32 s48, s48, 1
    s_cmp_lt_u32 s48, {nacc//4}
    s_cbranch_scc1 {le}
    s_waitcnt lgkmcnt(0)
    s_barrier
    """)
    epi(TM, TN, ACC, 'out')
    a('s_waitcnt vmcnt(0)')
    stamp(4)
    stamp_out(5)
    a.label(done)
    a('s_endpgm')
    lds = D*stage
    a.kernels.append((k, EPR + 4 + 24, 80, EPR + 4 + 24))
    return nmt*nnt, lds, NT

def gelu_regs(x, t0, t1):
    a(f'''
    v_mul_f32 v{t0}, v{x}, v{x}
    v_mul_f32 v{t0}, v{t0}, v{x}
    v_fma_f32 v{t0}, v{t0}, s46, v{x}
    v_mul_f32 v{t0}, s47, v{t0}
    v_exp_f32 v{t0}, v{t0}
    s_nop 0
    v_add_f32 v{t0}, 1.0, v{t0}
    v_rcp_f32 v{t0}, v{t0}
    s_nop 0
    v_fma_f32 v{t0}, v{t0}, -2.0, 2.0
    v_mul_f32 v{t1}, 0.5, v{x}
    v_mul_f32 v{x}, v{t1}, v{t0}
    ''')

def tile_addr():
    pitch = G_BN*2 + 16
    a(f"""
    v_subrev_u32 v6, s18, v4
    v_mul_u32_u24 v6, {pitch}, v6
    v_subrev_u32 v7, s19, v5
    v_lshl_add_u32 v7, v7, 1, v6
    """)

def out_chunks(t=4):
    cpr = G_BN // 8
    n = G_BM*G_BN*2//16//G_NT
    pitch = G_BN*2 + 16
    sh = cpr.bit_length()-1
    for i in range(n):
        a(f"""
        v_add_u32 v{t+2}, {G_NT*i}, v0
        v_lshrrev_b32 v{t}, {sh}, v{t+2}
        v_and_b32 v{t+1}, {cpr-1}, v{t+2}
        v_lshlrev_b32 v{t+1}, 3, v{t+1}
        v_mul_u32_u24 v{t+3}, {pitch}, v{t}
        v_lshl_add_u32 v{t+3}, v{t+1}, 1, v{t+3}
        v_add_u32 v{t}, s18, v{t}
        v_add_u32 v{t+1}, s19, v{t+1}
        """)
        yield i

def epi_gemm1(TM, TN, ACC, pre):
    if pre is True:
        return
    if pre == 'setup':
        a.srd(32, 14, 7077888, ZZ)
        a("""
        v_mov_b32 v48, 0x3dd2d3e8
        v_mov_b32 v49, 0x3dd2d3e8
        v_mov_b32 v50, 0x40135761
        v_mov_b32 v51, 0x40135761
        v_mov_b32 v52, 1.0
        v_mov_b32 v53, 1.0
        """)
        return
    if pre == 'out':
        for i in out_chunks():
            r = 32 + 4*(i % 8)
            a(f"""
            ds_read_b128 v[{r}:{r+3}], v7
            v_mul_u32_u24 v6, 3456, v4
            v_cmp_gt_u32 vcc, 1728, v5
            v_lshl_add_u32 v6, v5, 1, v6
            s_nop 0
            v_cndmask_b32 v6, -1, v6, vcc
            s_waitcnt lgkmcnt(0)
            buffer_store_dwordx4 v[{r}:{r+3}], v6, s[32:35], 0 offen
            """)
        return
    a.rnd2(40, 41, 8)
    a.rnd2(42, 43, 9)
    a("""
    v_pk_mul_f32 v[44:45], v[40:41], v[40:41]
    v_pk_mul_f32 v[46:47], v[42:43], v[42:43]
    v_pk_fma_f32 v[44:45], v[44:45], v[48:49], v[50:51]
    v_pk_fma_f32 v[46:47], v[46:47], v[48:49], v[50:51]
    v_pk_mul_f32 v[44:45], v[44:45], v[40:41]
    v_pk_mul_f32 v[46:47], v[46:47], v[42:43]
    v_exp_f32 v44, v44
    v_exp_f32 v45, v45
    v_exp_f32 v46, v46
    v_exp_f32 v47, v47
    v_pk_add_f32 v[44:45], v[44:45], v[52:53]
    v_pk_add_f32 v[46:47], v[46:47], v[52:53]
    v_rcp_f32 v44, v44
    v_rcp_f32 v45, v45
    v_rcp_f32 v46, v46
    v_rcp_f32 v47, v47
    """)
    tile_addr()
    a("""
    v_pk_fma_f32 v[40:41], v[40:41], v[44:45], v[40:41] neg_lo:[1,0,0] neg_hi:[1,0,0]
    v_pk_fma_f32 v[42:43], v[42:43], v[46:47], v[42:43] neg_lo:[1,0,0] neg_hi:[1,0,0]
    v_cvt_pk_bf16_f32 v10, v40, v41
    v_cvt_pk_bf16_f32 v11, v42, v43
    ds_write_b64 v7, v[10:11]
    """)

def epi_gemm2(TM, TN, ACC, pre):
    E = G_EPR
    R, C = E, E+1
    Z = E + 2 + (E+2) % 4
    Z = ((E + 2 + 3)//4)*4
    BS = Z + 16
    if pre is True:
        a.srd(32, 14, 7077888, ZZ)
        a.srd(44, 10, 4096)
        for i in range(TM):
            a(f"""
            v_add_u32 v23, {32*i}, v{R}
            v_lshlrev_b32 v{BS+4}, 1, v23
            buffer_load_ushort v{BS+i}, v{BS+4}, s[44:47], 0 offen
            """)
        for i in out_chunks(40):
            a(f"""
            v_mul_u32_u24 v42, 3456, v40
            v_cmp_gt_u32 vcc, 864, v41
            v_lshl_add_u32 v42, v41, 1, v42
            s_nop 0
            v_cndmask_b32 v42, -1, v42, vcc
            buffer_load_dwordx4 v[{Z+4*i}:{Z+4*i+3}], v42, s[32:35], 0 offen
            """)
        return
    if pre == 'setup':
        a.srd(36, 14, 3670016, UU)
        for i in range(TM):
            a(f'v_lshlrev_b32 v{BS+i}, 16, v{BS+i}')
        return
    if pre == 'out':
        for i in out_chunks():
            a(f"""
            ds_read_b128 v[32:35], v7
            v_mul_u32_u24 v6, 1792, v4
            v_lshl_add_u32 v6, v5, 1, v6
            s_waitcnt lgkmcnt(0)
            """)
            for w in range(4):
                a.unpack(36, 37, 32+w)
                a.unpack(38, 39, Z+4*i+w)
                a(f"""
                v_mul_f32 v36, v36, v38
                v_mul_f32 v37, v37, v39
                v_cvt_pk_bf16_f32 v{Z+4*i+w}, v36, v37
                """)
            a(f'buffer_store_dwordx4 v[{Z+4*i}:{Z+4*i+3}], v6, s[36:39], 0 offen')
        return
    lg = TN.bit_length() - 1
    a(f"""
    s_lshr_b32 s56, s48, {2+lg}
    s_set_gpr_idx_on s56, gpr_idx(SRC0)
    v_mov_b32 v12, v{BS}
    s_set_gpr_idx_off
    """)
    tile_addr()
    a.rnd2(40, 41, 8)
    a.rnd2(42, 43, 9)
    for e in range(4):
        a(f'v_add_f32 v{40+e}, v{40+e}, v12')
    a("""
    v_cvt_pk_bf16_f32 v10, v40, v41
    v_cvt_pk_bf16_f32 v11, v42, v43
    ds_write_b64 v7, v[10:11]
    """)

def make_epi_gemm3(xin_off, out_ws_off):
    def epi(TM, TN, ACC, pre):
        E = G_EPR
        Z = ((E + 2 + 3)//4)*4
        if pre is True:
            a.srd(32, 14, 2621440, xin_off)
            for i in out_chunks(40):
                a(f"""
                v_mul_u32_u24 v42, 1280, v40
                v_lshl_add_u32 v42, v41, 1, v42
                buffer_load_dwordx4 v[{Z+4*i}:{Z+4*i+3}], v42, s[32:35], 0 offen
                """)
            return
        if pre == 'setup':
            if out_ws_off is None:
                a.srd(36, 12, 2621440)
            else:
                a.srd(36, 14, 2621440, out_ws_off)
            return
        if pre == 'out':
            for i in out_chunks():
                a(f"""
                ds_read_b128 v[32:35], v7
                v_mul_u32_u24 v6, 1280, v4
                v_lshl_add_u32 v6, v5, 1, v6
                s_waitcnt lgkmcnt(0)
                """)
                for w in range(4):
                    a.unpack(36, 37, 32+w)
                    a.unpack(38, 39, Z+4*i+w)
                    a(f"""
                    v_add_f32 v36, v36, v38
                    v_add_f32 v37, v37, v39
                    v_cvt_pk_bf16_f32 v{Z+4*i+w}, v36, v37
                    """)
                a(f'buffer_store_dwordx4 v[{Z+4*i}:{Z+4*i+3}], v6, s[36:39], 0 offen')
            return
        tile_addr()
        a("""
        v_cvt_pk_bf16_f32 v10, v40, v41
        v_cvt_pk_bf16_f32 v11, v42, v43
        ds_write_b64 v7, v[10:11]
        """)
    return epi

gen_prep()
gen_conv()
gen_row('rowa_kernel', A_Q, 0, X1)
gen_row('rowb_kernel', WS, X2, X3)
gen_lnz()
g1, l1, t1 = gen_gemm('gemm1_kernel', 64, 32, 64, 640, 2048, 1728, (WS, HH), (WS, WINT), epi_gemm1, D=4, GM=2, GN=4)
g2, l2, t2 = gen_gemm('gemm2_kernel', 32, 32, 64, 2048, 2048, 864, (B_WSP, 0), (WS, Z2T), epi_gemm2, D=4, GM=4, GN=2, ldb=P4)
g3, l3, t3 = gen_gemm('gemm3a_kernel', 32, 32, 64, 896, 2048, 640, (WS, UU), (WS, WOUTT), make_epi_gemm3(X1, X2), D=4, GM=4, GN=2)
g3, l3, t3 = gen_gemm('gemm3b_kernel', 32, 32, 64, 896, 2048, 640, (WS, UU), (WS, WOUTT), make_epi_gemm3(X3, None), D=4, GM=4, GN=2)

launches = [
    ('prep_kernel', 1460, 5120, 256),
    ('conv_kernel', 640, CONV_LDS, 256),
    ('rowa_kernel', 32, 640*YP, 1024),
    ('gemm1_kernel', g1, l1, t1),
    ('lnz_kernel', 32, 896*YP, 1024),
    ('gemm2_kernel', g2, l2, t2),
    ('gemm3a_kernel', g3, l3, t3),
    ('rowb_kernel', 32, 640*YP, 1024),
    ('gemm1_kernel', g1, l1, t1),
    ('lnz_kernel', 32, 896*YP, 1024),
    ('gemm2_kernel', g2, l2, t2),
    ('gemm3b_kernel', g3, l3, t3),
]

ref = open('cdna_kernels/' + NAME + '.s.ref').read().split('\n')
head = [l for l in ref if l.startswith(';') and '@launch' not in l]
out = head[:]
for (k, g, lds, nt) in launches:
    out.append(f'; @launch kernel={k} grid=({g},1,1) block=({nt},1,1) lds={lds}')
out.append('.amdgcn_target "amdgcn-amd-amdhsa--gfx950"')
out.append('.text')
out += a.L
out.append('.section .rodata,"a"')
for (k, v, s, acc) in a.kernels:
    out.append('.p2align 6')
    out.append(f'.amdhsa_kernel {k}')
    out.append(f'  .amdhsa_next_free_vgpr {v}')
    out.append(f'  .amdhsa_next_free_sgpr {s}')
    out.append(f'  .amdhsa_accum_offset {((acc+3)//4)*4}')
    out.append('  .amdhsa_group_segment_fixed_size 0')
    out.append('  .amdhsa_kernarg_size 112')
    out.append('  .amdhsa_user_sgpr_count 2')
    out.append('  .amdhsa_user_sgpr_kernarg_segment_ptr 1')
    out.append('  .amdhsa_system_sgpr_workgroup_id_x 1')
    out.append('.end_amdhsa_kernel')
open('stamp.s' if STAMP else 'cdna_kernels/' + NAME + '.s', 'w').write('\n'.join(out) + '\n')
print('ok', len(out), 'lines', g1, l1, g2, l2, g3, l3)
```

```python
NAME = "interleave_layers__ssm_conv_h3__mixer_gmlp__prompt"

KVR = 0x0
P4 = 4352
YYT = 0x300000
WINT = 0x600000
WOUTT = 0x900000
X1 = 0xB00000
X2 = 0xE00000
X3 = 0x1100000
HH = 0x1400000
ZZ = 0x1700000
Z2T = 0x1E00000
UU = 0x2200000

A_Q, A_K, A_V, A_SK, A_SSMK, A_D, B_X, B_WIN, B_WSP, B_BSP, B_WOUT, OUT, DBG, WS = [8*i for i in range(14)]

class Asm:
    def __init__(self):
        self.L = []
        self.kernels = []
        self.launches = []
        self.uid = 0
    def __call__(self, s):
        for line in s.strip().split('\n'):
            self.L.append('    ' + line.strip())
    def label(self, l):
        self.L.append(l + ':')
    def newlabel(self, p='L'):
        self.uid += 1
        return f'{p}_{self.uid}'
    def begin(self, label):
        self.L.append('.globl ' + label)
        self.L.append('.p2align 8')
        self.L.append(f'.type {label},@function')
        self.label(label)
    def srd(self, d, p, nbytes, off=0):
        if off:
            self(f's_add_u32 s{d}, s{p}, {off}')
            self(f's_addc_u32 s{d+1}, s{p+1}, 0')
        else:
            self(f's_mov_b32 s{d}, s{p}')
            self(f's_mov_b32 s{d+1}, s{p+1}')
        self(f's_mov_b32 s{d+2}, {nbytes}')
        self(f's_mov_b32 s{d+3}, 0x00020000')
    def rnd2(self, a, b, t):
        self(f'v_cvt_pk_bf16_f32 v{t}, v{a}, v{b}')
        self(f'v_lshlrev_b32 v{a}, 16, v{t}')
        self(f'v_and_b32 v{b}, 0xffff0000, v{t}')
    def unpack(self, lo, hi, src):
        self(f'v_lshlrev_b32 v{lo}, 16, v{src}')
        self(f'v_and_b32 v{hi}, 0xffff0000, v{src}')
    def wave_sum(self, v, t, sdst):
        self('s_nop 1')
        self(f'v_add_f32_dpp v{t}, v{v}, v{v} quad_perm:[1,0,3,2] row_mask:0xf bank_mask:0xf')
        self('s_nop 1')
        self(f'v_add_f32_dpp v{v}, v{t}, v{t} quad_perm:[2,3,0,1] row_mask:0xf bank_mask:0xf')
        self('s_nop 1')
        self(f'v_add_f32_dpp v{t}, v{v}, v{v} row_half_mirror row_mask:0xf bank_mask:0xf')
        self('s_nop 1')
        self(f'v_add_f32_dpp v{v}, v{t}, v{t} row_mirror row_mask:0xf bank_mask:0xf')
        self('s_nop 0')
        self(f'v_readlane_b32 s52, v{v}, 16')
        self(f'v_readlane_b32 s53, v{v}, 32')
        self(f'v_readlane_b32 s54, v{v}, 48')
        self('s_nop 1')
        self(f'v_add_f32 v{v}, s52, v{v}')
        self(f'v_add_f32 v{v}, s53, v{v}')
        self(f'v_add_f32 v{v}, s54, v{v}')
        self('s_nop 0')
        self(f'v_readlane_b32 s{sdst}, v{v}, 0')
        self('s_nop 1')

a = Asm()
import os
STAMP = os.environ.get('STAMP') == '1'
def stamp(i):
    if STAMP:
        a(f's_memtime s[{60+2*i}:{61+2*i}]')
def stamp_out(n):
    if STAMP:
        a(f"""
        s_load_dwordx2 s[4:5], s[0:1], {DBG}
        s_waitcnt lgkmcnt(0)
        s_cmp_lg_u32 s2, 5
        s_cbranch_scc1 skipst_{a.uid}
        """)
        a.srd(8, 4, 256)
        for i in range(n):
            a(f"""
            v_mov_b32 v1, s{60+2*i}
            v_mov_b32 v2, {4*i}
            buffer_store_dword v1, v2, s[8:11], 0 offen
            """)
        a.label(f'skipst_{a.uid}')
        a.uid += 1


def gen_prep():
    k = 'prep_kernel'
    a.begin(k)
    a(f'''
    s_cmp_ge_u32 s2, 1460
    s_cbranch_scc1 prep_done
    s_load_dwordx2 s[4:5], s[0:1], {A_K}
    s_load_dwordx2 s[6:7], s[0:1], {A_V}
    s_load_dwordx2 s[8:9], s[0:1], {A_SK}
    s_load_dwordx2 s[10:11], s[0:1], {B_WIN}
    s_load_dwordx2 s[12:13], s[0:1], {B_WOUT}
    s_load_dwordx2 s[14:15], s[0:1], {WS}
    v_lshrrev_b32 v1, 3, v0
    v_and_b32 v2, 7, v0
    s_waitcnt lgkmcnt(0)
    s_cmp_ge_u32 s2, 640
    s_cbranch_scc1 prep_tr
    ''')
    a(f'''
    s_mov_b32 s16, 429496730
    s_mul_hi_u32 s17, s2, s16
    s_mul_i32 s18, s17, 10
    s_sub_u32 s18, s2, s18
    s_lshl_b32 s19, s17, 5
    s_lshl_b32 s20, s18, 6
    ''')
    a.srd(24, 4, 2621440)
    a.srd(28, 6, 2621440)
    a.srd(32, 8, 5120)
    a.srd(36, 14, 640*P4, KVR)
    a(f'''
    v_add_u32 v3, s19, v1
    v_mul_u32_u24 v3, 1280, v3
    v_lshlrev_b32 v4, 4, v2
    v_add_u32 v3, v3, v4
    s_lshl_b32 s21, s20, 1
    v_add_u32 v3, s21, v3
    v_subrev_u32 v5, 1280, v3
    v_subrev_u32 v6, 2560, v3
    v_subrev_u32 v7, 3840, v3
    buffer_load_dwordx4 v[8:11], v3, s[24:27], 0 offen
    buffer_load_dwordx4 v[12:15], v5, s[24:27], 0 offen
    buffer_load_dwordx4 v[16:19], v6, s[24:27], 0 offen
    buffer_load_dwordx4 v[20:23], v7, s[24:27], 0 offen
    buffer_load_dwordx4 v[24:27], v3, s[28:31], 0 offen
    v_lshlrev_b32 v4, 6, v2
    s_lshl_b32 s21, s20, 3
    v_add_u32 v4, s21, v4
    buffer_load_dwordx4 v[28:31], v4, s[32:35], 0 offen
    buffer_load_dwordx4 v[32:35], v4, s[32:35], 0 offen offset:16
    buffer_load_dwordx4 v[36:39], v4, s[32:35], 0 offen offset:32
    buffer_load_dwordx4 v[40:43], v4, s[32:35], 0 offen offset:48
    ''')
    a('''
    v_mul_u32_u24 v44, 640, v2
    v_sub_u32 v45, 31, v1
    v_lshlrev_b32 v45, 1, v45
    v_add_u32 v44, v44, v45
    s_waitcnt vmcnt(0)
    ''')
    for e in range(8):
        w = e // 2
        def g(dst, base):
            if e % 2 == 0:
                a(f'v_lshlrev_b32 v{dst}, 16, v{base+w}')
            else:
                a(f'v_and_b32 v{dst}, 0xffff0000, v{base+w}')
        g(50, 8); g(51, 12); g(52, 16); g(53, 20); g(54, 24)
        a.unpack(55, 56, 28 + 2*e)
        a.unpack(57, 58, 29 + 2*e)
        a(f'''
        v_mul_f32 v60, v53, v58
        v_mul_f32 v61, v52, v57
        ''')
        a.rnd2(60, 61, 62)
        a(f'''
        v_add_f32 v60, v60, v61
        v_mul_f32 v61, v51, v56
        ''')
        a.rnd2(60, 61, 62)
        a(f'''
        v_add_f32 v60, v60, v61
        v_mul_f32 v61, v50, v55
        ''')
        a.rnd2(60, 61, 62)
        a(f'''
        v_add_f32 v60, v60, v61
        v_cvt_pk_bf16_f32 v62, v60, v60
        v_lshlrev_b32 v60, 16, v62
        v_mul_f32 v60, v60, v54
        v_cvt_pk_bf16_f32 v62, v60, v60
        ds_write_b16 v44, v62 offset:{80*e}
        ''')
    a(f'''
    s_waitcnt lgkmcnt(0)
    s_barrier
    v_lshrrev_b32 v45, 2, v0
    v_and_b32 v46, 3, v0
    v_mul_u32_u24 v47, 80, v45
    v_lshlrev_b32 v48, 4, v46
    v_add_u32 v47, v47, v48
    ds_read_b128 v[8:11], v47
    v_add_u32 v45, s20, v45
    v_mul_u32_u24 v45, {P4}, v45
    s_sub_u32 s21, 2016, s19
    s_lshl_b32 s21, s21, 1
    v_add_u32 v45, s21, v45
    v_add_u32 v45, v45, v48
    s_waitcnt lgkmcnt(0)
    buffer_store_dwordx4 v[8:11], v45, s[36:39], 0 offen
    s_branch prep_done
    ''')
    a.label('prep_tr')
    a('''
    s_sub_u32 s16, s2, 640
    s_cmp_ge_u32 s16, 540
    s_cbranch_scc1 prep_tr2
    ''')
    a(f'''
    s_mov_b32 s17, 159072863
    s_mul_hi_u32 s18, s16, s17
    s_mul_i32 s19, s18, 27
    s_sub_u32 s19, s16, s19
    s_mov_b32 s20, 640
    s_mov_b32 s21, 1728
    ''')
    a.srd(24, 10, 2211840)
    a.srd(28, 14, 2211840, WINT)
    a('s_branch prep_tr3')
    a.label('prep_tr2')
    a(f'''
    s_sub_u32 s16, s16, 540
    s_mov_b32 s17, 429496730
    s_mul_hi_u32 s18, s16, s17
    s_mul_i32 s19, s18, 10
    s_sub_u32 s19, s16, s19
    s_mov_b32 s20, 896
    s_mov_b32 s21, 640
    ''')
    a.srd(24, 12, 1105920)
    a.srd(28, 14, 1146880, WOUTT)
    a.label('prep_tr3')
    a('''
    s_lshl_b32 s22, s18, 5
    s_lshl_b32 s23, s19, 6
    v_add_u32 v3, s22, v1
    v_mul_lo_u32 v3, v3, s21
    v_lshlrev_b32 v4, 3, v2
    v_add_u32 v3, v3, v4
    v_add_u32 v3, s23, v3
    v_lshlrev_b32 v3, 1, v3
    buffer_load_dwordx4 v[8:11], v3, s[24:27], 0 offen
    v_mul_u32_u24 v44, 640, v2
    v_lshlrev_b32 v45, 1, v1
    v_add_u32 v44, v44, v45
    s_waitcnt vmcnt(0)
    ''')
    for e in range(8):
        if e % 2 == 0:
            a(f'ds_write_b16 v44, v{8+e//2} offset:{80*e}')
        else:
            a(f'ds_write_b16_d16_hi v44, v{8+e//2} offset:{80*e}')
    a('''
    s_waitcnt lgkmcnt(0)
    s_barrier
    v_lshrrev_b32 v45, 2, v0
    v_and_b32 v46, 3, v0
    v_mul_u32_u24 v47, 80, v45
    v_lshlrev_b32 v48, 4, v46
    v_add_u32 v47, v47, v48
    ds_read_b128 v[8:11], v47
    v_add_u32 v45, s23, v45
    v_mul_lo_u32 v45, v45, s20
    v_add_u32 v45, s22, v45
    v_lshlrev_b32 v45, 1, v45
    v_add_u32 v45, v45, v48
    s_waitcnt lgkmcnt(0)
    buffer_store_dwordx4 v[8:11], v45, s[28:31], 0 offen
    ''')
    a.label('prep_done')
    a('s_endpgm')
    a.kernels.append((k, 64, 48, 64))

HP = 4384
NHC = 4
KV0 = NHC * HP
KVSZ = 9216 + 64
KV1 = KV0 + KVSZ
CONV_LDS = max(KV1 + KVSZ, 4*64*144)
def gen_conv():
    k = 'conv_kernel'
    a.begin(k)
    a(f"""
    s_cmp_ge_u32 s2, 640
    s_cbranch_scc1 conv_done
    """)
    stamp(0)
    a(f"""
    s_load_dwordx2 s[4:5], s[0:1], {A_SSMK}
    s_load_dwordx2 s[6:7], s[0:1], {A_D}
    s_load_dwordx2 s[14:15], s[0:1], {WS}
    s_lshl_b32 s16, s2, 12
    v_lshrrev_b32 v1, 6, v0
    s_nop 0
    v_readfirstlane_b32 s22, v1
    s_waitcnt lgkmcnt(0)
    s_add_u32 s4, s4, s16
    s_addc_u32 s5, s5, 0
    s_mul_i32 s16, s2, {P4}
    s_add_u32 s8, s14, s16
    s_addc_u32 s9, s15, 0
    """)
    a.srd(24, 4, 4096)
    a.srd(28, 8, 4096, KVR)
    a.srd(32, 14, 2621440, YYT)
    a.srd(36, 6, 1280)
    a(f"""
    v_lshlrev_b32 v3, 4, v0
    v_subrev_u32 v4, 128, v3
    v_subrev_u32 v5, 112, v3
    buffer_load_dwordx4 v[8:11], v4, s[24:27], 0 offen
    buffer_load_dwordx4 v[12:15], v5, s[24:27], 0 offen
    v_add_u32 v6, 4096, v3
    v_subrev_u32 v4, 128, v6
    v_subrev_u32 v5, 112, v6
    buffer_load_dwordx4 v[16:19], v4, s[24:27], 0 offen
    buffer_load_dwordx4 v[20:23], v5, s[24:27], 0 offen
    v_subrev_u32 v4, 16, v3
    buffer_load_dwordx4 v[24:27], v4, s[28:31], 0 offen
    buffer_load_dwordx4 v[28:31], v3, s[28:31], 0 offen
    s_lshl_b32 s17, s2, 1
    v_mov_b32 v4, s17
    buffer_load_ushort v39, v4, s[36:39], 0 offen
    v_lshrrev_b32 v5, 3, v0
    v_lshlrev_b32 v5, 4, v5
    v_add_u32 v7, v3, v5
    v_mov_b32 v32, 0
    v_mov_b32 v33, 0
    v_mov_b32 v34, 0
    v_mov_b32 v35, 0
    ds_write_b128 v7, v[32:35] offset:{KV0+4608}
    v_cmp_ne_u32 vcc, 0, v0
    s_and_saveexec_b64 s[40:41], vcc
    ds_write_b128 v7, v[32:35] offset:{KV1+4608}
    s_mov_b64 exec, s[40:41]
    s_waitcnt vmcnt(5)
    """)
    def hcopies(base, addr):
        for ci, c in enumerate((1, 3, 5, 7)):
            j = (c - 1)//2
            o = 40 + 4*(ci & 1)
            for i in range(4):
                a(f'v_alignbit_b32 v{o+i}, v{base+j+i+1}, v{base+j+i}, 16')
            a(f'ds_write_b128 v{addr}, v[{o}:{o+3}] offset:{ci*HP}')
    hcopies(8, 3)
    a("""
    s_waitcnt vmcnt(3)
    v_cmp_gt_u32 vcc, 16, v0
    s_and_saveexec_b64 s[40:41], vcc
    """)
    hcopies(16, 6)
    a('s_mov_b64 exec, s[40:41]')
    a(f"""
    s_waitcnt vmcnt(0)
    ds_write_b128 v7, v[28:31] offset:{KV0}
    v_alignbit_b32 v40, v28, v27, 16
    v_alignbit_b32 v41, v29, v28, 16
    v_alignbit_b32 v42, v30, v29, 16
    v_alignbit_b32 v43, v31, v30, 16
    ds_write_b128 v7, v[40:43] offset:{KV1}
    v_lshrrev_b32 v44, 16, v31
    v_mov_b32 v45, 0
    v_mov_b32 v46, 0
    v_mov_b32 v47, 0
    v_cmp_eq_u32 vcc, 255, v0
    s_and_saveexec_b64 s[40:41], vcc
    v_mov_b32 v5, {KV1+4608}
    ds_write_b128 v5, v[44:47]
    s_mov_b64 exec, s[40:41]
    v_lshlrev_b32 v39, 16, v39
    """)
    a(f"""
    v_and_b32 v2, 63, v0
    v_and_b32 v3, 31, v2
    v_lshrrev_b32 v4, 5, v2
    s_mul_i32 s42, s22, 24
    s_cmp_eq_u32 s22, 3
    s_cselect_b32 s42, 76, s42
    s_lshl_b32 s43, s42, 5
    v_lshlrev_b32 v5, 1, v3
    v_add_u32 v5, 1, v5
    v_and_b32 v6, 7, v5
    v_lshrrev_b32 v6, 1, v6
    v_mul_u32_u24 v6, {HP}, v6
    v_and_b32 v5, 0x78, v5
    v_lshl_add_u32 v5, v4, 3, v5
    v_lshl_add_u32 v36, v5, 1, v6
    v_add_u32 v36, s43, v36
    """)
    a(f"""
    v_and_b32 v5, 15, v2
    v_bfe_u32 v6, v2, 4, 1
    v_mul_u32_u24 v6, {KVSZ}, v6
    v_mul_u32_u24 v5, 144, v5
    v_sub_u32 v5, {KV0 + 1984*2 + 31*16}, v5
    v_add_u32 v5, v5, v6
    v_lshl_add_u32 v5, v4, 4, v5
    s_lshr_b32 s44, s42, 2
    s_lshl_b32 s44, s44, 4
    s_add_u32 s44, s44, s43
    v_add_u32 v37, s44, v5
    v_subrev_u32 v38, {16*144}, v37
    """)
    for i in range(32):
        a(f'v_mov_b32 v{64+i}, 0')
    stamp(1)
    a("""
    s_waitcnt lgkmcnt(0)
    s_barrier
    """)
    stamp(2)
    a("""
    s_mov_b32 s45, 6
    s_cmp_eq_u32 s22, 2
    s_cselect_b32 s45, 5, s45
    s_cmp_eq_u32 s22, 3
    s_cselect_b32 s45, 0, s45
    s_mov_b32 s46, 0
    s_cmp_eq_u32 s22, 2
    s_cselect_b32 s46, 2, s46
    s_cmp_eq_u32 s22, 3
    s_cselect_b32 s46, 14, s46
    s_cmp_eq_u32 s45, 0
    s_cbranch_scc1 conv_lb
    """)
    a.label('conv_la')
    for st in range(4):
        b = 40 + 12*(st & 1)
        a(f"""
        ds_read_b128 v[{b}:{b+3}], v36 offset:{32*st}
        ds_read_b128 v[{b+4}:{b+7}], v37 offset:{32*st}
        ds_read_b128 v[{b+8}:{b+11}], v38 offset:{32*st}
        """)
        if st > 0:
            pb = 40 + 12*((st-1) & 1)
            a(f"""
            s_waitcnt lgkmcnt(3)
            v_mfma_f32_32x32x16_bf16 v[64:79], v[{pb}:{pb+3}], v[{pb+4}:{pb+7}], v[64:79]
            v_mfma_f32_32x32x16_bf16 v[80:95], v[{pb}:{pb+3}], v[{pb+8}:{pb+11}], v[80:95]
            """)
    a(f"""
    v_add_u32 v36, 128, v36
    v_add_u32 v37, 144, v37
    v_add_u32 v38, 144, v38
    s_waitcnt lgkmcnt(0)
    v_mfma_f32_32x32x16_bf16 v[64:79], v[52:55], v[56:59], v[64:79]
    v_mfma_f32_32x32x16_bf16 v[80:95], v[52:55], v[60:63], v[80:95]
    s_sub_u32 s45, s45, 1
    s_cmp_lg_u32 s45, 0
    s_cbranch_scc1 conv_la
    """)
    a.label('conv_lb')
    a("""
    s_cmp_eq_u32 s46, 0
    s_cbranch_scc1 conv_le
    """)
    a.label('conv_lb2')
    LB = (8, 16, 24, 40)
    for st in range(4):
        b = LB[st]
        a(f"""
        ds_read_b128 v[{b}:{b+3}], v36 offset:{32*st}
        ds_read_b128 v[{b+4}:{b+7}], v38 offset:{32*st}
        """)
    a("""
    v_add_u32 v36, 128, v36
    v_add_u32 v38, 144, v38
    """)
    for st in range(4):
        b = LB[st]
        a(f"""
        s_waitcnt lgkmcnt({6-2*st})
        v_mfma_f32_32x32x16_bf16 v[80:95], v[{b}:{b+3}], v[{b+4}:{b+7}], v[80:95]
        """)
    a("""
    s_sub_u32 s46, s46, 1
    s_cmp_lg_u32 s46, 0
    s_cbranch_scc1 conv_lb2
    """)
    a.label('conv_le')
    stamp(3)
    a(f"""
    v_sub_u32 v6, 255, v0
    v_lshrrev_b32 v7, 3, v6
    v_add_u32 v6, v6, v7
    v_lshlrev_b32 v6, 4, v6
    ds_read_b128 v[8:11], v6 offset:{KV0}
    s_waitcnt lgkmcnt(0)
    s_barrier
    s_nop 7
    s_mul_i32 s43, s22, 9216
    v_mul_u32_u24 v5, 144, v3
    v_lshl_add_u32 v5, v4, 4, v5
    v_add_u32 v5, s43, v5
    """)
    for T in range(2):
        for q in range(4):
            r = 64 + 16*T + 4*q
            a(f'ds_write_b128 v5, v[{r}:{r+3}] offset:{T*32*144 + q*32}')
    a(f"""
    v_lshrrev_b32 v5, 3, v0
    v_and_b32 v6, 15, v5
    v_lshrrev_b32 v7, 4, v5
    v_lshl_add_u32 v6, v7, 5, v6
    v_mul_u32_u24 v6, 144, v6
    v_and_b32 v7, 7, v0
    v_lshl_add_u32 v5, v7, 4, v6
    s_waitcnt lgkmcnt(0)
    s_barrier
    """)
    for w in range(4):
        for r in range(2):
            a(f'ds_read_b128 v[{40+8*w+4*r}:{43+8*w+4*r}], v5 offset:{w*9216 + r*16*144}')
    a('s_waitcnt lgkmcnt(0)')
    for r in range(2):
        for i in range(0, 4, 2):
            x = 40 + 4*r + i
            a(f"""
            v_pk_add_f32 v[{x}:{x+1}], v[{x}:{x+1}], v[{x+8}:{x+9}]
            v_pk_add_f32 v[{x+16}:{x+17}], v[{x+16}:{x+17}], v[{x+24}:{x+25}]
            v_pk_add_f32 v[{x}:{x+1}], v[{x}:{x+1}], v[{x+16}:{x+17}]
            """)
    for i in range(4):
        b0, b1 = 40 + i, 44 + i
        e = 2*i
        a.rnd2(b0, b1, 12)
        p0, p1 = 7 - e, 7 - (e+1)
        a(f"""
        v_and_b32 v13, 0xffff0000, v{8 + p0//2}
        v_lshlrev_b32 v14, 16, v{8 + p1//2}
        v_mul_f32 v13, v13, v39
        v_mul_f32 v14, v14, v39
        """)
        a.rnd2(13, 14, 12)
        a(f"""
        v_add_f32 v13, v13, v{b0}
        v_add_f32 v14, v14, v{b1}
        v_cvt_pk_bf16_f32 v{16+i}, v13, v14
        """)
    a("""
    v_mul_u32_u24 v3, 10240, v0
    s_lshl_b32 s16, s2, 4
    v_add_u32 v3, s16, v3
    buffer_store_dwordx4 v[16:19], v3, s[32:35], 0 offen
    """)
    if STAMP:
        a('s_waitcnt vmcnt(0)')
    stamp(4)
    stamp_out(5)
    a.label('conv_done')
    a('s_endpgm')
    a.kernels.append((k, 96, 80, 96))

def ln_pk(X, npair, n_elems, Q, T, mask_last=False):
    a(f'v_pk_add_f32 v[{T}:{T+1}], v[{X}:{X+1}], v[{X+2}:{X+3}]')
    for i in range(2, npair):
        a(f'v_pk_add_f32 v[{T}:{T+1}], v[{T}:{T+1}], v[{X+2*i}:{X+2*i+1}]')
    a(f'v_add_f32 v{T}, v{T}, v{T+1}')
    a.wave_sum(T, T+1, 50)
    a(f"""
    v_mov_b32 v{T}, {1.0/n_elems!r}
    v_mul_f32 v{T+2}, s50, v{T}
    v_mul_f32 v{T+3}, s50, v{T}
    v_mov_b32 v{T+4}, 0
    v_mov_b32 v{T+5}, 0
    """)
    for i in range(npair):
        a(f'v_pk_add_f32 v[{T}:{T+1}], v[{X+2*i}:{X+2*i+1}], v[{T+2}:{T+3}] neg_lo:[0,1] neg_hi:[0,1]')
        if mask_last and i == npair-1:
            a(f"""
            v_cndmask_b32 v{T}, 0, v{T}, s[58:59]
            v_cndmask_b32 v{T+1}, 0, v{T+1}, s[58:59]
            """)
        a(f'v_pk_fma_f32 v[{T+4}:{T+5}], v[{T}:{T+1}], v[{T}:{T+1}], v[{T+4}:{T+5}]')
    a(f'v_add_f32 v{T}, v{T+4}, v{T+5}')
    a.wave_sum(T, T+1, 51)
    a(f"""
    v_mov_b32 v{T}, {1.0/n_elems!r}
    v_mul_f32 v{T+4}, s51, v{T}
    """)
    a.rnd2(T+2, T+4, T)
    a(f"""
    v_mov_b32 v{T+3}, v{T+2}
    v_add_f32 v{T+4}, 0x3727c5ac, v{T+4}
    v_cvt_pk_bf16_f32 v{T}, v{T+4}, v{T+4}
    v_lshlrev_b32 v{T+4}, 16, v{T}
    v_sqrt_f32 v{T+4}, v{T+4}
    s_nop 0
    v_cvt_pk_bf16_f32 v{T}, v{T+4}, v{T+4}
    v_lshlrev_b32 v{T+4}, 16, v{T}
    v_rcp_f32 v{T+6}, v{T+4}
    s_nop 0
    v_fma_f32 v{T}, -v{T+4}, v{T+6}, 2.0
    v_mul_f32 v{T+6}, v{T+6}, v{T}
    v_mov_b32 v{T+7}, v{T+6}
    """)
    for i in range(npair):
        q = Q + 2*i
        a(f'v_pk_add_f32 v[{q}:{q+1}], v[{X+2*i}:{X+2*i+1}], v[{T+2}:{T+3}] neg_lo:[0,1] neg_hi:[0,1]')
        a.rnd2(q, q+1, T)
        a(f'v_pk_mul_f32 v[{q}:{q+1}], v[{q}:{q+1}], v[{T+6}:{T+7}]')

def gen_row(k, xin_arg, xin_off, xout_off):
    a.begin(k)
    done = k + '_done'
    a(f"""
    s_cmp_ge_u32 s2, 256
    s_cbranch_scc1 {done}
    s_load_dwordx2 s[4:5], s[0:1], {xin_arg}
    s_load_dwordx2 s[14:15], s[0:1], {WS}
    v_lshrrev_b32 v1, 6, v0
    v_and_b32 v2, 63, v0
    s_lshl_b32 s17, s2, 3
    v_add_u32 v3, s17, v1
    v_mul_u32_u24 v3, 1280, v3
    v_lshl_add_u32 v3, v2, 2, v3
    s_waitcnt lgkmcnt(0)
    """)
    a.srd(24, 4, 2621440, xin_off)
    a.srd(28, 14, 2621440, YYT)
    a.srd(32, 14, 2621440, xout_off)
    a.srd(36, 14, 2621440, HH)
    for j in range(5):
        a(f'buffer_load_dword v{8+j}, v3, s[24:27], 0 offen offset:{256*j}')
    a("""
    s_mul_i32 s16, s2, 10240
    v_lshlrev_b32 v6, 4, v0
    v_add_u32 v4, s16, v6
    v_cmp_gt_u32 vcc, 128, v0
    v_add_u32 v5, 8192, v4
    s_nop 0
    v_cndmask_b32 v5, -1, v5, vcc
    buffer_load_dwordx4 v[16:19], v4, s[28:31], 0 offen
    buffer_load_dwordx4 v[20:23], v5, s[28:31], 0 offen
    s_waitcnt vmcnt(0)
    ds_write_b128 v6, v[16:19]
    ds_write_b128 v6, v[20:23] offset:8192
    v_lshlrev_b32 v4, 5, v2
    v_lshl_add_u32 v4, v1, 1, v4
    """)
    for j in range(5):
        a.unpack(16+2*j, 17+2*j, 8+j)
    a("""
    s_waitcnt lgkmcnt(0)
    s_barrier
    """)
    for j in range(5):
        a(f'ds_read_u16 v{40+2*j}, v4 offset:{2048*j}')
        a(f'ds_read_u16 v{41+2*j}, v4 offset:{2048*j + 16}')
    ln_pk(16, 5, 640, 28, 52)
    a('s_waitcnt lgkmcnt(0)')
    for j in range(10):
        a(f'v_lshlrev_b32 v{40+j}, 16, v{40+j}')
    for i in range(5):
        q, x, y = 28+2*i, 16+2*i, 40+2*i
        a.rnd2(q, q+1, 56)
        a(f'v_pk_mul_f32 v[{q}:{q+1}], v[{q}:{q+1}], v[{y}:{y+1}]')
        a.rnd2(q, q+1, 56)
        a(f'v_pk_add_f32 v[{x}:{x+1}], v[{x}:{x+1}], v[{q}:{q+1}]')
        a.rnd2(x, x+1, 8+i)
        a(f'buffer_store_dword v{8+i}, v3, s[32:35], 0 offen offset:{256*i}')
    ln_pk(16, 5, 640, 28, 52)
    for i in range(5):
        a(f'v_cvt_pk_bf16_f32 v{40+i}, v{28+2*i}, v{29+2*i}')
        a(f'buffer_store_dword v{40+i}, v3, s[36:39], 0 offen offset:{256*i}')
    a.label(done)
    a('s_endpgm')
    a.kernels.append((k, 64, 64, 64))

def gen_lnz():
    k = 'lnz_kernel'
    a.begin(k)
    a(f"""
    s_cmp_ge_u32 s2, 256
    s_cbranch_scc1 lnz_done
    s_load_dwordx2 s[14:15], s[0:1], {WS}
    v_lshrrev_b32 v1, 6, v0
    v_and_b32 v2, 63, v0
    s_lshl_b32 s17, s2, 3
    v_add_u32 v3, s17, v1
    v_mul_u32_u24 v3, 3456, v3
    v_lshl_add_u32 v3, v2, 2, v3
    v_cmp_gt_u32 s[58:59], 48, v2
    v_add_u32 v4, {1728 + 256*6}, v3
    s_nop 0
    v_cndmask_b32 v4, -1, v4, s[58:59]
    s_waitcnt lgkmcnt(0)
    """)
    a.srd(24, 14, 7077888, ZZ)
    a.srd(28, 14, 256*14336, Z2T)
    for j in range(6):
        a(f'buffer_load_dword v{8+j}, v3, s[24:27], 0 offen offset:{1728 + 256*j}')
    a("""
    buffer_load_dword v14, v4, s[24:27], 0 offen
    v_lshlrev_b32 v4, 5, v2
    v_lshl_add_u32 v4, v1, 1, v4
    s_waitcnt vmcnt(0)
    """)
    for j in range(7):
        a.unpack(16+2*j, 17+2*j, 8+j)
    ln_pk(16, 7, 864, 32, 52, mask_last=True)
    for j in range(7):
        a(f'v_cvt_pk_bf16_f32 v{8+j}, v{32+2*j}, v{33+2*j}')
        if j == 6:
            a('v_cndmask_b32 v14, 0, v14, s[58:59]')
        a(f"""
        ds_write_b16 v4, v{8+j} offset:{2048*j}
        ds_write_b16_d16_hi v4, v{8+j} offset:{2048*j + 16}
        """)
    a("""
    s_waitcnt lgkmcnt(0)
    s_barrier
    v_lshlrev_b32 v4, 4, v0
    ds_read_b128 v[8:11], v4
    ds_read_b128 v[12:15], v4 offset:8192
    s_mul_i32 s16, s2, 14336
    v_add_u32 v3, s16, v4
    v_cmp_gt_u32 vcc, 384, v0
    v_add_u32 v5, 8192, v3
    s_nop 0
    v_cndmask_b32 v5, -1, v5, vcc
    s_waitcnt lgkmcnt(0)
    buffer_store_dwordx4 v[8:11], v3, s[28:31], 0 offen
    buffer_store_dwordx4 v[12:15], v5, s[28:31], 0 offen
    """)
    a.label('lnz_done')
    a('s_endpgm')
    a.kernels.append((k, 64, 64, 64))

def gen_gemm(k, WM, WN, BK, K, M, N, A_src, B_src, epi, D=4, GM=2, GN=4, blk=0):
    ldb = 16 if blk else K*2
    BM, BN = GM*WM, GN*WN
    NT = 64*GM*GN
    TM, TN = WM//32, WN//32
    nmt, nnt = M//BM, -(-N//BN)
    rowb = 128
    nsteps = K//BK
    Abytes, Bbytes = BM*rowb, BN*rowb
    stage = Abytes + Bbytes
    PB = NT*16
    nla, nlb = Abytes//PB, Bbytes//PB
    nl = nla + nlb
    RPL = NT//8
    done = k + '_done'
    a.begin(k)
    a(f"""
    s_cmp_ge_u32 s2, {nmt*nnt}
    s_cbranch_scc1 {done}
    """)
    stamp(0)
    a(f"""
    s_load_dwordx2 s[4:5], s[0:1], {A_src[0]}
    s_load_dwordx2 s[6:7], s[0:1], {B_src[0]}
    s_load_dwordx2 s[14:15], s[0:1], {WS}
    s_load_dwordx2 s[10:11], s[0:1], {B_BSP}
    s_load_dwordx2 s[12:13], s[0:1], {OUT}
    s_and_b32 s16, s2, {nmt-1}
    s_lshr_b32 s17, s2, {nmt.bit_length()-1}
    s_mul_i32 s18, s16, {BM}
    s_mul_i32 s19, s17, {BN}
    v_lshrrev_b32 v1, 6, v0
    v_lshlrev_b32 v1, 10, v1
    s_nop 0
    v_readfirstlane_b32 s22, v1
    s_waitcnt lgkmcnt(0)
    """)
    a.srd(24, 4, M*K*2, A_src[1])
    a.srd(28, 6, (K//8)*blk*16 if blk else N*ldb, B_src[1])
    a(f"""
    v_lshrrev_b32 v1, 3, v0
    v_and_b32 v2, 7, v0
    v_lshrrev_b32 v3, 1, v1
    v_and_b32 v3, 7, v3
    v_xor_b32 v2, v2, v3
    v_lshlrev_b32 v2, 4, v2
    v_add_u32 v3, s18, v1
    v_mul_u32_u24 v3, {K*2}, v3
    v_add_u32 v4, v3, v2
    v_add_u32 v3, s19, v1
    v_mul_u32_u24 v3, {ldb}, v3
    v_mul_u32_u24 v9, {blk if blk else 1}, v2
    v_add_u32 v8, v3, v9
    """)
    for i in range(1, nla):
        a(f'v_add_u32 v{4+i}, {RPL*i*K*2}, v4')
    for i in range(1, nlb):
        a(f'v_add_u32 v{8+i}, {RPL*i*ldb}, v8')
    a(f"""
    v_lshrrev_b32 v1, 6, v0
    v_and_b32 v2, 63, v0
    v_and_b32 v3, 31, v2
    v_lshrrev_b32 v20, 5, v2
    v_and_b32 v21, {GM-1}, v1
    v_lshrrev_b32 v22, {GM.bit_length()-1}, v1
    """)
    nkk = 4
    AB, AR = 12, 24
    for (isB, wsel, W, R) in ((0, 21, WM, AB), (1, 22, WN, AB+4)):
        a(f"""
        v_mul_u32_u24 v23, {W}, v{wsel}
        v_add_u32 v23, v23, v3
        v_lshrrev_b32 v{R}, 1, v23
        v_and_b32 v{R}, 7, v{R}
        v_xor_b32 v{R}, v{R}, v20
        v_mul_u32_u24 v23, {rowb}, v23
        """)
        if isB:
            a(f'v_add_u32 v23, {Abytes}, v23')
        for kk in range(3, -1, -1):
            a(f"""
            v_xor_b32 v{R+kk}, {2*kk}, v{R}
            v_lshl_add_u32 v{R+kk}, v{R+kk}, 4, v23
            """)
    FA = 32
    FB = FA + 4*TM*2
    ACC = 64
    nacc = TM*TN*16
    EPR = ACC + nacc
    global G_EPR, G_BM, G_BN
    G_EPR = EPR
    global G_NT
    G_BM, G_BN = BM, BN
    G_NT = NT
    assert FB + 4*TN*2 <= ACC
    for i in range(nacc):
        a(f'v_mov_b32 v{ACC+i}, 0')
    a(f"""
    v_mul_u32_u24 v23, {WM}, v21
    v_add_u32 v23, v23, v3
    v_add_u32 v{EPR}, s18, v23
    v_mul_u32_u24 v23, {WN}, v22
    v_lshlrev_b32 v{EPR+1}, 2, v20
    v_add_u32 v23, v23, v{EPR+1}
    v_add_u32 v{EPR+1}, s19, v23
    """)
    epi(TM, TN, ACC, True)
    def gload():
        for i in range(nl):
            a(f's_add_u32 m0, s55, {i*PB}')
            a('s_nop 0')
            if i < nla:
                a(f'buffer_load_dwordx4 v{4+i}, s[24:27], s20 offen lds')
            else:
                a(f'buffer_load_dwordx4 v{8+i-nla}, s[28:31], s21 offen lds')
        a(f"""
        s_add_u32 s20, s20, {rowb}
        s_add_u32 s21, s21, {8*blk*16 if blk else rowb}
        s_add_u32 s55, s55, {stage}
        s_cmp_lt_u32 s55, {D*stage}
        s_cselect_b32 s55, s55, s22
        """)
    lp, lm, lw, lnl = [a.newlabel(x) for x in ('gp', 'gm', 'gw', 'gn')]
    a(f"""
    s_mov_b32 s20, 0
    s_mov_b32 s21, 0
    s_mov_b32 s55, s22
    s_mov_b32 s48, 0
    s_mov_b32 s49, 0
    """)
    stamp(1)
    a.label(lp)
    gload()
    a(f"""
    s_add_u32 s48, s48, 1
    s_cmp_lt_u32 s48, {D-1}
    s_cbranch_scc1 {lp}
    s_mov_b32 s48, 0
    """)
    stamp(2)
    a.label(lm)
    a(f"""
    s_cmp_lt_u32 s48, {nsteps-(D-2)}
    s_cbranch_scc1 {lw}
    s_waitcnt vmcnt(0)
    """)
    a.label(lw)
    a(f"""
    s_waitcnt vmcnt({nl*(D-2)})
    s_barrier
    """)
    for i in range(8):
        a(f'v_add_u32 v{AR+i}, s49, v{AB+i}')
    def rd(kk, s):
        for i in range(TM):
            f = FA + 4*(s*TM + i)
            a(f'ds_read_b128 v[{f}:{f+3}], v{AR+kk} offset:{i*32*rowb}')
        for i in range(TN):
            f = FB + 4*(s*TN + i)
            a(f'ds_read_b128 v[{f}:{f+3}], v{AR+4+kk} offset:{i*32*rowb}')
    rd(0, 0)
    a(f"""
    s_cmp_lt_u32 s48, {nsteps-(D-1)}
    s_cbranch_scc0 {lnl}
    """)
    lend = a.newlabel('gx')
    for withload in (True, False):
        if not withload:
            a.label(lnl)
        nm = 0
        li = 0
        tot = nkk*TM*TN
        for kk in range(nkk):
            s_ = kk & 1
            if kk + 1 < nkk:
                rd(kk+1, s_ ^ 1)
                a(f's_waitcnt lgkmcnt({TM+TN})')
            else:
                a('s_waitcnt lgkmcnt(0)')
            for i in range(TM):
                for j in range(TN):
                    fa = FA + 4*(s_*TM + i)
                    fb = FB + 4*(s_*TN + j)
                    c = ACC + 16*(i*TN + j)
                    a(f'v_mfma_f32_32x32x16_bf16 v[{c}:{c+15}], v[{fb}:{fb+3}], v[{fa}:{fa+3}], v[{c}:{c+15}]')
                    nm += 1
                    if withload:
                        while li < nl and li * tot < nm * nl:
                            a(f's_add_u32 m0, s55, {li*PB}')
                            a('s_nop 0')
                            if li < nla:
                                a(f'buffer_load_dwordx4 v{4+li}, s[24:27], s20 offen lds')
                            else:
                                a(f'buffer_load_dwordx4 v{8+li-nla}, s[28:31], s21 offen lds')
                            li += 1
        if withload:
            a(f"""
            s_add_u32 s20, s20, {rowb}
            s_add_u32 s21, s21, {8*blk*16 if blk else rowb}
            s_add_u32 s55, s55, {stage}
            s_cmp_lt_u32 s55, {D*stage}
            s_cselect_b32 s55, s55, s22
            s_branch {lend}
            """)
    a.label(lend)
    a(f"""
    s_add_u32 s49, s49, {stage}
    s_cmp_lt_u32 s49, {D*stage}
    s_cselect_b32 s49, s49, 0
    s_add_u32 s48, s48, 1
    s_cmp_lt_u32 s48, {nsteps}
    s_cbranch_scc1 {lm}
    s_nop 7
    s_nop 7
    """)
    stamp(3)
    a('s_barrier')
    le = a.newlabel('ge')
    lg = TN.bit_length() - 1
    epi(TM, TN, ACC, 'setup')
    a('s_mov_b32 s48, 0')
    a.label(le)
    a(f"""
    s_lshl_b32 s56, s48, 2
    s_lshr_b32 s49, s48, {2+lg}
    s_lshl_b32 s49, s49, 5
    s_lshr_b32 s55, s48, 2
    s_and_b32 s55, s55, {TN-1}
    s_lshl_b32 s55, s55, 5
    s_and_b32 s20, s48, 3
    s_lshl_b32 s20, s20, 3
    s_add_u32 s55, s55, s20
    s_set_gpr_idx_on s56, gpr_idx(SRC0)
    v_mov_b32 v40, v{ACC}
    v_mov_b32 v41, v{ACC+1}
    v_mov_b32 v42, v{ACC+2}
    v_mov_b32 v43, v{ACC+3}
    s_set_gpr_idx_off
    v_add_u32 v4, s49, v{EPR}
    v_add_u32 v5, s55, v{EPR+1}
    """)
    epi(TM, TN, ACC, 'body')
    a(f"""
    s_add_u32 s48, s48, 1
    s_cmp_lt_u32 s48, {nacc//4}
    s_cbranch_scc1 {le}
    s_waitcnt lgkmcnt(0)
    s_barrier
    """)
    epi(TM, TN, ACC, 'out')
    a('s_waitcnt vmcnt(0)')
    stamp(4)
    stamp_out(5)
    a.label(done)
    a('s_endpgm')
    lds = D*stage
    a.kernels.append((k, EPR + 4 + 24, 80, EPR + 4 + 24))
    return nmt*nnt, lds, NT

def gelu_regs(x, t0, t1):
    a(f'''
    v_mul_f32 v{t0}, v{x}, v{x}
    v_mul_f32 v{t0}, v{t0}, v{x}
    v_fma_f32 v{t0}, v{t0}, s46, v{x}
    v_mul_f32 v{t0}, s47, v{t0}
    v_exp_f32 v{t0}, v{t0}
    s_nop 0
    v_add_f32 v{t0}, 1.0, v{t0}
    v_rcp_f32 v{t0}, v{t0}
    s_nop 0
    v_fma_f32 v{t0}, v{t0}, -2.0, 2.0
    v_mul_f32 v{t1}, 0.5, v{x}
    v_mul_f32 v{x}, v{t1}, v{t0}
    ''')

def tile_addr():
    pitch = G_BN*2 + 16
    a(f"""
    v_subrev_u32 v6, s18, v4
    v_mul_u32_u24 v6, {pitch}, v6
    v_subrev_u32 v7, s19, v5
    v_lshl_add_u32 v7, v7, 1, v6
    """)

def out_chunks(t=4):
    cpr = G_BN // 8
    n = G_BM*G_BN*2//16//G_NT
    pitch = G_BN*2 + 16
    sh = cpr.bit_length()-1
    for i in range(n):
        a(f"""
        v_add_u32 v{t+2}, {G_NT*i}, v0
        v_lshrrev_b32 v{t}, {sh}, v{t+2}
        v_and_b32 v{t+1}, {cpr-1}, v{t+2}
        v_lshlrev_b32 v{t+1}, 3, v{t+1}
        v_mul_u32_u24 v{t+3}, {pitch}, v{t}
        v_lshl_add_u32 v{t+3}, v{t+1}, 1, v{t+3}
        v_add_u32 v{t}, s18, v{t}
        v_add_u32 v{t+1}, s19, v{t+1}
        """)
        yield i

def epi_gemm1(TM, TN, ACC, pre):
    if pre is True:
        return
    if pre == 'setup':
        a.srd(32, 14, 7077888, ZZ)
        a("""
        v_mov_b32 v48, 0x3dd2d3e8
        v_mov_b32 v49, 0x3dd2d3e8
        v_mov_b32 v50, 0x40135761
        v_mov_b32 v51, 0x40135761
        v_mov_b32 v52, 1.0
        v_mov_b32 v53, 1.0
        """)
        return
    if pre == 'out':
        for i in out_chunks():
            r = 32 + 4*(i % 8)
            a(f"""
            ds_read_b128 v[{r}:{r+3}], v7
            v_mul_u32_u24 v6, 3456, v4
            v_cmp_gt_u32 vcc, 1728, v5
            v_lshl_add_u32 v6, v5, 1, v6
            s_nop 0
            v_cndmask_b32 v6, -1, v6, vcc
            s_waitcnt lgkmcnt(0)
            buffer_store_dwordx4 v[{r}:{r+3}], v6, s[32:35], 0 offen
            """)
        return
    a.rnd2(40, 41, 8)
    a.rnd2(42, 43, 9)
    a("""
    v_pk_mul_f32 v[44:45], v[40:41], v[40:41]
    v_pk_mul_f32 v[46:47], v[42:43], v[42:43]
    v_pk_fma_f32 v[44:45], v[44:45], v[48:49], v[50:51]
    v_pk_fma_f32 v[46:47], v[46:47], v[48:49], v[50:51]
    v_pk_mul_f32 v[44:45], v[44:45], v[40:41]
    v_pk_mul_f32 v[46:47], v[46:47], v[42:43]
    v_exp_f32 v44, v44
    v_exp_f32 v45, v45
    v_exp_f32 v46, v46
    v_exp_f32 v47, v47
    v_pk_add_f32 v[44:45], v[44:45], v[52:53]
    v_pk_add_f32 v[46:47], v[46:47], v[52:53]
    v_rcp_f32 v44, v44
    v_rcp_f32 v45, v45
    v_rcp_f32 v46, v46
    v_rcp_f32 v47, v47
    """)
    tile_addr()
    a("""
    v_pk_fma_f32 v[40:41], v[40:41], v[44:45], v[40:41] neg_lo:[1,0,0] neg_hi:[1,0,0]
    v_pk_fma_f32 v[42:43], v[42:43], v[46:47], v[42:43] neg_lo:[1,0,0] neg_hi:[1,0,0]
    v_cvt_pk_bf16_f32 v10, v40, v41
    v_cvt_pk_bf16_f32 v11, v42, v43
    ds_write_b64 v7, v[10:11]
    """)

def epi_gemm2(TM, TN, ACC, pre):
    E = G_EPR
    R, C = E, E+1
    Z = E + 2 + (E+2) % 4
    Z = ((E + 2 + 3)//4)*4
    BS = Z + 16
    if pre is True:
        a.srd(32, 14, 7077888, ZZ)
        a.srd(44, 10, 4096)
        for i in range(TM):
            a(f"""
            v_add_u32 v23, {32*i}, v{R}
            v_lshlrev_b32 v{BS+4}, 1, v23
            buffer_load_ushort v{BS+i}, v{BS+4}, s[44:47], 0 offen
            """)
        for i in out_chunks(40):
            a(f"""
            v_mul_u32_u24 v42, 3456, v40
            v_cmp_gt_u32 vcc, 864, v41
            v_lshl_add_u32 v42, v41, 1, v42
            s_nop 0
            v_cndmask_b32 v42, -1, v42, vcc
            buffer_load_dwordx4 v[{Z+4*i}:{Z+4*i+3}], v42, s[32:35], 0 offen
            """)
        return
    if pre == 'setup':
        a.srd(36, 14, 3670016, UU)
        for i in range(TM):
            a(f'v_lshlrev_b32 v{BS+i}, 16, v{BS+i}')
        return
    if pre == 'out':
        for i in out_chunks():
            a(f"""
            ds_read_b128 v[32:35], v7
            v_mul_u32_u24 v6, 1792, v4
            v_lshl_add_u32 v6, v5, 1, v6
            s_waitcnt lgkmcnt(0)
            """)
            for w in range(4):
                a.unpack(36, 37, 32+w)
                a.unpack(38, 39, Z+4*i+w)
                a(f"""
                v_mul_f32 v36, v36, v38
                v_mul_f32 v37, v37, v39
                v_cvt_pk_bf16_f32 v{Z+4*i+w}, v36, v37
                """)
            a(f'buffer_store_dwordx4 v[{Z+4*i}:{Z+4*i+3}], v6, s[36:39], 0 offen')
        return
    lg = TN.bit_length() - 1
    a(f"""
    s_lshr_b32 s56, s48, {2+lg}
    s_set_gpr_idx_on s56, gpr_idx(SRC0)
    v_mov_b32 v12, v{BS}
    s_set_gpr_idx_off
    """)
    tile_addr()
    a.rnd2(40, 41, 8)
    a.rnd2(42, 43, 9)
    for e in range(4):
        a(f'v_add_f32 v{40+e}, v{40+e}, v12')
    a("""
    v_cvt_pk_bf16_f32 v10, v40, v41
    v_cvt_pk_bf16_f32 v11, v42, v43
    ds_write_b64 v7, v[10:11]
    """)

def make_epi_gemm3(xin_off, out_ws_off):
    def epi(TM, TN, ACC, pre):
        E = G_EPR
        Z = ((E + 2 + 3)//4)*4
        if pre is True:
            a.srd(32, 14, 2621440, xin_off)
            for i in out_chunks(40):
                a(f"""
                v_mul_u32_u24 v42, 1280, v40
                v_lshl_add_u32 v42, v41, 1, v42
                buffer_load_dwordx4 v[{Z+4*i}:{Z+4*i+3}], v42, s[32:35], 0 offen
                """)
            return
        if pre == 'setup':
            if out_ws_off is None:
                a.srd(36, 12, 2621440)
            else:
                a.srd(36, 14, 2621440, out_ws_off)
            return
        if pre == 'out':
            for i in out_chunks():
                a(f"""
                ds_read_b128 v[32:35], v7
                v_mul_u32_u24 v6, 1280, v4
                v_lshl_add_u32 v6, v5, 1, v6
                s_waitcnt lgkmcnt(0)
                """)
                for w in range(4):
                    a.unpack(36, 37, 32+w)
                    a.unpack(38, 39, Z+4*i+w)
                    a(f"""
                    v_add_f32 v36, v36, v38
                    v_add_f32 v37, v37, v39
                    v_cvt_pk_bf16_f32 v{Z+4*i+w}, v36, v37
                    """)
                a(f'buffer_store_dwordx4 v[{Z+4*i}:{Z+4*i+3}], v6, s[36:39], 0 offen')
            return
        tile_addr()
        a("""
        v_cvt_pk_bf16_f32 v10, v40, v41
        v_cvt_pk_bf16_f32 v11, v42, v43
        ds_write_b64 v7, v[10:11]
        """)
    return epi

gen_prep()
gen_conv()
gen_row('rowa_kernel', A_Q, 0, X1)
gen_row('rowb_kernel', WS, X2, X3)
gen_lnz()
g1, l1, t1 = gen_gemm('gemm1_kernel', 64, 32, 64, 640, 2048, 1728, (WS, HH), (WS, WINT), epi_gemm1, D=4, GM=2, GN=4)
g2, l2, t2 = gen_gemm('gemm2_kernel', 32, 32, 64, 2048, 2048, 864, (B_WSP, 0), (WS, Z2T), epi_gemm2, D=4, GM=4, GN=2, blk=896)
g3, l3, t3 = gen_gemm('gemm3a_kernel', 32, 32, 64, 896, 2048, 640, (WS, UU), (WS, WOUTT), make_epi_gemm3(X1, X2), D=4, GM=4, GN=2)
g3, l3, t3 = gen_gemm('gemm3b_kernel', 32, 32, 64, 896, 2048, 640, (WS, UU), (WS, WOUTT), make_epi_gemm3(X3, None), D=4, GM=4, GN=2)

launches = [
    ('prep_kernel', 1460, 5120, 256),
    ('conv_kernel', 640, CONV_LDS, 256),
    ('rowa_kernel', 256, 16384, 512),
    ('gemm1_kernel', g1, l1, t1),
    ('lnz_kernel', 256, 16384, 512),
    ('gemm2_kernel', g2, l2, t2),
    ('gemm3a_kernel', g3, l3, t3),
    ('rowb_kernel', 256, 16384, 512),
    ('gemm1_kernel', g1, l1, t1),
    ('lnz_kernel', 256, 16384, 512),
    ('gemm2_kernel', g2, l2, t2),
    ('gemm3b_kernel', g3, l3, t3),
]

ref = open('cdna_kernels/' + NAME + '.s.ref').read().split('\n')
head = [l for l in ref if l.startswith(';') and '@launch' not in l]
out = head[:]
for (k, g, lds, nt) in launches:
    out.append(f'; @launch kernel={k} grid=({g},1,1) block=({nt},1,1) lds={lds}')
out.append('.amdgcn_target "amdgcn-amd-amdhsa--gfx950"')
out.append('.text')
out += a.L
out.append('.section .rodata,"a"')
for (k, v, s, acc) in a.kernels:
    out.append('.p2align 6')
    out.append(f'.amdhsa_kernel {k}')
    out.append(f'  .amdhsa_next_free_vgpr {v}')
    out.append(f'  .amdhsa_next_free_sgpr {s}')
    out.append(f'  .amdhsa_accum_offset {((acc+3)//4)*4}')
    out.append('  .amdhsa_group_segment_fixed_size 0')
    out.append('  .amdhsa_kernarg_size 112')
    out.append('  .amdhsa_user_sgpr_count 2')
    out.append('  .amdhsa_user_sgpr_kernarg_segment_ptr 1')
    out.append('  .amdhsa_system_sgpr_workgroup_id_x 1')
    out.append('.end_amdhsa_kernel')
open('stamp.s' if STAMP else 'cdna_kernels/' + NAME + '.s', 'w').write('\n'.join(out) + '\n')
print('ok', len(out), 'lines', g1, l1, g2, l2, g3, l3)
```

```python
NAME = "interleave_layers__ssm_conv_h3__mixer_gmlp__prompt"

KVR = 0x0
P4 = 4352
YYT = 0x300000
WINT = 0x600000
WOUTT = 0x900000
X1 = 0xB00000
X2 = 0xE00000
X3 = 0x1100000
HH = 0x1400000
ZZ = 0x1700000
Z2T = 0x1E00000
UU = 0x2200000

A_Q, A_K, A_V, A_SK, A_SSMK, A_D, B_X, B_WIN, B_WSP, B_BSP, B_WOUT, OUT, DBG, WS = [8*i for i in range(14)]

class Asm:
    def __init__(self):
        self.L = []
        self.kernels = []
        self.launches = []
        self.uid = 0
    def __call__(self, s):
        for line in s.strip().split('\n'):
            self.L.append('    ' + line.strip())
    def label(self, l):
        self.L.append(l + ':')
    def newlabel(self, p='L'):
        self.uid += 1
        return f'{p}_{self.uid}'
    def begin(self, label):
        self.L.append('.globl ' + label)
        self.L.append('.p2align 8')
        self.L.append(f'.type {label},@function')
        self.label(label)
    def srd(self, d, p, nbytes, off=0):
        if off:
            self(f's_add_u32 s{d}, s{p}, {off}')
            self(f's_addc_u32 s{d+1}, s{p+1}, 0')
        else:
            self(f's_mov_b32 s{d}, s{p}')
            self(f's_mov_b32 s{d+1}, s{p+1}')
        self(f's_mov_b32 s{d+2}, {nbytes}')
        self(f's_mov_b32 s{d+3}, 0x00020000')
    def rnd2(self, a, b, t):
        self(f'v_cvt_pk_bf16_f32 v{t}, v{a}, v{b}')
        self(f'v_lshlrev_b32 v{a}, 16, v{t}')
        self(f'v_and_b32 v{b}, 0xffff0000, v{t}')
    def unpack(self, lo, hi, src):
        self(f'v_lshlrev_b32 v{lo}, 16, v{src}')
        self(f'v_and_b32 v{hi}, 0xffff0000, v{src}')
    def wave_sum(self, v, t, sdst):
        self('s_nop 1')
        self(f'v_add_f32_dpp v{t}, v{v}, v{v} quad_perm:[1,0,3,2] row_mask:0xf bank_mask:0xf')
        self('s_nop 1')
        self(f'v_add_f32_dpp v{v}, v{t}, v{t} quad_perm:[2,3,0,1] row_mask:0xf bank_mask:0xf')
        self('s_nop 1')
        self(f'v_add_f32_dpp v{t}, v{v}, v{v} row_half_mirror row_mask:0xf bank_mask:0xf')
        self('s_nop 1')
        self(f'v_add_f32_dpp v{v}, v{t}, v{t} row_mirror row_mask:0xf bank_mask:0xf')
        self('s_nop 0')
        self(f'v_readlane_b32 s52, v{v}, 16')
        self(f'v_readlane_b32 s53, v{v}, 32')
        self(f'v_readlane_b32 s54, v{v}, 48')
        self('s_nop 1')
        self(f'v_add_f32 v{v}, s52, v{v}')
        self(f'v_add_f32 v{v}, s53, v{v}')
        self(f'v_add_f32 v{v}, s54, v{v}')
        self('s_nop 0')
        self(f'v_readlane_b32 s{sdst}, v{v}, 0')
        self('s_nop 1')

a = Asm()
import os
STAMP = os.environ.get('STAMP') == '1'
def stamp(i):
    if STAMP:
        a(f's_memtime s[{60+2*i}:{61+2*i}]')
def stamp_out(n):
    if STAMP:
        a(f"""
        s_load_dwordx2 s[4:5], s[0:1], {DBG}
        s_waitcnt lgkmcnt(0)
        s_cmp_lg_u32 s2, 5
        s_cbranch_scc1 skipst_{a.uid}
        """)
        a.srd(8, 4, 256)
        for i in range(n):
            a(f"""
            v_mov_b32 v1, s{60+2*i}
            v_mov_b32 v2, {4*i}
            buffer_store_dword v1, v2, s[8:11], 0 offen
            """)
        a.label(f'skipst_{a.uid}')
        a.uid += 1


def gen_prep():
    k = 'prep_kernel'
    a.begin(k)
    a(f'''
    s_cmp_ge_u32 s2, 1460
    s_cbranch_scc1 prep_done
    s_load_dwordx2 s[4:5], s[0:1], {A_K}
    s_load_dwordx2 s[6:7], s[0:1], {A_V}
    s_load_dwordx2 s[8:9], s[0:1], {A_SK}
    s_load_dwordx2 s[10:11], s[0:1], {B_WIN}
    s_load_dwordx2 s[12:13], s[0:1], {B_WOUT}
    s_load_dwordx2 s[14:15], s[0:1], {WS}
    v_lshrrev_b32 v1, 3, v0
    v_and_b32 v2, 7, v0
    s_waitcnt lgkmcnt(0)
    s_cmp_ge_u32 s2, 640
    s_cbranch_scc1 prep_tr
    ''')
    a(f'''
    s_mov_b32 s16, 429496730
    s_mul_hi_u32 s17, s2, s16
    s_mul_i32 s18, s17, 10
    s_sub_u32 s18, s2, s18
    s_lshl_b32 s19, s17, 5
    s_lshl_b32 s20, s18, 6
    ''')
    a.srd(24, 4, 2621440)
    a.srd(28, 6, 2621440)
    a.srd(32, 8, 5120)
    a.srd(36, 14, 640*P4, KVR)
    a(f'''
    v_add_u32 v3, s19, v1
    v_mul_u32_u24 v3, 1280, v3
    v_lshlrev_b32 v4, 4, v2
    v_add_u32 v3, v3, v4
    s_lshl_b32 s21, s20, 1
    v_add_u32 v3, s21, v3
    v_subrev_u32 v5, 1280, v3
    v_subrev_u32 v6, 2560, v3
    v_subrev_u32 v7, 3840, v3
    buffer_load_dwordx4 v[8:11], v3, s[24:27], 0 offen
    buffer_load_dwordx4 v[12:15], v5, s[24:27], 0 offen
    buffer_load_dwordx4 v[16:19], v6, s[24:27], 0 offen
    buffer_load_dwordx4 v[20:23], v7, s[24:27], 0 offen
    buffer_load_dwordx4 v[24:27], v3, s[28:31], 0 offen
    v_lshlrev_b32 v4, 6, v2
    s_lshl_b32 s21, s20, 3
    v_add_u32 v4, s21, v4
    buffer_load_dwordx4 v[28:31], v4, s[32:35], 0 offen
    buffer_load_dwordx4 v[32:35], v4, s[32:35], 0 offen offset:16
    buffer_load_dwordx4 v[36:39], v4, s[32:35], 0 offen offset:32
    buffer_load_dwordx4 v[40:43], v4, s[32:35], 0 offen offset:48
    ''')
    a('''
    v_mul_u32_u24 v44, 640, v2
    v_sub_u32 v45, 31, v1
    v_lshlrev_b32 v45, 1, v45
    v_add_u32 v44, v44, v45
    s_waitcnt vmcnt(0)
    ''')
    for e in range(8):
        w = e // 2
        def g(dst, base):
            if e % 2 == 0:
                a(f'v_lshlrev_b32 v{dst}, 16, v{base+w}')
            else:
                a(f'v_and_b32 v{dst}, 0xffff0000, v{base+w}')
        g(50, 8); g(51, 12); g(52, 16); g(53, 20); g(54, 24)
        a.unpack(55, 56, 28 + 2*e)
        a.unpack(57, 58, 29 + 2*e)
        a(f'''
        v_mul_f32 v60, v53, v58
        v_mul_f32 v61, v52, v57
        ''')
        a.rnd2(60, 61, 62)
        a(f'''
        v_add_f32 v60, v60, v61
        v_mul_f32 v61, v51, v56
        ''')
        a.rnd2(60, 61, 62)
        a(f'''
        v_add_f32 v60, v60, v61
        v_mul_f32 v61, v50, v55
        ''')
        a.rnd2(60, 61, 62)
        a(f'''
        v_add_f32 v60, v60, v61
        v_cvt_pk_bf16_f32 v62, v60, v60
        v_lshlrev_b32 v60, 16, v62
        v_mul_f32 v60, v60, v54
        v_cvt_pk_bf16_f32 v62, v60, v60
        ds_write_b16 v44, v62 offset:{80*e}
        ''')
    a(f'''
    s_waitcnt lgkmcnt(0)
    s_barrier
    v_lshrrev_b32 v45, 2, v0
    v_and_b32 v46, 3, v0
    v_mul_u32_u24 v47, 80, v45
    v_lshlrev_b32 v48, 4, v46
    v_add_u32 v47, v47, v48
    ds_read_b128 v[8:11], v47
    v_add_u32 v45, s20, v45
    v_mul_u32_u24 v45, {P4}, v45
    s_sub_u32 s21, 2016, s19
    s_lshl_b32 s21, s21, 1
    v_add_u32 v45, s21, v45
    v_add_u32 v45, v45, v48
    s_waitcnt lgkmcnt(0)
    buffer_store_dwordx4 v[8:11], v45, s[36:39], 0 offen
    s_branch prep_done
    ''')
    a.label('prep_tr')
    a('''
    s_sub_u32 s16, s2, 640
    s_cmp_ge_u32 s16, 540
    s_cbranch_scc1 prep_tr2
    ''')
    a(f'''
    s_mov_b32 s17, 159072863
    s_mul_hi_u32 s18, s16, s17
    s_mul_i32 s19, s18, 27
    s_sub_u32 s19, s16, s19
    s_mov_b32 s20, 640
    s_mov_b32 s21, 1728
    ''')
    a.srd(24, 10, 2211840)
    a.srd(28, 14, 2211840, WINT)
    a('s_branch prep_tr3')
    a.label('prep_tr2')
    a(f'''
    s_sub_u32 s16, s16, 540
    s_mov_b32 s17, 429496730
    s_mul_hi_u32 s18, s16, s17
    s_mul_i32 s19, s18, 10
    s_sub_u32 s19, s16, s19
    s_mov_b32 s20, 896
    s_mov_b32 s21, 640
    ''')
    a.srd(24, 12, 1105920)
    a.srd(28, 14, 1146880, WOUTT)
    a.label('prep_tr3')
    a('''
    s_lshl_b32 s22, s18, 5
    s_lshl_b32 s23, s19, 6
    v_add_u32 v3, s22, v1
    v_mul_lo_u32 v3, v3, s21
    v_lshlrev_b32 v4, 3, v2
    v_add_u32 v3, v3, v4
    v_add_u32 v3, s23, v3
    v_lshlrev_b32 v3, 1, v3
    buffer_load_dwordx4 v[8:11], v3, s[24:27], 0 offen
    v_mul_u32_u24 v44, 640, v2
    v_lshlrev_b32 v45, 1, v1
    v_add_u32 v44, v44, v45
    s_waitcnt vmcnt(0)
    ''')
    for e in range(8):
        if e % 2 == 0:
            a(f'ds_write_b16 v44, v{8+e//2} offset:{80*e}')
        else:
            a(f'ds_write_b16_d16_hi v44, v{8+e//2} offset:{80*e}')
    a('''
    s_waitcnt lgkmcnt(0)
    s_barrier
    v_lshrrev_b32 v45, 2, v0
    v_and_b32 v46, 3, v0
    v_mul_u32_u24 v47, 80, v45
    v_lshlrev_b32 v48, 4, v46
    v_add_u32 v47, v47, v48
    ds_read_b128 v[8:11], v47
    v_add_u32 v45, s23, v45
    v_mul_lo_u32 v45, v45, s20
    v_add_u32 v45, s22, v45
    v_lshlrev_b32 v45, 1, v45
    v_add_u32 v45, v45, v48
    s_waitcnt lgkmcnt(0)
    buffer_store_dwordx4 v[8:11], v45, s[28:31], 0 offen
    ''')
    a.label('prep_done')
    a('s_endpgm')
    a.kernels.append((k, 64, 48, 64))

HP = 4384
NHC = 4
KV0 = NHC * HP
KVSZ = 9216 + 64
KV1 = KV0 + KVSZ
CONV_LDS = max(KV1 + KVSZ, 4*64*144)
def gen_conv():
    k = 'conv_kernel'
    a.begin(k)
    a(f"""
    s_cmp_ge_u32 s2, 640
    s_cbranch_scc1 conv_done
    """)
    stamp(0)
    a(f"""
    s_load_dwordx2 s[4:5], s[0:1], {A_SSMK}
    s_load_dwordx2 s[6:7], s[0:1], {A_D}
    s_load_dwordx2 s[14:15], s[0:1], {WS}
    s_lshl_b32 s16, s2, 12
    v_lshrrev_b32 v1, 6, v0
    s_nop 0
    v_readfirstlane_b32 s22, v1
    s_waitcnt lgkmcnt(0)
    s_add_u32 s4, s4, s16
    s_addc_u32 s5, s5, 0
    s_mul_i32 s16, s2, {P4}
    s_add_u32 s8, s14, s16
    s_addc_u32 s9, s15, 0
    """)
    a.srd(24, 4, 4096)
    a.srd(28, 8, 4096, KVR)
    a.srd(32, 14, 2621440, YYT)
    a.srd(36, 6, 1280)
    a(f"""
    v_lshlrev_b32 v3, 4, v0
    v_subrev_u32 v4, 128, v3
    v_subrev_u32 v5, 112, v3
    buffer_load_dwordx4 v[8:11], v4, s[24:27], 0 offen
    buffer_load_dwordx4 v[12:15], v5, s[24:27], 0 offen
    v_add_u32 v6, 4096, v3
    v_subrev_u32 v4, 128, v6
    v_subrev_u32 v5, 112, v6
    buffer_load_dwordx4 v[16:19], v4, s[24:27], 0 offen
    buffer_load_dwordx4 v[20:23], v5, s[24:27], 0 offen
    v_subrev_u32 v4, 16, v3
    buffer_load_dwordx4 v[24:27], v4, s[28:31], 0 offen
    buffer_load_dwordx4 v[28:31], v3, s[28:31], 0 offen
    s_lshl_b32 s17, s2, 1
    v_mov_b32 v4, s17
    buffer_load_ushort v39, v4, s[36:39], 0 offen
    v_lshrrev_b32 v5, 3, v0
    v_lshlrev_b32 v5, 4, v5
    v_add_u32 v7, v3, v5
    v_mov_b32 v32, 0
    v_mov_b32 v33, 0
    v_mov_b32 v34, 0
    v_mov_b32 v35, 0
    ds_write_b128 v7, v[32:35] offset:{KV0+4608}
    v_cmp_ne_u32 vcc, 0, v0
    s_and_saveexec_b64 s[40:41], vcc
    ds_write_b128 v7, v[32:35] offset:{KV1+4608}
    s_mov_b64 exec, s[40:41]
    s_waitcnt vmcnt(5)
    """)
    def hcopies(base, addr):
        for ci, c in enumerate((1, 3, 5, 7)):
            j = (c - 1)//2
            o = 40 + 4*(ci & 1)
            for i in range(4):
                a(f'v_alignbit_b32 v{o+i}, v{base+j+i+1}, v{base+j+i}, 16')
            a(f'ds_write_b128 v{addr}, v[{o}:{o+3}] offset:{ci*HP}')
    hcopies(8, 3)
    a("""
    s_waitcnt vmcnt(3)
    v_cmp_gt_u32 vcc, 16, v0
    s_and_saveexec_b64 s[40:41], vcc
    """)
    hcopies(16, 6)
    a('s_mov_b64 exec, s[40:41]')
    a(f"""
    s_waitcnt vmcnt(0)
    ds_write_b128 v7, v[28:31] offset:{KV0}
    v_alignbit_b32 v40, v28, v27, 16
    v_alignbit_b32 v41, v29, v28, 16
    v_alignbit_b32 v42, v30, v29, 16
    v_alignbit_b32 v43, v31, v30, 16
    ds_write_b128 v7, v[40:43] offset:{KV1}
    v_lshrrev_b32 v44, 16, v31
    v_mov_b32 v45, 0
    v_mov_b32 v46, 0
    v_mov_b32 v47, 0
    v_cmp_eq_u32 vcc, 255, v0
    s_and_saveexec_b64 s[40:41], vcc
    v_mov_b32 v5, {KV1+4608}
    ds_write_b128 v5, v[44:47]
    s_mov_b64 exec, s[40:41]
    v_lshlrev_b32 v39, 16, v39
    """)
    a(f"""
    v_and_b32 v2, 63, v0
    v_and_b32 v3, 31, v2
    v_lshrrev_b32 v4, 5, v2
    s_mul_i32 s42, s22, 24
    s_cmp_eq_u32 s22, 3
    s_cselect_b32 s42, 76, s42
    s_lshl_b32 s43, s42, 5
    v_lshlrev_b32 v5, 1, v3
    v_add_u32 v5, 1, v5
    v_and_b32 v6, 7, v5
    v_lshrrev_b32 v6, 1, v6
    v_mul_u32_u24 v6, {HP}, v6
    v_and_b32 v5, 0x78, v5
    v_lshl_add_u32 v5, v4, 3, v5
    v_lshl_add_u32 v36, v5, 1, v6
    v_add_u32 v36, s43, v36
    """)
    a(f"""
    v_and_b32 v5, 15, v2
    v_bfe_u32 v6, v2, 4, 1
    v_mul_u32_u24 v6, {KVSZ}, v6
    v_mul_u32_u24 v5, 144, v5
    v_sub_u32 v5, {KV0 + 1984*2 + 31*16}, v5
    v_add_u32 v5, v5, v6
    v_lshl_add_u32 v5, v4, 4, v5
    s_lshr_b32 s44, s42, 2
    s_lshl_b32 s44, s44, 4
    s_add_u32 s44, s44, s43
    v_add_u32 v37, s44, v5
    v_subrev_u32 v38, {16*144}, v37
    """)
    for i in range(32):
        a(f'v_mov_b32 v{64+i}, 0')
    stamp(1)
    a("""
    s_waitcnt lgkmcnt(0)
    s_barrier
    """)
    stamp(2)
    a("""
    s_mov_b32 s45, 6
    s_cmp_eq_u32 s22, 2
    s_cselect_b32 s45, 5, s45
    s_cmp_eq_u32 s22, 3
    s_cselect_b32 s45, 0, s45
    s_mov_b32 s46, 0
    s_cmp_eq_u32 s22, 2
    s_cselect_b32 s46, 2, s46
    s_cmp_eq_u32 s22, 3
    s_cselect_b32 s46, 14, s46
    s_cmp_eq_u32 s45, 0
    s_cbranch_scc1 conv_lb
    """)
    a.label('conv_la')
    for st in range(4):
        b = 40 + 12*(st & 1)
        a(f"""
        ds_read_b128 v[{b}:{b+3}], v36 offset:{32*st}
        ds_read_b128 v[{b+4}:{b+7}], v37 offset:{32*st}
        ds_read_b128 v[{b+8}:{b+11}], v38 offset:{32*st}
        """)
        if st > 0:
            pb = 40 + 12*((st-1) & 1)
            a(f"""
            s_waitcnt lgkmcnt(3)
            v_mfma_f32_32x32x16_bf16 v[64:79], v[{pb}:{pb+3}], v[{pb+4}:{pb+7}], v[64:79]
            v_mfma_f32_32x32x16_bf16 v[80:95], v[{pb}:{pb+3}], v[{pb+8}:{pb+11}], v[80:95]
            """)
    a(f"""
    v_add_u32 v36, 128, v36
    v_add_u32 v37, 144, v37
    v_add_u32 v38, 144, v38
    s_waitcnt lgkmcnt(0)
    v_mfma_f32_32x32x16_bf16 v[64:79], v[52:55], v[56:59], v[64:79]
    v_mfma_f32_32x32x16_bf16 v[80:95], v[52:55], v[60:63], v[80:95]
    s_sub_u32 s45, s45, 1
    s_cmp_lg_u32 s45, 0
    s_cbranch_scc1 conv_la
    """)
    a.label('conv_lb')
    a("""
    s_cmp_eq_u32 s46, 0
    s_cbranch_scc1 conv_le
    """)
    a.label('conv_lb2')
    LB = (8, 16, 24, 40)
    for st in range(4):
        b = LB[st]
        a(f"""
        ds_read_b128 v[{b}:{b+3}], v36 offset:{32*st}
        ds_read_b128 v[{b+4}:{b+7}], v38 offset:{32*st}
        """)
    a("""
    v_add_u32 v36, 128, v36
    v_add_u32 v38, 144, v38
    """)
    for st in range(4):
        b = LB[st]
        a(f"""
        s_waitcnt lgkmcnt({6-2*st})
        v_mfma_f32_32x32x16_bf16 v[80:95], v[{b}:{b+3}], v[{b+4}:{b+7}], v[80:95]
        """)
    a("""
    s_sub_u32 s46, s46, 1
    s_cmp_lg_u32 s46, 0
    s_cbranch_scc1 conv_lb2
    """)
    a.label('conv_le')
    stamp(3)
    a(f"""
    v_sub_u32 v6, 255, v0
    v_lshrrev_b32 v7, 3, v6
    v_add_u32 v6, v6, v7
    v_lshlrev_b32 v6, 4, v6
    ds_read_b128 v[8:11], v6 offset:{KV0}
    s_waitcnt lgkmcnt(0)
    s_barrier
    s_nop 7
    s_mul_i32 s43, s22, 9216
    v_mul_u32_u24 v5, 144, v3
    v_lshl_add_u32 v5, v4, 4, v5
    v_add_u32 v5, s43, v5
    """)
    for T in range(2):
        for q in range(4):
            r = 64 + 16*T + 4*q
            a(f'ds_write_b128 v5, v[{r}:{r+3}] offset:{T*32*144 + q*32}')
    a(f"""
    v_lshrrev_b32 v5, 3, v0
    v_and_b32 v6, 15, v5
    v_lshrrev_b32 v7, 4, v5
    v_lshl_add_u32 v6, v7, 5, v6
    v_mul_u32_u24 v6, 144, v6
    v_and_b32 v7, 7, v0
    v_lshl_add_u32 v5, v7, 4, v6
    s_waitcnt lgkmcnt(0)
    s_barrier
    """)
    for w in range(4):
        for r in range(2):
            a(f'ds_read_b128 v[{40+8*w+4*r}:{43+8*w+4*r}], v5 offset:{w*9216 + r*16*144}')
    a('s_waitcnt lgkmcnt(0)')
    for r in range(2):
        for i in range(0, 4, 2):
            x = 40 + 4*r + i
            a(f"""
            v_pk_add_f32 v[{x}:{x+1}], v[{x}:{x+1}], v[{x+8}:{x+9}]
            v_pk_add_f32 v[{x+16}:{x+17}], v[{x+16}:{x+17}], v[{x+24}:{x+25}]
            v_pk_add_f32 v[{x}:{x+1}], v[{x}:{x+1}], v[{x+16}:{x+17}]
            """)
    for i in range(4):
        b0, b1 = 40 + i, 44 + i
        e = 2*i
        a.rnd2(b0, b1, 12)
        p0, p1 = 7 - e, 7 - (e+1)
        a(f"""
        v_and_b32 v13, 0xffff0000, v{8 + p0//2}
        v_lshlrev_b32 v14, 16, v{8 + p1//2}
        v_mul_f32 v13, v13, v39
        v_mul_f32 v14, v14, v39
        """)
        a.rnd2(13, 14, 12)
        a(f"""
        v_add_f32 v13, v13, v{b0}
        v_add_f32 v14, v14, v{b1}
        v_cvt_pk_bf16_f32 v{16+i}, v13, v14
        """)
    a("""
    v_mul_u32_u24 v3, 10240, v0
    s_lshl_b32 s16, s2, 4
    v_add_u32 v3, s16, v3
    buffer_store_dwordx4 v[16:19], v3, s[32:35], 0 offen
    """)
    if STAMP:
        a('s_waitcnt vmcnt(0)')
    stamp(4)
    stamp_out(5)
    a.label('conv_done')
    a('s_endpgm')
    a.kernels.append((k, 96, 80, 96))

def ln_pk(X, npair, n_elems, Q, T, mask_last=False):
    a(f'v_pk_add_f32 v[{T}:{T+1}], v[{X}:{X+1}], v[{X+2}:{X+3}]')
    for i in range(2, npair):
        a(f'v_pk_add_f32 v[{T}:{T+1}], v[{T}:{T+1}], v[{X+2*i}:{X+2*i+1}]')
    a(f'v_add_f32 v{T}, v{T}, v{T+1}')
    a.wave_sum(T, T+1, 50)
    a(f"""
    v_mov_b32 v{T}, {1.0/n_elems!r}
    v_mul_f32 v{T+2}, s50, v{T}
    v_mul_f32 v{T+3}, s50, v{T}
    v_mov_b32 v{T+4}, 0
    v_mov_b32 v{T+5}, 0
    """)
    for i in range(npair):
        a(f'v_pk_add_f32 v[{T}:{T+1}], v[{X+2*i}:{X+2*i+1}], v[{T+2}:{T+3}] neg_lo:[0,1] neg_hi:[0,1]')
        if mask_last and i == npair-1:
            a(f"""
            v_cndmask_b32 v{T}, 0, v{T}, s[58:59]
            v_cndmask_b32 v{T+1}, 0, v{T+1}, s[58:59]
            """)
        a(f'v_pk_fma_f32 v[{T+4}:{T+5}], v[{T}:{T+1}], v[{T}:{T+1}], v[{T+4}:{T+5}]')
    a(f'v_add_f32 v{T}, v{T+4}, v{T+5}')
    a.wave_sum(T, T+1, 51)
    a(f"""
    v_mov_b32 v{T}, {1.0/n_elems!r}
    v_mul_f32 v{T+4}, s51, v{T}
    """)
    a.rnd2(T+2, T+4, T)
    a(f"""
    v_mov_b32 v{T+3}, v{T+2}
    v_add_f32 v{T+4}, 0x3727c5ac, v{T+4}
    v_cvt_pk_bf16_f32 v{T}, v{T+4}, v{T+4}
    v_lshlrev_b32 v{T+4}, 16, v{T}
    v_sqrt_f32 v{T+4}, v{T+4}
    s_nop 0
    v_cvt_pk_bf16_f32 v{T}, v{T+4}, v{T+4}
    v_lshlrev_b32 v{T+4}, 16, v{T}
    v_rcp_f32 v{T+6}, v{T+4}
    s_nop 0
    v_fma_f32 v{T}, -v{T+4}, v{T+6}, 2.0
    v_mul_f32 v{T+6}, v{T+6}, v{T}
    v_mov_b32 v{T+7}, v{T+6}
    """)
    for i in range(npair):
        q = Q + 2*i
        a(f'v_pk_add_f32 v[{q}:{q+1}], v[{X+2*i}:{X+2*i+1}], v[{T+2}:{T+3}] neg_lo:[0,1] neg_hi:[0,1]')
        a.rnd2(q, q+1, T)
        a(f'v_pk_mul_f32 v[{q}:{q+1}], v[{q}:{q+1}], v[{T+6}:{T+7}]')

def gen_row(k, xin_arg, xin_off, xout_off):
    a.begin(k)
    done = k + '_done'
    a(f"""
    s_cmp_ge_u32 s2, 256
    s_cbranch_scc1 {done}
    s_load_dwordx2 s[4:5], s[0:1], {xin_arg}
    s_load_dwordx2 s[14:15], s[0:1], {WS}
    v_lshrrev_b32 v1, 6, v0
    v_and_b32 v2, 63, v0
    s_lshl_b32 s17, s2, 3
    v_add_u32 v3, s17, v1
    v_mul_u32_u24 v3, 1280, v3
    v_lshl_add_u32 v3, v2, 2, v3
    s_waitcnt lgkmcnt(0)
    """)
    a.srd(24, 4, 2621440, xin_off)
    a.srd(28, 14, 2621440, YYT)
    a.srd(32, 14, 2621440, xout_off)
    a.srd(36, 14, 2621440, HH)
    for j in range(5):
        a(f'buffer_load_dword v{8+j}, v3, s[24:27], 0 offen offset:{256*j}')
    a("""
    s_mul_i32 s16, s2, 10240
    v_lshlrev_b32 v6, 4, v0
    v_add_u32 v4, s16, v6
    v_cmp_gt_u32 vcc, 128, v0
    v_add_u32 v5, 8192, v4
    s_nop 0
    v_cndmask_b32 v5, -1, v5, vcc
    buffer_load_dwordx4 v[16:19], v4, s[28:31], 0 offen
    buffer_load_dwordx4 v[20:23], v5, s[28:31], 0 offen
    s_waitcnt vmcnt(0)
    ds_write_b128 v6, v[16:19]
    ds_write_b128 v6, v[20:23] offset:8192
    v_lshlrev_b32 v4, 5, v2
    v_lshl_add_u32 v4, v1, 1, v4
    """)
    for j in range(5):
        a.unpack(16+2*j, 17+2*j, 8+j)
    a("""
    s_waitcnt lgkmcnt(0)
    s_barrier
    """)
    for j in range(5):
        a(f'ds_read_u16 v{40+2*j}, v4 offset:{2048*j}')
        a(f'ds_read_u16 v{41+2*j}, v4 offset:{2048*j + 16}')
    ln_pk(16, 5, 640, 28, 52)
    a('s_waitcnt lgkmcnt(0)')
    for j in range(10):
        a(f'v_lshlrev_b32 v{40+j}, 16, v{40+j}')
    for i in range(5):
        q, x, y = 28+2*i, 16+2*i, 40+2*i
        a.rnd2(q, q+1, 56)
        a(f'v_pk_mul_f32 v[{q}:{q+1}], v[{q}:{q+1}], v[{y}:{y+1}]')
        a.rnd2(q, q+1, 56)
        a(f'v_pk_add_f32 v[{x}:{x+1}], v[{x}:{x+1}], v[{q}:{q+1}]')
        a.rnd2(x, x+1, 8+i)
        a(f'buffer_store_dword v{8+i}, v3, s[32:35], 0 offen offset:{256*i}')
    ln_pk(16, 5, 640, 28, 52)
    for i in range(5):
        a(f'v_cvt_pk_bf16_f32 v{40+i}, v{28+2*i}, v{29+2*i}')
        a(f'buffer_store_dword v{40+i}, v3, s[36:39], 0 offen offset:{256*i}')
    a.label(done)
    a('s_endpgm')
    a.kernels.append((k, 64, 64, 64))

def gen_lnz():
    k = 'lnz_kernel'
    a.begin(k)
    a(f"""
    s_cmp_ge_u32 s2, 256
    s_cbranch_scc1 lnz_done
    s_load_dwordx2 s[14:15], s[0:1], {WS}
    v_lshrrev_b32 v1, 6, v0
    v_and_b32 v2, 63, v0
    s_lshl_b32 s17, s2, 3
    v_add_u32 v3, s17, v1
    v_mul_u32_u24 v3, 3456, v3
    v_lshl_add_u32 v3, v2, 2, v3
    v_cmp_gt_u32 s[58:59], 48, v2
    v_add_u32 v4, {1728 + 256*6}, v3
    s_nop 0
    v_cndmask_b32 v4, -1, v4, s[58:59]
    s_waitcnt lgkmcnt(0)
    """)
    a.srd(24, 14, 7077888, ZZ)
    a.srd(28, 14, 256*14336, Z2T)
    for j in range(6):
        a(f'buffer_load_dword v{8+j}, v3, s[24:27], 0 offen offset:{1728 + 256*j}')
    a("""
    buffer_load_dword v14, v4, s[24:27], 0 offen
    v_lshlrev_b32 v4, 5, v2
    v_lshl_add_u32 v4, v1, 1, v4
    s_waitcnt vmcnt(0)
    """)
    for j in range(7):
        a.unpack(16+2*j, 17+2*j, 8+j)
    ln_pk(16, 7, 864, 32, 52, mask_last=True)
    for j in range(7):
        a(f'v_cvt_pk_bf16_f32 v{8+j}, v{32+2*j}, v{33+2*j}')
        if j == 6:
            a('v_cndmask_b32 v14, 0, v14, s[58:59]')
        a(f"""
        ds_write_b16 v4, v{8+j} offset:{2048*j}
        ds_write_b16_d16_hi v4, v{8+j} offset:{2048*j + 16}
        """)
    a("""
    s_waitcnt lgkmcnt(0)
    s_barrier
    v_lshlrev_b32 v4, 4, v0
    ds_read_b128 v[8:11], v4
    ds_read_b128 v[12:15], v4 offset:8192
    s_mul_i32 s16, s2, 14336
    v_add_u32 v3, s16, v4
    v_cmp_gt_u32 vcc, 384, v0
    v_add_u32 v5, 8192, v3
    s_nop 0
    v_cndmask_b32 v5, -1, v5, vcc
    s_waitcnt lgkmcnt(0)
    buffer_store_dwordx4 v[8:11], v3, s[28:31], 0 offen
    buffer_store_dwordx4 v[12:15], v5, s[28:31], 0 offen
    """)
    a.label('lnz_done')
    a('s_endpgm')
    a.kernels.append((k, 64, 64, 64))

def gen_gemm(k, WM, WN, BK, K, M, N, A_src, B_src, epi, D=4, GM=2, GN=4, blk=0):
    ldb = 16 if blk else K*2
    BM, BN = GM*WM, GN*WN
    NT = 64*GM*GN
    TM, TN = WM//32, WN//32
    nmt, nnt = M//BM, -(-N//BN)
    rowb = 128
    nsteps = K//BK
    Abytes, Bbytes = BM*rowb, BN*rowb
    stage = Abytes + Bbytes
    PB = NT*16
    nla, nlb = Abytes//PB, Bbytes//PB
    nl = nla + nlb
    RPL = NT//8
    done = k + '_done'
    a.begin(k)
    a(f"""
    s_cmp_ge_u32 s2, {nmt*nnt}
    s_cbranch_scc1 {done}
    """)
    stamp(0)
    a(f"""
    s_load_dwordx2 s[4:5], s[0:1], {A_src[0]}
    s_load_dwordx2 s[6:7], s[0:1], {B_src[0]}
    s_load_dwordx2 s[14:15], s[0:1], {WS}
    s_load_dwordx2 s[10:11], s[0:1], {B_BSP}
    s_load_dwordx2 s[12:13], s[0:1], {OUT}
    s_and_b32 s16, s2, {nmt-1}
    s_lshr_b32 s17, s2, {nmt.bit_length()-1}
    s_mul_i32 s18, s16, {BM}
    s_mul_i32 s19, s17, {BN}
    v_lshrrev_b32 v1, 6, v0
    v_lshlrev_b32 v1, 10, v1
    s_nop 0
    v_readfirstlane_b32 s22, v1
    s_waitcnt lgkmcnt(0)
    """)
    a.srd(24, 4, M*K*2, A_src[1])
    a.srd(28, 6, (K//8)*blk*16 if blk else N*ldb, B_src[1])
    a(f"""
    v_lshrrev_b32 v1, 3, v0
    v_and_b32 v2, 7, v0
    v_lshrrev_b32 v3, 1, v1
    v_and_b32 v3, 7, v3
    v_xor_b32 v2, v2, v3
    v_lshlrev_b32 v2, 4, v2
    v_add_u32 v3, s18, v1
    v_mul_u32_u24 v3, {K*2}, v3
    v_add_u32 v4, v3, v2
    v_add_u32 v3, s19, v1
    v_mul_u32_u24 v3, {ldb}, v3
    v_mul_u32_u24 v9, {blk if blk else 1}, v2
    v_add_u32 v8, v3, v9
    """)
    if blk:
        assert nlb == 1 and BN == 64 and TN == 1
        a(f"""
        v_lshrrev_b32 v3, 6, v0
        v_mul_u32_u24 v3, {blk}, v3
        v_and_b32 v9, 63, v0
        v_add3_u32 v3, v3, v9, s19
        v_lshlrev_b32 v8, 4, v3
        """)
    for i in range(1, nla):
        a(f'v_add_u32 v{4+i}, {RPL*i*K*2}, v4')
    for i in range(1, nlb):
        a(f'v_add_u32 v{8+i}, {RPL*i*ldb}, v8')
    a(f"""
    v_lshrrev_b32 v1, 6, v0
    v_and_b32 v2, 63, v0
    v_and_b32 v3, 31, v2
    v_lshrrev_b32 v20, 5, v2
    v_and_b32 v21, {GM-1}, v1
    v_lshrrev_b32 v22, {GM.bit_length()-1}, v1
    """)
    nkk = 4
    AB, AR = 12, 24
    for (isB, wsel, W, R) in ((0, 21, WM, AB), (1, 22, WN, AB+4)):
        a(f"""
        v_mul_u32_u24 v23, {W}, v{wsel}
        v_add_u32 v23, v23, v3
        v_lshrrev_b32 v{R}, 1, v23
        v_and_b32 v{R}, 7, v{R}
        v_xor_b32 v{R}, v{R}, v20
        v_mul_u32_u24 v23, {rowb}, v23
        """)
        if isB:
            a(f'v_add_u32 v23, {Abytes}, v23')
        for kk in range(3, -1, -1):
            a(f"""
            v_xor_b32 v{R+kk}, {2*kk}, v{R}
            v_lshl_add_u32 v{R+kk}, v{R+kk}, 4, v23
            """)
        if isB and blk:
            a(f"""
            v_mul_u32_u24 v23, {W}, v{wsel}
            v_add_u32 v23, v23, v3
            v_lshl_add_u32 v23, v20, 6, v23
            v_lshlrev_b32 v23, 4, v23
            """)
            for kk in range(4):
                a(f'v_add_u32 v{R+kk}, {Abytes + 2*kk*64*16}, v23')
    FA = 32
    FB = FA + 4*TM*2
    ACC = 64
    nacc = TM*TN*16
    EPR = ACC + nacc
    global G_EPR, G_BM, G_BN
    G_EPR = EPR
    global G_NT
    G_BM, G_BN = BM, BN
    G_NT = NT
    assert FB + 4*TN*2 <= ACC
    for i in range(nacc):
        a(f'v_mov_b32 v{ACC+i}, 0')
    a(f"""
    v_mul_u32_u24 v23, {WM}, v21
    v_add_u32 v23, v23, v3
    v_add_u32 v{EPR}, s18, v23
    v_mul_u32_u24 v23, {WN}, v22
    v_lshlrev_b32 v{EPR+1}, 2, v20
    v_add_u32 v23, v23, v{EPR+1}
    v_add_u32 v{EPR+1}, s19, v23
    """)
    epi(TM, TN, ACC, True)
    def gload():
        for i in range(nl):
            a(f's_add_u32 m0, s55, {i*PB}')
            a('s_nop 0')
            if i < nla:
                a(f'buffer_load_dwordx4 v{4+i}, s[24:27], s20 offen lds')
            else:
                a(f'buffer_load_dwordx4 v{8+i-nla}, s[28:31], s21 offen lds')
        a(f"""
        s_add_u32 s20, s20, {rowb}
        s_add_u32 s21, s21, {8*blk*16 if blk else rowb}
        s_add_u32 s55, s55, {stage}
        s_cmp_lt_u32 s55, {D*stage}
        s_cselect_b32 s55, s55, s22
        """)
    lp, lm, lw, lnl = [a.newlabel(x) for x in ('gp', 'gm', 'gw', 'gn')]
    a(f"""
    s_mov_b32 s20, 0
    s_mov_b32 s21, 0
    s_mov_b32 s55, s22
    s_mov_b32 s48, 0
    s_mov_b32 s49, 0
    """)
    stamp(1)
    a.label(lp)
    gload()
    a(f"""
    s_add_u32 s48, s48, 1
    s_cmp_lt_u32 s48, {D-1}
    s_cbranch_scc1 {lp}
    s_mov_b32 s48, 0
    """)
    stamp(2)
    a.label(lm)
    a(f"""
    s_cmp_lt_u32 s48, {nsteps-(D-2)}
    s_cbranch_scc1 {lw}
    s_waitcnt vmcnt(0)
    """)
    a.label(lw)
    a(f"""
    s_waitcnt vmcnt({nl*(D-2)})
    s_barrier
    """)
    for i in range(8):
        a(f'v_add_u32 v{AR+i}, s49, v{AB+i}')
    def rd(kk, s):
        for i in range(TM):
            f = FA + 4*(s*TM + i)
            a(f'ds_read_b128 v[{f}:{f+3}], v{AR+kk} offset:{i*32*rowb}')
        for i in range(TN):
            f = FB + 4*(s*TN + i)
            a(f'ds_read_b128 v[{f}:{f+3}], v{AR+4+kk} offset:{i*32*rowb}')
    rd(0, 0)
    a(f"""
    s_cmp_lt_u32 s48, {nsteps-(D-1)}
    s_cbranch_scc0 {lnl}
    """)
    lend = a.newlabel('gx')
    for withload in (True, False):
        if not withload:
            a.label(lnl)
        nm = 0
        li = 0
        tot = nkk*TM*TN
        for kk in range(nkk):
            s_ = kk & 1
            if kk + 1 < nkk:
                rd(kk+1, s_ ^ 1)
                a(f's_waitcnt lgkmcnt({TM+TN})')
            else:
                a('s_waitcnt lgkmcnt(0)')
            for i in range(TM):
                for j in range(TN):
                    fa = FA + 4*(s_*TM + i)
                    fb = FB + 4*(s_*TN + j)
                    c = ACC + 16*(i*TN + j)
                    a(f'v_mfma_f32_32x32x16_bf16 v[{c}:{c+15}], v[{fb}:{fb+3}], v[{fa}:{fa+3}], v[{c}:{c+15}]')
                    nm += 1
                    if withload:
                        while li < nl and li * tot < nm * nl:
                            a(f's_add_u32 m0, s55, {li*PB}')
                            a('s_nop 0')
                            if li < nla:
                                a(f'buffer_load_dwordx4 v{4+li}, s[24:27], s20 offen lds')
                            else:
                                a(f'buffer_load_dwordx4 v{8+li-nla}, s[28:31], s21 offen lds')
                            li += 1
        if withload:
            a(f"""
            s_add_u32 s20, s20, {rowb}
            s_add_u32 s21, s21, {8*blk*16 if blk else rowb}
            s_add_u32 s55, s55, {stage}
            s_cmp_lt_u32 s55, {D*stage}
            s_cselect_b32 s55, s55, s22
            s_branch {lend}
            """)
    a.label(lend)
    a(f"""
    s_add_u32 s49, s49, {stage}
    s_cmp_lt_u32 s49, {D*stage}
    s_cselect_b32 s49, s49, 0
    s_add_u32 s48, s48, 1
    s_cmp_lt_u32 s48, {nsteps}
    s_cbranch_scc1 {lm}
    s_nop 7
    s_nop 7
    """)
    stamp(3)
    a('s_barrier')
    le = a.newlabel('ge')
    lg = TN.bit_length() - 1
    epi(TM, TN, ACC, 'setup')
    a('s_mov_b32 s48, 0')
    a.label(le)
    a(f"""
    s_lshl_b32 s56, s48, 2
    s_lshr_b32 s49, s48, {2+lg}
    s_lshl_b32 s49, s49, 5
    s_lshr_b32 s55, s48, 2
    s_and_b32 s55, s55, {TN-1}
    s_lshl_b32 s55, s55, 5
    s_and_b32 s20, s48, 3
    s_lshl_b32 s20, s20, 3
    s_add_u32 s55, s55, s20
    s_set_gpr_idx_on s56, gpr_idx(SRC0)
    v_mov_b32 v40, v{ACC}
    v_mov_b32 v41, v{ACC+1}
    v_mov_b32 v42, v{ACC+2}
    v_mov_b32 v43, v{ACC+3}
    s_set_gpr_idx_off
    v_add_u32 v4, s49, v{EPR}
    v_add_u32 v5, s55, v{EPR+1}
    """)
    epi(TM, TN, ACC, 'body')
    a(f"""
    s_add_u32 s48, s48, 1
    s_cmp_lt_u32 s48, {nacc//4}
    s_cbranch_scc1 {le}
    s_waitcnt lgkmcnt(0)
    s_barrier
    """)
    epi(TM, TN, ACC, 'out')
    a('s_waitcnt vmcnt(0)')
    stamp(4)
    stamp_out(5)
    a.label(done)
    a('s_endpgm')
    lds = D*stage
    a.kernels.append((k, EPR + 4 + 24, 80, EPR + 4 + 24))
    return nmt*nnt, lds, NT

def gelu_regs(x, t0, t1):
    a(f'''
    v_mul_f32 v{t0}, v{x}, v{x}
    v_mul_f32 v{t0}, v{t0}, v{x}
    v_fma_f32 v{t0}, v{t0}, s46, v{x}
    v_mul_f32 v{t0}, s47, v{t0}
    v_exp_f32 v{t0}, v{t0}
    s_nop 0
    v_add_f32 v{t0}, 1.0, v{t0}
    v_rcp_f32 v{t0}, v{t0}
    s_nop 0
    v_fma_f32 v{t0}, v{t0}, -2.0, 2.0
    v_mul_f32 v{t1}, 0.5, v{x}
    v_mul_f32 v{x}, v{t1}, v{t0}
    ''')

def tile_addr():
    pitch = G_BN*2 + 16
    a(f"""
    v_subrev_u32 v6, s18, v4
    v_mul_u32_u24 v6, {pitch}, v6
    v_subrev_u32 v7, s19, v5
    v_lshl_add_u32 v7, v7, 1, v6
    """)

def out_chunks(t=4):
    cpr = G_BN // 8
    n = G_BM*G_BN*2//16//G_NT
    pitch = G_BN*2 + 16
    sh = cpr.bit_length()-1
    for i in range(n):
        a(f"""
        v_add_u32 v{t+2}, {G_NT*i}, v0
        v_lshrrev_b32 v{t}, {sh}, v{t+2}
        v_and_b32 v{t+1}, {cpr-1}, v{t+2}
        v_lshlrev_b32 v{t+1}, 3, v{t+1}
        v_mul_u32_u24 v{t+3}, {pitch}, v{t}
        v_lshl_add_u32 v{t+3}, v{t+1}, 1, v{t+3}
        v_add_u32 v{t}, s18, v{t}
        v_add_u32 v{t+1}, s19, v{t+1}
        """)
        yield i

def epi_gemm1(TM, TN, ACC, pre):
    if pre is True:
        return
    if pre == 'setup':
        a.srd(32, 14, 7077888, ZZ)
        a("""
        v_mov_b32 v48, 0x3dd2d3e8
        v_mov_b32 v49, 0x3dd2d3e8
        v_mov_b32 v50, 0x40135761
        v_mov_b32 v51, 0x40135761
        v_mov_b32 v52, 1.0
        v_mov_b32 v53, 1.0
        """)
        return
    if pre == 'out':
        for i in out_chunks():
            r = 32 + 4*(i % 8)
            a(f"""
            ds_read_b128 v[{r}:{r+3}], v7
            v_mul_u32_u24 v6, 3456, v4
            v_cmp_gt_u32 vcc, 1728, v5
            v_lshl_add_u32 v6, v5, 1, v6
            s_nop 0
            v_cndmask_b32 v6, -1, v6, vcc
            s_waitcnt lgkmcnt(0)
            buffer_store_dwordx4 v[{r}:{r+3}], v6, s[32:35], 0 offen
            """)
        return
    a.rnd2(40, 41, 8)
    a.rnd2(42, 43, 9)
    a("""
    v_pk_mul_f32 v[44:45], v[40:41], v[40:41]
    v_pk_mul_f32 v[46:47], v[42:43], v[42:43]
    v_pk_fma_f32 v[44:45], v[44:45], v[48:49], v[50:51]
    v_pk_fma_f32 v[46:47], v[46:47], v[48:49], v[50:51]
    v_pk_mul_f32 v[44:45], v[44:45], v[40:41]
    v_pk_mul_f32 v[46:47], v[46:47], v[42:43]
    v_exp_f32 v44, v44
    v_exp_f32 v45, v45
    v_exp_f32 v46, v46
    v_exp_f32 v47, v47
    v_pk_add_f32 v[44:45], v[44:45], v[52:53]
    v_pk_add_f32 v[46:47], v[46:47], v[52:53]
    v_rcp_f32 v44, v44
    v_rcp_f32 v45, v45
    v_rcp_f32 v46, v46
    v_rcp_f32 v47, v47
    """)
    tile_addr()
    a("""
    v_pk_fma_f32 v[40:41], v[40:41], v[44:45], v[40:41] neg_lo:[1,0,0] neg_hi:[1,0,0]
    v_pk_fma_f32 v[42:43], v[42:43], v[46:47], v[42:43] neg_lo:[1,0,0] neg_hi:[1,0,0]
    v_cvt_pk_bf16_f32 v10, v40, v41
    v_cvt_pk_bf16_f32 v11, v42, v43
    ds_write_b64 v7, v[10:11]
    """)

def epi_gemm2(TM, TN, ACC, pre):
    E = G_EPR
    R, C = E, E+1
    Z = E + 2 + (E+2) % 4
    Z = ((E + 2 + 3)//4)*4
    BS = Z + 16
    if pre is True:
        a.srd(32, 14, 7077888, ZZ)
        a.srd(44, 10, 4096)
        for i in range(TM):
            a(f"""
            v_add_u32 v23, {32*i}, v{R}
            v_lshlrev_b32 v{BS+4}, 1, v23
            buffer_load_ushort v{BS+i}, v{BS+4}, s[44:47], 0 offen
            """)
        for i in out_chunks(40):
            a(f"""
            v_mul_u32_u24 v42, 3456, v40
            v_cmp_gt_u32 vcc, 864, v41
            v_lshl_add_u32 v42, v41, 1, v42
            s_nop 0
            v_cndmask_b32 v42, -1, v42, vcc
            buffer_load_dwordx4 v[{Z+4*i}:{Z+4*i+3}], v42, s[32:35], 0 offen
            """)
        return
    if pre == 'setup':
        a.srd(36, 14, 3670016, UU)
        for i in range(TM):
            a(f'v_lshlrev_b32 v{BS+i}, 16, v{BS+i}')
        return
    if pre == 'out':
        for i in out_chunks():
            a(f"""
            ds_read_b128 v[32:35], v7
            v_mul_u32_u24 v6, 1792, v4
            v_lshl_add_u32 v6, v5, 1, v6
            s_waitcnt lgkmcnt(0)
            """)
            for w in range(4):
                a.unpack(36, 37, 32+w)
                a.unpack(38, 39, Z+4*i+w)
                a(f"""
                v_mul_f32 v36, v36, v38
                v_mul_f32 v37, v37, v39
                v_cvt_pk_bf16_f32 v{Z+4*i+w}, v36, v37
                """)
            a(f'buffer_store_dwordx4 v[{Z+4*i}:{Z+4*i+3}], v6, s[36:39], 0 offen')
        return
    lg = TN.bit_length() - 1
    a(f"""
    s_lshr_b32 s56, s48, {2+lg}
    s_set_gpr_idx_on s56, gpr_idx(SRC0)
    v_mov_b32 v12, v{BS}
    s_set_gpr_idx_off
    """)
    tile_addr()
    a.rnd2(40, 41, 8)
    a.rnd2(42, 43, 9)
    for e in range(4):
        a(f'v_add_f32 v{40+e}, v{40+e}, v12')
    a("""
    v_cvt_pk_bf16_f32 v10, v40, v41
    v_cvt_pk_bf16_f32 v11, v42, v43
    ds_write_b64 v7, v[10:11]
    """)

def make_epi_gemm3(xin_off, out_ws_off):
    def epi(TM, TN, ACC, pre):
        E = G_EPR
        Z = ((E + 2 + 3)//4)*4
        if pre is True:
            a.srd(32, 14, 2621440, xin_off)
            for i in out_chunks(40):
                a(f"""
                v_mul_u32_u24 v42, 1280, v40
                v_lshl_add_u32 v42, v41, 1, v42
                buffer_load_dwordx4 v[{Z+4*i}:{Z+4*i+3}], v42, s[32:35], 0 offen
                """)
            return
        if pre == 'setup':
            if out_ws_off is None:
                a.srd(36, 12, 2621440)
            else:
                a.srd(36, 14, 2621440, out_ws_off)
            return
        if pre == 'out':
            for i in out_chunks():
                a(f"""
                ds_read_b128 v[32:35], v7
                v_mul_u32_u24 v6, 1280, v4
                v_lshl_add_u32 v6, v5, 1, v6
                s_waitcnt lgkmcnt(0)
                """)
                for w in range(4):
                    a.unpack(36, 37, 32+w)
                    a.unpack(38, 39, Z+4*i+w)
                    a(f"""
                    v_add_f32 v36, v36, v38
                    v_add_f32 v37, v37, v39
                    v_cvt_pk_bf16_f32 v{Z+4*i+w}, v36, v37
                    """)
                a(f'buffer_store_dwordx4 v[{Z+4*i}:{Z+4*i+3}], v6, s[36:39], 0 offen')
            return
        tile_addr()
        a("""
        v_cvt_pk_bf16_f32 v10, v40, v41
        v_cvt_pk_bf16_f32 v11, v42, v43
        ds_write_b64 v7, v[10:11]
        """)
    return epi

gen_prep()
gen_conv()
gen_row('rowa_kernel', A_Q, 0, X1)
gen_row('rowb_kernel', WS, X2, X3)
gen_lnz()
g1, l1, t1 = gen_gemm('gemm1_kernel', 64, 32, 64, 640, 2048, 1728, (WS, HH), (WS, WINT), epi_gemm1, D=4, GM=2, GN=4)
g2, l2, t2 = gen_gemm('gemm2_kernel', 32, 32, 64, 2048, 2048, 864, (B_WSP, 0), (WS, Z2T), epi_gemm2, D=4, GM=4, GN=2, blk=896)
g3, l3, t3 = gen_gemm('gemm3a_kernel', 32, 32, 64, 896, 2048, 640, (WS, UU), (WS, WOUTT), make_epi_gemm3(X1, X2), D=4, GM=4, GN=2)
g3, l3, t3 = gen_gemm('gemm3b_kernel', 32, 32, 64, 896, 2048, 640, (WS, UU), (WS, WOUTT), make_epi_gemm3(X3, None), D=4, GM=4, GN=2)

launches = [
    ('prep_kernel', 1460, 5120, 256),
    ('conv_kernel', 640, CONV_LDS, 256),
    ('rowa_kernel', 256, 16384, 512),
    ('gemm1_kernel', g1, l1, t1),
    ('lnz_kernel', 256, 16384, 512),
    ('gemm2_kernel', g2, l2, t2),
    ('gemm3a_kernel', g3, l3, t3),
    ('rowb_kernel', 256, 16384, 512),
    ('gemm1_kernel', g1, l1, t1),
    ('lnz_kernel', 256, 16384, 512),
    ('gemm2_kernel', g2, l2, t2),
    ('gemm3b_kernel', g3, l3, t3),
]

ref = open('cdna_kernels/' + NAME + '.s.ref').read().split('\n')
head = [l for l in ref if l.startswith(';') and '@launch' not in l]
out = head[:]
for (k, g, lds, nt) in launches:
    out.append(f'; @launch kernel={k} grid=({g},1,1) block=({nt},1,1) lds={lds}')
out.append('.amdgcn_target "amdgcn-amd-amdhsa--gfx950"')
out.append('.text')
out += a.L
out.append('.section .rodata,"a"')
for (k, v, s, acc) in a.kernels:
    out.append('.p2align 6')
    out.append(f'.amdhsa_kernel {k}')
    out.append(f'  .amdhsa_next_free_vgpr {v}')
    out.append(f'  .amdhsa_next_free_sgpr {s}')
    out.append(f'  .amdhsa_accum_offset {((acc+3)//4)*4}')
    out.append('  .amdhsa_group_segment_fixed_size 0')
    out.append('  .amdhsa_kernarg_size 112')
    out.append('  .amdhsa_user_sgpr_count 2')
    out.append('  .amdhsa_user_sgpr_kernarg_segment_ptr 1')
    out.append('  .amdhsa_system_sgpr_workgroup_id_x 1')
    out.append('.end_amdhsa_kernel')
open('stamp.s' if STAMP else 'cdna_kernels/' + NAME + '.s', 'w').write('\n'.join(out) + '\n')
print('ok', len(out), 'lines', g1, l1, g2, l2, g3, l3)
```

```python
NAME = "interleave_layers__ssm_conv_h3__mixer_gmlp__prompt"

KVR = 0x0
P4 = 4352
YYT = 0x300000
WINT = 0x600000
WOUTT = 0x900000
X1 = 0xB00000
X2 = 0xE00000
X3 = 0x1100000
HH = 0x1400000
ZZ = 0x1700000
Z2T = 0x1E00000
UU = 0x2200000

A_Q, A_K, A_V, A_SK, A_SSMK, A_D, B_X, B_WIN, B_WSP, B_BSP, B_WOUT, OUT, DBG, WS = [8*i for i in range(14)]

class Asm:
    def __init__(self):
        self.L = []
        self.kernels = []
        self.launches = []
        self.uid = 0
    def __call__(self, s):
        for line in s.strip().split('\n'):
            self.L.append('    ' + line.strip())
    def label(self, l):
        self.L.append(l + ':')
    def newlabel(self, p='L'):
        self.uid += 1
        return f'{p}_{self.uid}'
    def begin(self, label):
        self.L.append('.globl ' + label)
        self.L.append('.p2align 8')
        self.L.append(f'.type {label},@function')
        self.label(label)
    def srd(self, d, p, nbytes, off=0):
        if off:
            self(f's_add_u32 s{d}, s{p}, {off}')
            self(f's_addc_u32 s{d+1}, s{p+1}, 0')
        else:
            self(f's_mov_b32 s{d}, s{p}')
            self(f's_mov_b32 s{d+1}, s{p+1}')
        self(f's_mov_b32 s{d+2}, {nbytes}')
        self(f's_mov_b32 s{d+3}, 0x00020000')
    def rnd2(self, a, b, t):
        self(f'v_cvt_pk_bf16_f32 v{t}, v{a}, v{b}')
        self(f'v_lshlrev_b32 v{a}, 16, v{t}')
        self(f'v_and_b32 v{b}, 0xffff0000, v{t}')
    def unpack(self, lo, hi, src):
        self(f'v_lshlrev_b32 v{lo}, 16, v{src}')
        self(f'v_and_b32 v{hi}, 0xffff0000, v{src}')
    def wave_sum(self, v, t, sdst):
        self('s_nop 1')
        self(f'v_add_f32_dpp v{t}, v{v}, v{v} quad_perm:[1,0,3,2] row_mask:0xf bank_mask:0xf')
        self('s_nop 1')
        self(f'v_add_f32_dpp v{v}, v{t}, v{t} quad_perm:[2,3,0,1] row_mask:0xf bank_mask:0xf')
        self('s_nop 1')
        self(f'v_add_f32_dpp v{t}, v{v}, v{v} row_half_mirror row_mask:0xf bank_mask:0xf')
        self('s_nop 1')
        self(f'v_add_f32_dpp v{v}, v{t}, v{t} row_mirror row_mask:0xf bank_mask:0xf')
        self('s_nop 0')
        self(f'v_readlane_b32 s52, v{v}, 16')
        self(f'v_readlane_b32 s53, v{v}, 32')
        self(f'v_readlane_b32 s54, v{v}, 48')
        self('s_nop 1')
        self(f'v_add_f32 v{v}, s52, v{v}')
        self(f'v_add_f32 v{v}, s53, v{v}')
        self(f'v_add_f32 v{v}, s54, v{v}')
        self('s_nop 0')
        self(f'v_readlane_b32 s{sdst}, v{v}, 0')
        self('s_nop 1')

a = Asm()
import os
STAMP = os.environ.get('STAMP') == '1'
def stamp(i):
    if STAMP:
        a(f's_memtime s[{60+2*i}:{61+2*i}]')
def stamp_out(n):
    if STAMP:
        a(f"""
        s_load_dwordx2 s[4:5], s[0:1], {DBG}
        s_waitcnt lgkmcnt(0)
        s_cmp_lg_u32 s2, 5
        s_cbranch_scc1 skipst_{a.uid}
        """)
        a.srd(8, 4, 256)
        for i in range(n):
            a(f"""
            v_mov_b32 v1, s{60+2*i}
            v_mov_b32 v2, {4*i}
            buffer_store_dword v1, v2, s[8:11], 0 offen
            """)
        a.label(f'skipst_{a.uid}')
        a.uid += 1


def gen_prep():
    k = 'prep_kernel'
    a.begin(k)
    a(f'''
    s_cmp_ge_u32 s2, 1460
    s_cbranch_scc1 prep_done
    s_load_dwordx2 s[4:5], s[0:1], {A_K}
    s_load_dwordx2 s[6:7], s[0:1], {A_V}
    s_load_dwordx2 s[8:9], s[0:1], {A_SK}
    s_load_dwordx2 s[10:11], s[0:1], {B_WIN}
    s_load_dwordx2 s[12:13], s[0:1], {B_WOUT}
    s_load_dwordx2 s[14:15], s[0:1], {WS}
    v_lshrrev_b32 v1, 3, v0
    v_and_b32 v2, 7, v0
    s_waitcnt lgkmcnt(0)
    s_cmp_ge_u32 s2, 640
    s_cbranch_scc1 prep_tr
    ''')
    a(f'''
    s_mov_b32 s16, 429496730
    s_mul_hi_u32 s17, s2, s16
    s_mul_i32 s18, s17, 10
    s_sub_u32 s18, s2, s18
    s_lshl_b32 s19, s17, 5
    s_lshl_b32 s20, s18, 6
    ''')
    a.srd(24, 4, 2621440)
    a.srd(28, 6, 2621440)
    a.srd(32, 8, 5120)
    a.srd(36, 14, 640*P4, KVR)
    a(f'''
    v_add_u32 v3, s19, v1
    v_mul_u32_u24 v3, 1280, v3
    v_lshlrev_b32 v4, 4, v2
    v_add_u32 v3, v3, v4
    s_lshl_b32 s21, s20, 1
    v_add_u32 v3, s21, v3
    v_subrev_u32 v5, 1280, v3
    v_subrev_u32 v6, 2560, v3
    v_subrev_u32 v7, 3840, v3
    buffer_load_dwordx4 v[8:11], v3, s[24:27], 0 offen
    buffer_load_dwordx4 v[12:15], v5, s[24:27], 0 offen
    buffer_load_dwordx4 v[16:19], v6, s[24:27], 0 offen
    buffer_load_dwordx4 v[20:23], v7, s[24:27], 0 offen
    buffer_load_dwordx4 v[24:27], v3, s[28:31], 0 offen
    v_lshlrev_b32 v4, 6, v2
    s_lshl_b32 s21, s20, 3
    v_add_u32 v4, s21, v4
    buffer_load_dwordx4 v[28:31], v4, s[32:35], 0 offen
    buffer_load_dwordx4 v[32:35], v4, s[32:35], 0 offen offset:16
    buffer_load_dwordx4 v[36:39], v4, s[32:35], 0 offen offset:32
    buffer_load_dwordx4 v[40:43], v4, s[32:35], 0 offen offset:48
    ''')
    a('''
    v_mul_u32_u24 v44, 640, v2
    v_sub_u32 v45, 31, v1
    v_lshlrev_b32 v45, 1, v45
    v_add_u32 v44, v44, v45
    s_waitcnt vmcnt(0)
    ''')
    for e in range(8):
        w = e // 2
        def g(dst, base):
            if e % 2 == 0:
                a(f'v_lshlrev_b32 v{dst}, 16, v{base+w}')
            else:
                a(f'v_and_b32 v{dst}, 0xffff0000, v{base+w}')
        g(50, 8); g(51, 12); g(52, 16); g(53, 20); g(54, 24)
        a.unpack(55, 56, 28 + 2*e)
        a.unpack(57, 58, 29 + 2*e)
        a(f'''
        v_mul_f32 v60, v53, v58
        v_mul_f32 v61, v52, v57
        ''')
        a.rnd2(60, 61, 62)
        a(f'''
        v_add_f32 v60, v60, v61
        v_mul_f32 v61, v51, v56
        ''')
        a.rnd2(60, 61, 62)
        a(f'''
        v_add_f32 v60, v60, v61
        v_mul_f32 v61, v50, v55
        ''')
        a.rnd2(60, 61, 62)
        a(f'''
        v_add_f32 v60, v60, v61
        v_cvt_pk_bf16_f32 v62, v60, v60
        v_lshlrev_b32 v60, 16, v62
        v_mul_f32 v60, v60, v54
        v_cvt_pk_bf16_f32 v62, v60, v60
        ds_write_b16 v44, v62 offset:{80*e}
        ''')
    a(f'''
    s_waitcnt lgkmcnt(0)
    s_barrier
    v_lshrrev_b32 v45, 2, v0
    v_and_b32 v46, 3, v0
    v_mul_u32_u24 v47, 80, v45
    v_lshlrev_b32 v48, 4, v46
    v_add_u32 v47, v47, v48
    ds_read_b128 v[8:11], v47
    v_add_u32 v45, s20, v45
    v_mul_u32_u24 v45, {P4}, v45
    s_sub_u32 s21, 2016, s19
    s_lshl_b32 s21, s21, 1
    v_add_u32 v45, s21, v45
    v_add_u32 v45, v45, v48
    s_waitcnt lgkmcnt(0)
    buffer_store_dwordx4 v[8:11], v45, s[36:39], 0 offen
    s_branch prep_done
    ''')
    a.label('prep_tr')
    a('''
    s_sub_u32 s16, s2, 640
    s_cmp_ge_u32 s16, 540
    s_cbranch_scc1 prep_tr2
    ''')
    a(f'''
    s_mov_b32 s17, 159072863
    s_mul_hi_u32 s18, s16, s17
    s_mul_i32 s19, s18, 27
    s_sub_u32 s19, s16, s19
    s_mov_b32 s20, 640
    s_mov_b32 s21, 1728
    ''')
    a.srd(24, 10, 2211840)
    a.srd(28, 14, 2211840, WINT)
    a('s_branch prep_tr3')
    a.label('prep_tr2')
    a(f'''
    s_sub_u32 s16, s16, 540
    s_mov_b32 s17, 429496730
    s_mul_hi_u32 s18, s16, s17
    s_mul_i32 s19, s18, 10
    s_sub_u32 s19, s16, s19
    s_mov_b32 s20, 896
    s_mov_b32 s21, 640
    ''')
    a.srd(24, 12, 1105920)
    a.srd(28, 14, 1146880, WOUTT)
    a.label('prep_tr3')
    a('''
    s_lshl_b32 s22, s18, 5
    s_lshl_b32 s23, s19, 6
    v_add_u32 v3, s22, v1
    v_mul_lo_u32 v3, v3, s21
    v_lshlrev_b32 v4, 3, v2
    v_add_u32 v3, v3, v4
    v_add_u32 v3, s23, v3
    v_lshlrev_b32 v3, 1, v3
    buffer_load_dwordx4 v[8:11], v3, s[24:27], 0 offen
    v_mul_u32_u24 v44, 640, v2
    v_lshlrev_b32 v45, 1, v1
    v_add_u32 v44, v44, v45
    s_waitcnt vmcnt(0)
    ''')
    for e in range(8):
        if e % 2 == 0:
            a(f'ds_write_b16 v44, v{8+e//2} offset:{80*e}')
        else:
            a(f'ds_write_b16_d16_hi v44, v{8+e//2} offset:{80*e}')
    a('''
    s_waitcnt lgkmcnt(0)
    s_barrier
    v_lshrrev_b32 v45, 2, v0
    v_and_b32 v46, 3, v0
    v_mul_u32_u24 v47, 80, v45
    v_lshlrev_b32 v48, 4, v46
    v_add_u32 v47, v47, v48
    ds_read_b128 v[8:11], v47
    v_add_u32 v45, s23, v45
    v_mul_lo_u32 v45, v45, s20
    v_add_u32 v45, s22, v45
    v_lshlrev_b32 v45, 1, v45
    v_add_u32 v45, v45, v48
    s_waitcnt lgkmcnt(0)
    buffer_store_dwordx4 v[8:11], v45, s[28:31], 0 offen
    ''')
    a.label('prep_done')
    a('s_endpgm')
    a.kernels.append((k, 64, 48, 64))

HP = 4384
NHC = 4
KV0 = NHC * HP
KVSZ = 9216 + 64
KV1 = KV0 + KVSZ
CONV_LDS = max(KV1 + KVSZ, 4*64*144)
def gen_conv():
    k = 'conv_kernel'
    a.begin(k)
    a(f"""
    s_cmp_ge_u32 s2, 640
    s_cbranch_scc1 conv_done
    """)
    stamp(0)
    a(f"""
    s_load_dwordx2 s[4:5], s[0:1], {A_SSMK}
    s_load_dwordx2 s[6:7], s[0:1], {A_D}
    s_load_dwordx2 s[14:15], s[0:1], {WS}
    s_lshl_b32 s16, s2, 12
    v_lshrrev_b32 v1, 6, v0
    s_nop 0
    v_readfirstlane_b32 s22, v1
    s_waitcnt lgkmcnt(0)
    s_add_u32 s4, s4, s16
    s_addc_u32 s5, s5, 0
    s_mul_i32 s16, s2, {P4}
    s_add_u32 s8, s14, s16
    s_addc_u32 s9, s15, 0
    """)
    a.srd(24, 4, 4096)
    a.srd(28, 8, 4096, KVR)
    a.srd(32, 14, 2621440, YYT)
    a.srd(36, 6, 1280)
    a(f"""
    v_lshlrev_b32 v3, 4, v0
    v_subrev_u32 v4, 128, v3
    v_subrev_u32 v5, 112, v3
    buffer_load_dwordx4 v[8:11], v4, s[24:27], 0 offen
    buffer_load_dwordx4 v[12:15], v5, s[24:27], 0 offen
    v_add_u32 v6, 4096, v3
    v_subrev_u32 v4, 128, v6
    v_subrev_u32 v5, 112, v6
    buffer_load_dwordx4 v[16:19], v4, s[24:27], 0 offen
    buffer_load_dwordx4 v[20:23], v5, s[24:27], 0 offen
    v_subrev_u32 v4, 16, v3
    buffer_load_dwordx4 v[24:27], v4, s[28:31], 0 offen
    buffer_load_dwordx4 v[28:31], v3, s[28:31], 0 offen
    s_lshl_b32 s17, s2, 1
    v_mov_b32 v4, s17
    buffer_load_ushort v39, v4, s[36:39], 0 offen
    v_lshrrev_b32 v5, 3, v0
    v_lshlrev_b32 v5, 4, v5
    v_add_u32 v7, v3, v5
    v_mov_b32 v32, 0
    v_mov_b32 v33, 0
    v_mov_b32 v34, 0
    v_mov_b32 v35, 0
    ds_write_b128 v7, v[32:35] offset:{KV0+4608}
    v_cmp_ne_u32 vcc, 0, v0
    s_and_saveexec_b64 s[40:41], vcc
    ds_write_b128 v7, v[32:35] offset:{KV1+4608}
    s_mov_b64 exec, s[40:41]
    s_waitcnt vmcnt(5)
    """)
    def hcopies(base, addr):
        for ci, c in enumerate((1, 3, 5, 7)):
            j = (c - 1)//2
            o = 40 + 4*(ci & 1)
            for i in range(4):
                a(f'v_alignbit_b32 v{o+i}, v{base+j+i+1}, v{base+j+i}, 16')
            a(f'ds_write_b128 v{addr}, v[{o}:{o+3}] offset:{ci*HP}')
    hcopies(8, 3)
    a("""
    s_waitcnt vmcnt(3)
    v_cmp_gt_u32 vcc, 16, v0
    s_and_saveexec_b64 s[40:41], vcc
    """)
    hcopies(16, 6)
    a('s_mov_b64 exec, s[40:41]')
    a(f"""
    s_waitcnt vmcnt(0)
    ds_write_b128 v7, v[28:31] offset:{KV0}
    v_alignbit_b32 v40, v28, v27, 16
    v_alignbit_b32 v41, v29, v28, 16
    v_alignbit_b32 v42, v30, v29, 16
    v_alignbit_b32 v43, v31, v30, 16
    ds_write_b128 v7, v[40:43] offset:{KV1}
    v_lshrrev_b32 v44, 16, v31
    v_mov_b32 v45, 0
    v_mov_b32 v46, 0
    v_mov_b32 v47, 0
    v_cmp_eq_u32 vcc, 255, v0
    s_and_saveexec_b64 s[40:41], vcc
    v_mov_b32 v5, {KV1+4608}
    ds_write_b128 v5, v[44:47]
    s_mov_b64 exec, s[40:41]
    v_lshlrev_b32 v39, 16, v39
    """)
    a(f"""
    v_and_b32 v2, 63, v0
    v_and_b32 v3, 31, v2
    v_lshrrev_b32 v4, 5, v2
    s_mul_i32 s42, s22, 24
    s_cmp_eq_u32 s22, 3
    s_cselect_b32 s42, 76, s42
    s_lshl_b32 s43, s42, 5
    v_lshlrev_b32 v5, 1, v3
    v_add_u32 v5, 1, v5
    v_and_b32 v6, 7, v5
    v_lshrrev_b32 v6, 1, v6
    v_mul_u32_u24 v6, {HP}, v6
    v_and_b32 v5, 0x78, v5
    v_lshl_add_u32 v5, v4, 3, v5
    v_lshl_add_u32 v36, v5, 1, v6
    v_add_u32 v36, s43, v36
    """)
    a(f"""
    v_and_b32 v5, 15, v2
    v_bfe_u32 v6, v2, 4, 1
    v_mul_u32_u24 v6, {KVSZ}, v6
    v_mul_u32_u24 v5, 144, v5
    v_sub_u32 v5, {KV0 + 1984*2 + 31*16}, v5
    v_add_u32 v5, v5, v6
    v_lshl_add_u32 v5, v4, 4, v5
    s_lshr_b32 s44, s42, 2
    s_lshl_b32 s44, s44, 4
    s_add_u32 s44, s44, s43
    v_add_u32 v37, s44, v5
    v_subrev_u32 v38, {16*144}, v37
    """)
    for i in range(32):
        a(f'v_mov_b32 v{64+i}, 0')
    stamp(1)
    a("""
    s_waitcnt lgkmcnt(0)
    s_barrier
    """)
    stamp(2)
    a("""
    s_mov_b32 s45, 6
    s_cmp_eq_u32 s22, 2
    s_cselect_b32 s45, 5, s45
    s_cmp_eq_u32 s22, 3
    s_cselect_b32 s45, 0, s45
    s_mov_b32 s46, 0
    s_cmp_eq_u32 s22, 2
    s_cselect_b32 s46, 2, s46
    s_cmp_eq_u32 s22, 3
    s_cselect_b32 s46, 14, s46
    s_cmp_eq_u32 s45, 0
    s_cbranch_scc1 conv_lb
    """)
    a.label('conv_la')
    for st in range(4):
        b = 40 + 12*(st & 1)
        a(f"""
        ds_read_b128 v[{b}:{b+3}], v36 offset:{32*st}
        ds_read_b128 v[{b+4}:{b+7}], v37 offset:{32*st}
        ds_read_b128 v[{b+8}:{b+11}], v38 offset:{32*st}
        """)
        if st > 0:
            pb = 40 + 12*((st-1) & 1)
            a(f"""
            s_waitcnt lgkmcnt(3)
            v_mfma_f32_32x32x16_bf16 v[64:79], v[{pb}:{pb+3}], v[{pb+4}:{pb+7}], v[64:79]
            v_mfma_f32_32x32x16_bf16 v[80:95], v[{pb}:{pb+3}], v[{pb+8}:{pb+11}], v[80:95]
            """)
    a(f"""
    v_add_u32 v36, 128, v36
    v_add_u32 v37, 144, v37
    v_add_u32 v38, 144, v38
    s_waitcnt lgkmcnt(0)
    v_mfma_f32_32x32x16_bf16 v[64:79], v[52:55], v[56:59], v[64:79]
    v_mfma_f32_32x32x16_bf16 v[80:95], v[52:55], v[60:63], v[80:95]
    s_sub_u32 s45, s45, 1
    s_cmp_lg_u32 s45, 0
    s_cbranch_scc1 conv_la
    """)
    a.label('conv_lb')
    a("""
    s_cmp_eq_u32 s46, 0
    s_cbranch_scc1 conv_le
    """)
    a.label('conv_lb2')
    LB = (8, 16, 24, 40)
    for st in range(4):
        b = LB[st]
        a(f"""
        ds_read_b128 v[{b}:{b+3}], v36 offset:{32*st}
        ds_read_b128 v[{b+4}:{b+7}], v38 offset:{32*st}
        """)
    a("""
    v_add_u32 v36, 128, v36
    v_add_u32 v38, 144, v38
    """)
    for st in range(4):
        b = LB[st]
        a(f"""
        s_waitcnt lgkmcnt({6-2*st})
        v_mfma_f32_32x32x16_bf16 v[80:95], v[{b}:{b+3}], v[{b+4}:{b+7}], v[80:95]
        """)
    a("""
    s_sub_u32 s46, s46, 1
    s_cmp_lg_u32 s46, 0
    s_cbranch_scc1 conv_lb2
    """)
    a.label('conv_le')
    stamp(3)
    a(f"""
    v_sub_u32 v6, 255, v0
    v_lshrrev_b32 v7, 3, v6
    v_add_u32 v6, v6, v7
    v_lshlrev_b32 v6, 4, v6
    ds_read_b128 v[8:11], v6 offset:{KV0}
    s_waitcnt lgkmcnt(0)
    s_barrier
    s_nop 7
    s_mul_i32 s43, s22, 9216
    v_mul_u32_u24 v5, 144, v3
    v_lshl_add_u32 v5, v4, 4, v5
    v_add_u32 v5, s43, v5
    """)
    for T in range(2):
        for q in range(4):
            r = 64 + 16*T + 4*q
            a(f'ds_write_b128 v5, v[{r}:{r+3}] offset:{T*32*144 + q*32}')
    a(f"""
    v_lshrrev_b32 v5, 3, v0
    v_and_b32 v6, 15, v5
    v_lshrrev_b32 v7, 4, v5
    v_lshl_add_u32 v6, v7, 5, v6
    v_mul_u32_u24 v6, 144, v6
    v_and_b32 v7, 7, v0
    v_lshl_add_u32 v5, v7, 4, v6
    s_waitcnt lgkmcnt(0)
    s_barrier
    """)
    for w in range(4):
        for r in range(2):
            a(f'ds_read_b128 v[{40+8*w+4*r}:{43+8*w+4*r}], v5 offset:{w*9216 + r*16*144}')
    a('s_waitcnt lgkmcnt(0)')
    for r in range(2):
        for i in range(0, 4, 2):
            x = 40 + 4*r + i
            a(f"""
            v_pk_add_f32 v[{x}:{x+1}], v[{x}:{x+1}], v[{x+8}:{x+9}]
            v_pk_add_f32 v[{x+16}:{x+17}], v[{x+16}:{x+17}], v[{x+24}:{x+25}]
            v_pk_add_f32 v[{x}:{x+1}], v[{x}:{x+1}], v[{x+16}:{x+17}]
            """)
    for i in range(4):
        b0, b1 = 40 + i, 44 + i
        e = 2*i
        a.rnd2(b0, b1, 12)
        p0, p1 = 7 - e, 7 - (e+1)
        a(f"""
        v_and_b32 v13, 0xffff0000, v{8 + p0//2}
        v_lshlrev_b32 v14, 16, v{8 + p1//2}
        v_mul_f32 v13, v13, v39
        v_mul_f32 v14, v14, v39
        """)
        a.rnd2(13, 14, 12)
        a(f"""
        v_add_f32 v13, v13, v{b0}
        v_add_f32 v14, v14, v{b1}
        v_cvt_pk_bf16_f32 v{16+i}, v13, v14
        """)
    a("""
    v_mul_u32_u24 v3, 10240, v0
    s_lshl_b32 s16, s2, 4
    v_add_u32 v3, s16, v3
    buffer_store_dwordx4 v[16:19], v3, s[32:35], 0 offen
    """)
    if STAMP:
        a('s_waitcnt vmcnt(0)')
    stamp(4)
    stamp_out(5)
    a.label('conv_done')
    a('s_endpgm')
    a.kernels.append((k, 96, 80, 96))

def ln_pk(X, npair, n_elems, Q, T, mask_last=False):
    a(f'v_pk_add_f32 v[{T}:{T+1}], v[{X}:{X+1}], v[{X+2}:{X+3}]')
    for i in range(2, npair):
        a(f'v_pk_add_f32 v[{T}:{T+1}], v[{T}:{T+1}], v[{X+2*i}:{X+2*i+1}]')
    a(f'v_add_f32 v{T}, v{T}, v{T+1}')
    a.wave_sum(T, T+1, 50)
    a(f"""
    v_mov_b32 v{T}, {1.0/n_elems!r}
    v_mul_f32 v{T+2}, s50, v{T}
    v_mul_f32 v{T+3}, s50, v{T}
    v_mov_b32 v{T+4}, 0
    v_mov_b32 v{T+5}, 0
    """)
    for i in range(npair):
        a(f'v_pk_add_f32 v[{T}:{T+1}], v[{X+2*i}:{X+2*i+1}], v[{T+2}:{T+3}] neg_lo:[0,1] neg_hi:[0,1]')
        if mask_last and i == npair-1:
            a(f"""
            v_cndmask_b32 v{T}, 0, v{T}, s[58:59]
            v_cndmask_b32 v{T+1}, 0, v{T+1}, s[58:59]
            """)
        a(f'v_pk_fma_f32 v[{T+4}:{T+5}], v[{T}:{T+1}], v[{T}:{T+1}], v[{T+4}:{T+5}]')
    a(f'v_add_f32 v{T}, v{T+4}, v{T+5}')
    a.wave_sum(T, T+1, 51)
    a(f"""
    v_mov_b32 v{T}, {1.0/n_elems!r}
    v_mul_f32 v{T+4}, s51, v{T}
    """)
    a.rnd2(T+2, T+4, T)
    a(f"""
    v_mov_b32 v{T+3}, v{T+2}
    v_add_f32 v{T+4}, 0x3727c5ac, v{T+4}
    v_cvt_pk_bf16_f32 v{T}, v{T+4}, v{T+4}
    v_lshlrev_b32 v{T+4}, 16, v{T}
    v_sqrt_f32 v{T+4}, v{T+4}
    s_nop 0
    v_cvt_pk_bf16_f32 v{T}, v{T+4}, v{T+4}
    v_lshlrev_b32 v{T+4}, 16, v{T}
    v_rcp_f32 v{T+6}, v{T+4}
    s_nop 0
    v_fma_f32 v{T}, -v{T+4}, v{T+6}, 2.0
    v_mul_f32 v{T+6}, v{T+6}, v{T}
    v_mov_b32 v{T+7}, v{T+6}
    """)
    for i in range(npair):
        q = Q + 2*i
        a(f'v_pk_add_f32 v[{q}:{q+1}], v[{X+2*i}:{X+2*i+1}], v[{T+2}:{T+3}] neg_lo:[0,1] neg_hi:[0,1]')
        a.rnd2(q, q+1, T)
        a(f'v_pk_mul_f32 v[{q}:{q+1}], v[{q}:{q+1}], v[{T+6}:{T+7}]')

def gen_row(k, xin_arg, xin_off, xout_off):
    a.begin(k)
    done = k + '_done'
    a(f"""
    s_cmp_ge_u32 s2, 256
    s_cbranch_scc1 {done}
    s_load_dwordx2 s[4:5], s[0:1], {xin_arg}
    s_load_dwordx2 s[14:15], s[0:1], {WS}
    v_lshrrev_b32 v1, 6, v0
    v_and_b32 v2, 63, v0
    s_lshl_b32 s17, s2, 3
    v_add_u32 v3, s17, v1
    v_mul_u32_u24 v3, 1280, v3
    v_lshl_add_u32 v3, v2, 2, v3
    s_waitcnt lgkmcnt(0)
    """)
    a.srd(24, 4, 2621440, xin_off)
    a.srd(28, 14, 2621440, YYT)
    a.srd(32, 14, 2621440, xout_off)
    a.srd(36, 14, 2621440, HH)
    for j in range(5):
        a(f'buffer_load_dword v{8+j}, v3, s[24:27], 0 offen offset:{256*j}')
    a("""
    s_mul_i32 s16, s2, 10240
    v_lshlrev_b32 v6, 4, v0
    v_add_u32 v4, s16, v6
    v_cmp_gt_u32 vcc, 128, v0
    v_add_u32 v5, 8192, v4
    s_nop 0
    v_cndmask_b32 v5, -1, v5, vcc
    buffer_load_dwordx4 v[16:19], v4, s[28:31], 0 offen
    buffer_load_dwordx4 v[20:23], v5, s[28:31], 0 offen
    s_waitcnt vmcnt(0)
    ds_write_b128 v6, v[16:19]
    ds_write_b128 v6, v[20:23] offset:8192
    v_lshlrev_b32 v4, 5, v2
    v_lshl_add_u32 v4, v1, 1, v4
    """)
    for j in range(5):
        a.unpack(16+2*j, 17+2*j, 8+j)
    a("""
    s_waitcnt lgkmcnt(0)
    s_barrier
    """)
    for j in range(5):
        a(f'ds_read_u16 v{40+2*j}, v4 offset:{2048*j}')
        a(f'ds_read_u16 v{41+2*j}, v4 offset:{2048*j + 16}')
    ln_pk(16, 5, 640, 28, 52)
    a('s_waitcnt lgkmcnt(0)')
    for j in range(10):
        a(f'v_lshlrev_b32 v{40+j}, 16, v{40+j}')
    for i in range(5):
        q, x, y = 28+2*i, 16+2*i, 40+2*i
        a.rnd2(q, q+1, 56)
        a(f'v_pk_mul_f32 v[{q}:{q+1}], v[{q}:{q+1}], v[{y}:{y+1}]')
        a.rnd2(q, q+1, 56)
        a(f'v_pk_add_f32 v[{x}:{x+1}], v[{x}:{x+1}], v[{q}:{q+1}]')
        a.rnd2(x, x+1, 8+i)
        a(f'buffer_store_dword v{8+i}, v3, s[32:35], 0 offen offset:{256*i}')
    ln_pk(16, 5, 640, 28, 52)
    for i in range(5):
        a(f'v_cvt_pk_bf16_f32 v{40+i}, v{28+2*i}, v{29+2*i}')
        a(f'buffer_store_dword v{40+i}, v3, s[36:39], 0 offen offset:{256*i}')
    a.label(done)
    a('s_endpgm')
    a.kernels.append((k, 64, 64, 64))

def gen_lnz():
    k = 'lnz_kernel'
    a.begin(k)
    a(f"""
    s_cmp_ge_u32 s2, 256
    s_cbranch_scc1 lnz_done
    s_load_dwordx2 s[14:15], s[0:1], {WS}
    v_lshrrev_b32 v1, 6, v0
    v_and_b32 v2, 63, v0
    s_lshl_b32 s17, s2, 3
    v_add_u32 v3, s17, v1
    v_mul_u32_u24 v3, 3456, v3
    v_lshl_add_u32 v3, v2, 2, v3
    v_cmp_gt_u32 s[58:59], 48, v2
    v_add_u32 v4, {1728 + 256*6}, v3
    s_nop 0
    v_cndmask_b32 v4, -1, v4, s[58:59]
    s_waitcnt lgkmcnt(0)
    """)
    a.srd(24, 14, 7077888, ZZ)
    a.srd(28, 14, 256*14336, Z2T)
    for j in range(6):
        a(f'buffer_load_dword v{8+j}, v3, s[24:27], 0 offen offset:{1728 + 256*j}')
    a("""
    buffer_load_dword v14, v4, s[24:27], 0 offen
    v_lshlrev_b32 v4, 5, v2
    v_lshl_add_u32 v4, v1, 1, v4
    s_waitcnt vmcnt(0)
    """)
    for j in range(7):
        a.unpack(16+2*j, 17+2*j, 8+j)
    ln_pk(16, 7, 864, 32, 52, mask_last=True)
    for j in range(7):
        a(f'v_cvt_pk_bf16_f32 v{8+j}, v{32+2*j}, v{33+2*j}')
        if j == 6:
            a('v_cndmask_b32 v14, 0, v14, s[58:59]')
        a(f"""
        ds_write_b16 v4, v{8+j} offset:{2048*j}
        ds_write_b16_d16_hi v4, v{8+j} offset:{2048*j + 16}
        """)
    a("""
    s_waitcnt lgkmcnt(0)
    s_barrier
    v_lshlrev_b32 v4, 4, v0
    ds_read_b128 v[8:11], v4
    ds_read_b128 v[12:15], v4 offset:8192
    s_mul_i32 s16, s2, 14336
    v_add_u32 v3, s16, v4
    v_cmp_gt_u32 vcc, 384, v0
    v_add_u32 v5, 8192, v3
    s_nop 0
    v_cndmask_b32 v5, -1, v5, vcc
    s_waitcnt lgkmcnt(0)
    buffer_store_dwordx4 v[8:11], v3, s[28:31], 0 offen
    buffer_store_dwordx4 v[12:15], v5, s[28:31], 0 offen
    """)
    a.label('lnz_done')
    a('s_endpgm')
    a.kernels.append((k, 64, 64, 64))

def gen_gemm(k, WM, WN, BK, K, M, N, A_src, B_src, epi, D=4, GM=2, GN=4, blk=0):
    ldb = 16 if blk else K*2
    BM, BN = GM*WM, GN*WN
    NT = 64*GM*GN
    TM, TN = WM//32, WN//32
    nmt, nnt = M//BM, -(-N//BN)
    rowb = 128
    nsteps = K//BK
    Abytes, Bbytes = BM*rowb, BN*rowb
    stage = Abytes + Bbytes
    PB = NT*16
    nla, nlb = Abytes//PB, Bbytes//PB
    nl = nla + nlb
    RPL = NT//8
    done = k + '_done'
    a.begin(k)
    a(f"""
    s_cmp_ge_u32 s2, {nmt*nnt}
    s_cbranch_scc1 {done}
    """)
    stamp(0)
    a(f"""
    s_load_dwordx2 s[4:5], s[0:1], {A_src[0]}
    s_load_dwordx2 s[6:7], s[0:1], {B_src[0]}
    s_load_dwordx2 s[14:15], s[0:1], {WS}
    s_load_dwordx2 s[10:11], s[0:1], {B_BSP}
    s_load_dwordx2 s[12:13], s[0:1], {OUT}
    s_and_b32 s16, s2, {nmt-1}
    s_lshr_b32 s17, s2, {nmt.bit_length()-1}
    s_mul_i32 s18, s16, {BM}
    s_mul_i32 s19, s17, {BN}
    v_lshrrev_b32 v1, 6, v0
    v_lshlrev_b32 v1, 10, v1
    s_nop 0
    v_readfirstlane_b32 s22, v1
    s_waitcnt lgkmcnt(0)
    """)
    a.srd(24, 4, M*K*2, A_src[1])
    a.srd(28, 6, (K//8)*blk*16 if blk else N*ldb, B_src[1])
    a(f"""
    v_lshrrev_b32 v1, 3, v0
    v_and_b32 v2, 7, v0
    v_lshrrev_b32 v3, 1, v1
    v_and_b32 v3, 7, v3
    v_xor_b32 v2, v2, v3
    v_lshlrev_b32 v2, 4, v2
    v_add_u32 v3, s18, v1
    v_mul_u32_u24 v3, {K*2}, v3
    v_add_u32 v4, v3, v2
    v_add_u32 v3, s19, v1
    v_mul_u32_u24 v3, {ldb}, v3
    v_mul_u32_u24 v9, {blk if blk else 1}, v2
    v_add_u32 v8, v3, v9
    """)
    if blk:
        assert nlb == 1 and BN == 64 and TN == 1
        a(f"""
        v_lshrrev_b32 v3, 6, v0
        v_mul_u32_u24 v3, {blk}, v3
        v_and_b32 v9, 63, v0
        v_add3_u32 v3, v3, v9, s19
        v_lshlrev_b32 v8, 4, v3
        """)
    for i in range(1, nla):
        a(f'v_add_u32 v{4+i}, {RPL*i*K*2}, v4')
    for i in range(1, nlb):
        a(f'v_add_u32 v{8+i}, {RPL*i*ldb}, v8')
    a(f"""
    v_lshrrev_b32 v1, 6, v0
    v_and_b32 v2, 63, v0
    v_and_b32 v3, 31, v2
    v_lshrrev_b32 v20, 5, v2
    v_and_b32 v21, {GM-1}, v1
    v_lshrrev_b32 v22, {GM.bit_length()-1}, v1
    """)
    nkk = 4
    AB, AR = 12, 24
    for (isB, wsel, W, R) in ((0, 21, WM, AB), (1, 22, WN, AB+4)):
        a(f"""
        v_mul_u32_u24 v23, {W}, v{wsel}
        v_add_u32 v23, v23, v3
        v_lshrrev_b32 v{R}, 1, v23
        v_and_b32 v{R}, 7, v{R}
        v_xor_b32 v{R}, v{R}, v20
        v_mul_u32_u24 v23, {rowb}, v23
        """)
        if isB:
            a(f'v_add_u32 v23, {Abytes}, v23')
        for kk in range(3, -1, -1):
            a(f"""
            v_xor_b32 v{R+kk}, {2*kk}, v{R}
            v_lshl_add_u32 v{R+kk}, v{R+kk}, 4, v23
            """)
        if isB and blk:
            a(f"""
            v_mul_u32_u24 v23, {W}, v{wsel}
            v_add_u32 v23, v23, v3
            v_lshl_add_u32 v23, v20, 6, v23
            v_lshlrev_b32 v23, 4, v23
            """)
            for kk in range(4):
                a(f'v_add_u32 v{R+kk}, {Abytes + 2*kk*64*16}, v23')
    FA = 32
    FB = FA + 4*TM*2
    ACC = 64
    nacc = TM*TN*16
    EPR = ACC + nacc
    global G_EPR, G_BM, G_BN
    G_EPR = EPR
    global G_NT
    G_BM, G_BN = BM, BN
    G_NT = NT
    assert FB + 4*TN*2 <= ACC
    for i in range(nacc):
        a(f'v_mov_b32 v{ACC+i}, 0')
    a(f"""
    v_mul_u32_u24 v23, {WM}, v21
    v_add_u32 v23, v23, v3
    v_add_u32 v{EPR}, s18, v23
    v_mul_u32_u24 v23, {WN}, v22
    v_lshlrev_b32 v{EPR+1}, 2, v20
    v_add_u32 v23, v23, v{EPR+1}
    v_add_u32 v{EPR+1}, s19, v23
    """)
    epi(TM, TN, ACC, True)
    def gload():
        for i in range(nl):
            a(f's_add_u32 m0, s55, {i*PB}')
            a('s_nop 0')
            if i < nla:
                a(f'buffer_load_dwordx4 v{4+i}, s[24:27], s20 offen lds')
            else:
                a(f'buffer_load_dwordx4 v{8+i-nla}, s[28:31], s21 offen lds')
        a(f"""
        s_add_u32 s20, s20, {rowb}
        s_add_u32 s21, s21, {8*blk*16 if blk else rowb}
        s_add_u32 s55, s55, {stage}
        s_cmp_lt_u32 s55, {D*stage}
        s_cselect_b32 s55, s55, s22
        """)
    lp, lm, lw, lnl = [a.newlabel(x) for x in ('gp', 'gm', 'gw', 'gn')]
    a(f"""
    s_mov_b32 s20, 0
    s_mov_b32 s21, 0
    s_mov_b32 s55, s22
    s_mov_b32 s48, 0
    s_mov_b32 s49, 0
    """)
    stamp(1)
    a.label(lp)
    gload()
    a(f"""
    s_add_u32 s48, s48, 1
    s_cmp_lt_u32 s48, {D-1}
    s_cbranch_scc1 {lp}
    s_mov_b32 s48, 0
    """)
    stamp(2)
    a.label(lm)
    a(f"""
    s_cmp_lt_u32 s48, {nsteps-(D-2)}
    s_cbranch_scc1 {lw}
    s_waitcnt vmcnt(0)
    """)
    a.label(lw)
    a(f"""
    s_waitcnt vmcnt({nl*(D-2)})
    s_barrier
    """)
    for i in range(8):
        a(f'v_add_u32 v{AR+i}, s49, v{AB+i}')
    def rd(kk, s):
        for i in range(TM):
            f = FA + 4*(s*TM + i)
            a(f'ds_read_b128 v[{f}:{f+3}], v{AR+kk} offset:{i*32*rowb}')
        for i in range(TN):
            f = FB + 4*(s*TN + i)
            a(f'ds_read_b128 v[{f}:{f+3}], v{AR+4+kk} offset:{i*32*rowb}')
    rd(0, 0)
    a(f"""
    s_cmp_lt_u32 s48, {nsteps-(D-1)}
    s_cbranch_scc0 {lnl}
    """)
    lend = a.newlabel('gx')
    for withload in (True, False):
        if not withload:
            a.label(lnl)
        nm = 0
        li = 0
        tot = nkk*TM*TN
        for kk in range(nkk):
            s_ = kk & 1
            if kk + 1 < nkk:
                rd(kk+1, s_ ^ 1)
                a(f's_waitcnt lgkmcnt({TM+TN})')
            else:
                a('s_waitcnt lgkmcnt(0)')
            for i in range(TM):
                for j in range(TN):
                    fa = FA + 4*(s_*TM + i)
                    fb = FB + 4*(s_*TN + j)
                    c = ACC + 16*(i*TN + j)
                    a(f'v_mfma_f32_32x32x16_bf16 v[{c}:{c+15}], v[{fb}:{fb+3}], v[{fa}:{fa+3}], v[{c}:{c+15}]')
                    nm += 1
                    if withload:
                        while li < nl and li * tot < nm * nl:
                            a(f's_add_u32 m0, s55, {li*PB}')
                            a('s_nop 0')
                            if li < nla:
                                a(f'buffer_load_dwordx4 v{4+li}, s[24:27], s20 offen lds')
                            else:
                                a(f'buffer_load_dwordx4 v{8+li-nla}, s[28:31], s21 offen lds')
                            li += 1
        if withload:
            a(f"""
            s_add_u32 s20, s20, {rowb}
            s_add_u32 s21, s21, {8*blk*16 if blk else rowb}
            s_add_u32 s55, s55, {stage}
            s_cmp_lt_u32 s55, {D*stage}
            s_cselect_b32 s55, s55, s22
            s_branch {lend}
            """)
    a.label(lend)
    a(f"""
    s_add_u32 s49, s49, {stage}
    s_cmp_lt_u32 s49, {D*stage}
    s_cselect_b32 s49, s49, 0
    s_add_u32 s48, s48, 1
    s_cmp_lt_u32 s48, {nsteps}
    s_cbranch_scc1 {lm}
    s_nop 7
    s_nop 7
    """)
    stamp(3)
    a('s_barrier')
    le = a.newlabel('ge')
    lg = TN.bit_length() - 1
    epi(TM, TN, ACC, 'setup')
    a('s_mov_b32 s48, 0')
    a.label(le)
    a(f"""
    s_lshl_b32 s56, s48, 2
    s_lshr_b32 s49, s48, {2+lg}
    s_lshl_b32 s49, s49, 5
    s_lshr_b32 s55, s48, 2
    s_and_b32 s55, s55, {TN-1}
    s_lshl_b32 s55, s55, 5
    s_and_b32 s20, s48, 3
    s_lshl_b32 s20, s20, 3
    s_add_u32 s55, s55, s20
    s_set_gpr_idx_on s56, gpr_idx(SRC0)
    v_mov_b32 v40, v{ACC}
    v_mov_b32 v41, v{ACC+1}
    v_mov_b32 v42, v{ACC+2}
    v_mov_b32 v43, v{ACC+3}
    s_set_gpr_idx_off
    v_add_u32 v4, s49, v{EPR}
    v_add_u32 v5, s55, v{EPR+1}
    """)
    epi(TM, TN, ACC, 'body')
    a(f"""
    s_add_u32 s48, s48, 1
    s_cmp_lt_u32 s48, {nacc//4}
    s_cbranch_scc1 {le}
    s_waitcnt lgkmcnt(0)
    s_barrier
    """)
    epi(TM, TN, ACC, 'out')
    a('s_waitcnt vmcnt(0)')
    stamp(4)
    stamp_out(5)
    a.label(done)
    a('s_endpgm')
    lds = D*stage
    a.kernels.append((k, EPR + 4 + 24, 80, EPR + 4 + 24))
    return nmt*nnt, lds, NT

def gelu_regs(x, t0, t1):
    a(f'''
    v_mul_f32 v{t0}, v{x}, v{x}
    v_mul_f32 v{t0}, v{t0}, v{x}
    v_fma_f32 v{t0}, v{t0}, s46, v{x}
    v_mul_f32 v{t0}, s47, v{t0}
    v_exp_f32 v{t0}, v{t0}
    s_nop 0
    v_add_f32 v{t0}, 1.0, v{t0}
    v_rcp_f32 v{t0}, v{t0}
    s_nop 0
    v_fma_f32 v{t0}, v{t0}, -2.0, 2.0
    v_mul_f32 v{t1}, 0.5, v{x}
    v_mul_f32 v{x}, v{t1}, v{t0}
    ''')

def tile_addr():
    pitch = G_BN*2 + 16
    a(f"""
    v_subrev_u32 v6, s18, v4
    v_mul_u32_u24 v6, {pitch}, v6
    v_subrev_u32 v7, s19, v5
    v_lshl_add_u32 v7, v7, 1, v6
    """)

def out_chunks(t=4):
    cpr = G_BN // 8
    n = G_BM*G_BN*2//16//G_NT
    pitch = G_BN*2 + 16
    sh = cpr.bit_length()-1
    for i in range(n):
        a(f"""
        v_add_u32 v{t+2}, {G_NT*i}, v0
        v_lshrrev_b32 v{t}, {sh}, v{t+2}
        v_and_b32 v{t+1}, {cpr-1}, v{t+2}
        v_lshlrev_b32 v{t+1}, 3, v{t+1}
        v_mul_u32_u24 v{t+3}, {pitch}, v{t}
        v_lshl_add_u32 v{t+3}, v{t+1}, 1, v{t+3}
        v_add_u32 v{t}, s18, v{t}
        v_add_u32 v{t+1}, s19, v{t+1}
        """)
        yield i

def epi_gemm1(TM, TN, ACC, pre):
    if pre is True:
        return
    if pre == 'setup':
        a.srd(32, 14, 7077888, ZZ)
        a("""
        v_mov_b32 v48, 0x3dd2d3e8
        v_mov_b32 v49, 0x3dd2d3e8
        v_mov_b32 v50, 0x40135761
        v_mov_b32 v51, 0x40135761
        v_mov_b32 v52, 1.0
        v_mov_b32 v53, 1.0
        """)
        return
    if pre == 'out':
        for i in out_chunks():
            r = 32 + 4*(i % 8)
            a(f"""
            ds_read_b128 v[{r}:{r+3}], v7
            v_mul_u32_u24 v6, 3456, v4
            v_cmp_gt_u32 vcc, 1728, v5
            v_lshl_add_u32 v6, v5, 1, v6
            s_nop 0
            v_cndmask_b32 v6, -1, v6, vcc
            s_waitcnt lgkmcnt(0)
            buffer_store_dwordx4 v[{r}:{r+3}], v6, s[32:35], 0 offen
            """)
        return
    a.rnd2(40, 41, 8)
    a.rnd2(42, 43, 9)
    a("""
    v_pk_mul_f32 v[44:45], v[40:41], v[40:41]
    v_pk_mul_f32 v[46:47], v[42:43], v[42:43]
    v_pk_fma_f32 v[44:45], v[44:45], v[48:49], v[50:51]
    v_pk_fma_f32 v[46:47], v[46:47], v[48:49], v[50:51]
    v_pk_mul_f32 v[44:45], v[44:45], v[40:41]
    v_pk_mul_f32 v[46:47], v[46:47], v[42:43]
    v_exp_f32 v44, v44
    v_exp_f32 v45, v45
    v_exp_f32 v46, v46
    v_exp_f32 v47, v47
    v_pk_add_f32 v[44:45], v[44:45], v[52:53]
    v_pk_add_f32 v[46:47], v[46:47], v[52:53]
    v_rcp_f32 v44, v44
    v_rcp_f32 v45, v45
    v_rcp_f32 v46, v46
    v_rcp_f32 v47, v47
    """)
    tile_addr()
    a("""
    v_pk_fma_f32 v[40:41], v[40:41], v[44:45], v[40:41] neg_lo:[1,0,0] neg_hi:[1,0,0]
    v_pk_fma_f32 v[42:43], v[42:43], v[46:47], v[42:43] neg_lo:[1,0,0] neg_hi:[1,0,0]
    v_cvt_pk_bf16_f32 v10, v40, v41
    v_cvt_pk_bf16_f32 v11, v42, v43
    ds_write_b64 v7, v[10:11]
    """)

def epi_gemm2(TM, TN, ACC, pre):
    E = G_EPR
    R, C = E, E+1
    Z = E + 2 + (E+2) % 4
    Z = ((E + 2 + 3)//4)*4
    BS = Z + 16
    if pre is True:
        a.srd(32, 14, 7077888, ZZ)
        a.srd(44, 10, 4096)
        for i in range(TM):
            a(f"""
            v_add_u32 v23, {32*i}, v{R}
            v_lshlrev_b32 v{BS+4}, 1, v23
            buffer_load_ushort v{BS+i}, v{BS+4}, s[44:47], 0 offen
            """)
        for i in out_chunks(40):
            a(f"""
            v_mul_u32_u24 v42, 3456, v40
            v_cmp_gt_u32 vcc, 864, v41
            v_lshl_add_u32 v42, v41, 1, v42
            s_nop 0
            v_cndmask_b32 v42, -1, v42, vcc
            buffer_load_dwordx4 v[{Z+4*i}:{Z+4*i+3}], v42, s[32:35], 0 offen
            """)
        return
    if pre == 'setup':
        a.srd(36, 14, 3670016, UU)
        for i in range(TM):
            a(f'v_lshlrev_b32 v{BS+i}, 16, v{BS+i}')
        return
    if pre == 'out':
        for i in out_chunks():
            a(f"""
            ds_read_b128 v[32:35], v7
            v_mul_u32_u24 v6, 1792, v4
            v_lshl_add_u32 v6, v5, 1, v6
            s_waitcnt lgkmcnt(0)
            """)
            for w in range(4):
                a.unpack(36, 37, 32+w)
                a.unpack(38, 39, Z+4*i+w)
                a(f"""
                v_mul_f32 v36, v36, v38
                v_mul_f32 v37, v37, v39
                v_cvt_pk_bf16_f32 v{Z+4*i+w}, v36, v37
                """)
            a(f'buffer_store_dwordx4 v[{Z+4*i}:{Z+4*i+3}], v6, s[36:39], 0 offen')
        return
    lg = TN.bit_length() - 1
    a(f"""
    s_lshr_b32 s56, s48, {2+lg}
    s_set_gpr_idx_on s56, gpr_idx(SRC0)
    v_mov_b32 v12, v{BS}
    s_set_gpr_idx_off
    """)
    tile_addr()
    a.rnd2(40, 41, 8)
    a.rnd2(42, 43, 9)
    for e in range(4):
        a(f'v_add_f32 v{40+e}, v{40+e}, v12')
    a("""
    v_cvt_pk_bf16_f32 v10, v40, v41
    v_cvt_pk_bf16_f32 v11, v42, v43
    ds_write_b64 v7, v[10:11]
    """)

def make_epi_gemm3(xin_off, out_ws_off):
    def epi(TM, TN, ACC, pre):
        E = G_EPR
        Z = ((E + 2 + 3)//4)*4
        if pre is True:
            a.srd(32, 14, 2621440, xin_off)
            for i in out_chunks(40):
                a(f"""
                v_mul_u32_u24 v42, 1280, v40
                v_lshl_add_u32 v42, v41, 1, v42
                buffer_load_dwordx4 v[{Z+4*i}:{Z+4*i+3}], v42, s[32:35], 0 offen
                """)
            return
        if pre == 'setup':
            if out_ws_off is None:
                a.srd(36, 12, 2621440)
            else:
                a.srd(36, 14, 2621440, out_ws_off)
            return
        if pre == 'out':
            for i in out_chunks():
                a(f"""
                ds_read_b128 v[32:35], v7
                v_mul_u32_u24 v6, 1280, v4
                v_lshl_add_u32 v6, v5, 1, v6
                s_waitcnt lgkmcnt(0)
                """)
                for w in range(4):
                    a.unpack(36, 37, 32+w)
                    a.unpack(38, 39, Z+4*i+w)
                    a(f"""
                    v_add_f32 v36, v36, v38
                    v_add_f32 v37, v37, v39
                    v_cvt_pk_bf16_f32 v{Z+4*i+w}, v36, v37
                    """)
                a(f'buffer_store_dwordx4 v[{Z+4*i}:{Z+4*i+3}], v6, s[36:39], 0 offen')
            return
        tile_addr()
        a("""
        v_cvt_pk_bf16_f32 v10, v40, v41
        v_cvt_pk_bf16_f32 v11, v42, v43
        ds_write_b64 v7, v[10:11]
        """)
    return epi

gen_prep()
gen_conv()
gen_row('rowa_kernel', A_Q, 0, X1)
gen_row('rowb_kernel', WS, X2, X3)
gen_lnz()
g1, l1, t1 = gen_gemm('gemm1_kernel', 64, 32, 64, 640, 2048, 1728, (WS, HH), (WS, WINT), epi_gemm1, D=4, GM=2, GN=4)
g2, l2, t2 = gen_gemm('gemm2_kernel', 32, 32, 64, 2048, 2048, 864, (B_WSP, 0), (WS, Z2T), epi_gemm2, D=4, GM=4, GN=2, blk=896)
g3, l3, t3 = gen_gemm('gemm3a_kernel', 32, 32, 64, 896, 2048, 640, (WS, UU), (WS, WOUTT), make_epi_gemm3(X1, X2), D=4, GM=2, GN=2)
g3, l3, t3 = gen_gemm('gemm3b_kernel', 32, 32, 64, 896, 2048, 640, (WS, UU), (WS, WOUTT), make_epi_gemm3(X3, None), D=4, GM=2, GN=2)

launches = [
    ('prep_kernel', 1460, 5120, 256),
    ('conv_kernel', 640, CONV_LDS, 256),
    ('rowa_kernel', 256, 16384, 512),
    ('gemm1_kernel', g1, l1, t1),
    ('lnz_kernel', 256, 16384, 512),
    ('gemm2_kernel', g2, l2, t2),
    ('gemm3a_kernel', g3, l3, t3),
    ('rowb_kernel', 256, 16384, 512),
    ('gemm1_kernel', g1, l1, t1),
    ('lnz_kernel', 256, 16384, 512),
    ('gemm2_kernel', g2, l2, t2),
    ('gemm3b_kernel', g3, l3, t3),
]

ref = open('cdna_kernels/' + NAME + '.s.ref').read().split('\n')
head = [l for l in ref if l.startswith(';') and '@launch' not in l]
out = head[:]
for (k, g, lds, nt) in launches:
    out.append(f'; @launch kernel={k} grid=({g},1,1) block=({nt},1,1) lds={lds}')
out.append('.amdgcn_target "amdgcn-amd-amdhsa--gfx950"')
out.append('.text')
out += a.L
out.append('.section .rodata,"a"')
for (k, v, s, acc) in a.kernels:
    out.append('.p2align 6')
    out.append(f'.amdhsa_kernel {k}')
    out.append(f'  .amdhsa_next_free_vgpr {v}')
    out.append(f'  .amdhsa_next_free_sgpr {s}')
    out.append(f'  .amdhsa_accum_offset {((acc+3)//4)*4}')
    out.append('  .amdhsa_group_segment_fixed_size 0')
    out.append('  .amdhsa_kernarg_size 112')
    out.append('  .amdhsa_user_sgpr_count 2')
    out.append('  .amdhsa_user_sgpr_kernarg_segment_ptr 1')
    out.append('  .amdhsa_system_sgpr_workgroup_id_x 1')
    out.append('.end_amdhsa_kernel')
open('stamp.s' if STAMP else 'v_g3.s', 'w').write('\n'.join(out) + '\n')
print('ok', len(out), 'lines', g1, l1, g2, l2, g3, l3)
```
